```python
import torch

def _softmax(x, axis=-1):
    return torch.softmax(x, dim=axis)
def _gelu(x):
    return torch.nn.functional.gelu(x, approximate="tanh")
def _silu(x):
    return torch.nn.functional.silu(x)
def _sigmoid(x):
    return torch.sigmoid(x)
def _layernorm(x, axis=-1, eps=1e-5):
    m = x.mean(dim=axis, keepdim=True)
    v = x.var(dim=axis, keepdim=True, unbiased=False)
    return (x - m) / torch.sqrt(v + eps)
def _scatter_add(tgt, idx, src, axis=0):
    return tgt.clone().index_add_(axis, idx, src)
def _segment_sum(src, seg, n):
    out = torch.zeros((n,) + src.shape[1:], dtype=src.dtype)
    return out.index_add_(0, seg, src)
def _pad(x, pw):
    flat = tuple(v for pair in reversed(pw) for v in pair)
    return torch.nn.functional.pad(x, flat)

kernel_name = 'parallel_sum__grouped_kv_mqa__glu_gated_swiglu__prompt'

def setup_inputs():

    _w = (lambda a: (lambda t: t.to(torch.bfloat16) if t.is_floating_point() else t)(torch.as_tensor(a)))
    def _A_setup():
        B, S, D, H = 1, 2048, 448, 16
        Dh = D // H
        return {
            "x": _w((lambda *s: torch.randn(*s, dtype=torch.bfloat16) * 0.05)(B, S, D)),
            "wq": _w((lambda *s: torch.randn(*s, dtype=torch.bfloat16) * 0.05)(D, H * Dh)),
            "wk": _w((lambda *s: torch.randn(*s, dtype=torch.bfloat16) * 0.05)(D, Dh)),
            "wv": _w((lambda *s: torch.randn(*s, dtype=torch.bfloat16) * 0.05)(D, Dh)),
            "wo": _w((lambda *s: torch.randn(*s, dtype=torch.bfloat16) * 0.05)(H * Dh, D)),
        }
    _A_in = _A_setup()

    def _B_setup():
        B, S, D, F = 1, 2048, 448, 1792
        return {
            "x": _w((lambda *s: torch.randn(*s, dtype=torch.bfloat16) * 0.05)(B, S, D)),
            "w1": _w((lambda *s: torch.randn(*s, dtype=torch.bfloat16) * 0.4)(D, F) * (2.0 / D) ** 0.5),
            "w3": _w((lambda *s: torch.randn(*s, dtype=torch.bfloat16) * 0.4)(D, F) * (2.0 / D) ** 0.5),
            "w2": _w((lambda *s: torch.randn(*s, dtype=torch.bfloat16) * 0.4)(F, D) * (2.0 / F) ** 0.5),
        }
    _B_in = _B_setup()

    return {
        "A_x": _A_in["x"],
        "A_wq": _A_in["wq"],
        "A_wk": _A_in["wk"],
        "A_wv": _A_in["wv"],
        "A_wo": _A_in["wo"],
        "B_x": _B_in["x"],
        "B_w1": _B_in["w1"],
        "B_w3": _B_in["w3"],
        "B_w2": _B_in["w2"],
    }

def reference(A_x, A_wq, A_wk, A_wv, A_wo, B_x, B_w1, B_w3, B_w2):
    def _A_ref(x, wq, wk, wv, wo):
        B, S, D = x.shape
        H = 16
        Dh = D // H
        q = (lambda x, *d: x.permute(*d))((x @ wq).reshape(B, S, H, Dh), 0, 2, 1, 3)
        k = x @ wk
        v = x @ wv
        scores = torch.einsum("bhqd,bkd->bhqk", q, k) * (Dh ** -0.5)
        p = _softmax(scores, axis=-1)
        o = torch.einsum("bhqk,bkd->bhqd", p, v)
        return (lambda x, *d: x.permute(*d))(o, 0, 2, 1, 3).reshape(B, S, H * Dh) @ wo

    def _B_ref(x, w1, w3, w2):
        gate = torch.einsum("bsd,df->bsf", x, w1)
        up = torch.einsum("bsd,df->bsf", x, w3)
        h = _silu(gate) * up
        out = torch.einsum("bsf,fd->bsd", h, w2)
        return out

    x = A_x
    xn = _layernorm(x, axis=-1)
    return x + _A_ref(xn, A_wq, A_wk, A_wv, A_wo) + _B_ref(xn, B_w1, B_w3, B_w2)
```

```python
import re

REG = re.compile(r'(?<![\w])([vsa])(\d+)(?![\w\[])|(?<![\w])([vsa])\[(\d+):(\d+)\]')
TRANS = ('v_exp_f32', 'v_log_f32', 'v_rcp_f32', 'v_rsq_f32', 'v_sqrt_f32', 'v_sin_f32', 'v_cos_f32')


def regs_of(op):
    out = []
    for m in REG.finditer(op):
        if m.group(1):
            out.append((m.group(1), int(m.group(2))))
        else:
            out += [(m.group(3), r) for r in range(int(m.group(4)), int(m.group(5)) + 1)]
    o = op.strip()
    if re.search(r'(?<![\w])vcc(?![\w])', o):
        out += [('s', 'vcc')]
    if re.search(r'(?<![\w])exec(?![\w])', o):
        out += [('s', 'exec')]
    if re.search(r'(?<![\w])m0(?![\w])', o):
        out += [('s', 'm0')]
    return out


def split_ops(rest):
    ops, depth, cur = [], 0, ''
    for ch in rest:
        if ch == '[':
            depth += 1
        if ch == ']':
            depth -= 1
        if ch == ',' and depth == 0:
            ops.append(cur.strip())
            cur = ''
        else:
            cur += ch
    if cur.strip():
        ops.append(cur.strip())
    return ops


class I:
    def __init__(self, text):
        self.text = text
        t = text.split(';')[0].strip()
        self.mn = t.split()[0] if t else ''
        rest = t[len(self.mn):].strip()
        self.ops = split_ops(rest)
        mn = self.mn
        self.kind = ('mfma' if mn.startswith('v_mfma') else 'valu' if mn.startswith('v_') else
                     'ds' if mn.startswith('ds_') else
                     'vmem' if mn.startswith(('buffer_', 'global_')) else
                     'smem' if mn.startswith(('s_load', 's_memtime', 's_memrealtime')) else
                     'salu' if mn.startswith('s_') else 'other')
        self.d, self.u = [], []
        ops = self.ops
        R = [regs_of(o) for o in ops]
        self.lds_dma = self.kind == 'vmem' and re.search(r'\blds\b', rest) is not None
        self.store = False
        if self.kind == 'mfma':
            self.d = R[0]
            self.a, self.b, self.c = R[1], R[2], R[3]
            self.u = R[1] + R[2] + R[3]
        elif self.kind == 'valu':
            if mn.startswith('v_cmp'):
                self.d = R[0]
                self.u = sum(R[1:], [])
            elif mn.startswith(('v_permlane32_swap', 'v_permlane16_swap', 'v_swap')):
                self.d = R[0] + R[1]
                self.u = R[0] + R[1]
            elif mn.startswith(('v_add_co', 'v_sub_co', 'v_addc_co')):
                self.d = R[0] + R[1]
                self.u = sum(R[2:], [])
            else:
                self.d = R[0]
                self.u = sum(R[1:], [])
                if mn.startswith(('v_fmac', 'v_dot2c', 'v_writelane')) or '_dpp' in mn or 'UNUSED_PRESERVE' in t:
                    self.u += R[0]
        elif self.kind == 'ds':
            if mn.startswith('ds_read') or 'rtn' in mn or 'permute' in mn or 'swizzle' in mn:
                self.d = R[0]
                self.u = sum(R[1:], [])
            else:
                self.u = sum(R, [])
                self.store = True
        elif self.kind == 'vmem':
            if mn.startswith(('buffer_inv', 'buffer_wbl2')):
                pass
            elif self.lds_dma:
                self.u = sum(R, []) + [('s', 'm0')]
            elif 'load' in mn:
                self.d = R[0]
                self.u = sum(R[1:], [])
            elif 'atomic' in mn and re.search(r'\bsc0\b', rest):
                self.d = R[0]
                self.u = sum(R, [])
            else:
                self.u = sum(R, [])
                self.store = True
                self.sdata = R[0] if mn.startswith('buffer_') else R[1]
        elif self.kind == 'smem':
            self.d = R[0]
            self.u = sum(R[1:], [])
        elif self.kind == 'salu':
            if mn.startswith(('s_cmp', 's_bitcmp', 's_cbranch', 's_branch', 's_waitcnt', 's_nop', 's_barrier', 's_setprio',
                              's_sleep', 's_endpgm')):
                self.u = sum(R, [])
            elif 'saveexec' in mn:
                self.d = R[0] + [('s', 'exec')]
                self.u = sum(R[1:], []) + [('s', 'exec')]
            else:
                self.d = R[0] if R else []
                self.u = sum(R[1:], [])
        self.states = 1
        if mn == 's_nop':
            self.states = int(ops[0], 0) + 1
        self.trans = mn.startswith(TRANS)
        self.dot = mn.startswith('v_dot')
        self.wide_store = self.kind == 'vmem' and self.store and ('x4' in mn or 'x3' in mn)


def passes(i):
    return 8 if '32x32' in i.mn else 4


def check(trace, name='', verbose=True):
    ins = []
    for t in trace:
        s = t.split(';')[0].strip()
        if not s or s.endswith(':') or s.startswith('.'):
            continue
        ins.append(I(t))
    errs = []
    pos = []
    p = 0
    for i in ins:
        pos.append(p)
        p += i.states

    def dist(a, b):
        return pos[b] - pos[a] - ins[a].states

    lastw = {}
    lastc = {}
    laststore = {}
    vm = []
    lg = []
    for n, i in enumerate(ins):
        def err(msg, j=None):
            errs.append(f"[{name}] #{n} '{i.text.strip()}': {msg}" + (f"  <- #{j} '{ins[j].text.strip()}'" if j is not None else ''))
        if i.mn == 's_waitcnt':
            m = re.search(r'vmcnt\((\d+)\)', i.text)
            if m:
                k = int(m.group(1))
                vm = vm[len(vm) - k:] if k < len(vm) else vm
                if k == 0:
                    vm = []
            m = re.search(r'lgkmcnt\((\d+)\)', i.text)
            if m:
                k = int(m.group(1))
                if k and any(ins[j].kind == 'smem' for j, _ in lg):
                    err('counted lgkmcnt with SMEM outstanding')
                lg = lg[len(lg) - k:] if k < len(lg) else lg
                if k == 0:
                    lg = []
            continue
        touched = set(i.u) | set(i.d)
        for (j, dr) in vm + lg:
            bad = touched & set(dr)
            if bad:
                err(f'touches {sorted(bad, key=str)[:3]} with load outstanding', j)
        for r in set(i.u):
            j = lastw.get(r)
            if j is None:
                continue
            w = ins[j]
            dd = dist(j, n)
            need = 0
            if r[0] in 'va':
                if w.kind == 'valu' and i.kind == 'mfma':
                    need = 2
                if w.kind == 'mfma':
                    ps = passes(w)
                    if i.kind == 'mfma':
                        if r in i.a or r in i.b:
                            need = ps + 4
                        elif w.d != i.c:
                            need = ps + 2
                    elif i.kind in ('valu', 'vmem', 'ds'):
                        need = ps + 4
                if w.kind == 'valu' and i.kind == 'valu':
                    if w.trans and not i.trans:
                        need = max(need, 1)
                    if w.dot and not (i.dot and i.mn == w.mn and r in i.d):
                        need = max(need, 3)
                    if i.mn.startswith(('v_permlane',)) or '_dpp' in i.mn:
                        need = max(need, 2)
                    if i.mn.startswith(('v_readlane', 'v_readfirstlane')):
                        need = max(need, 1)
                    if 'sdwa' in w.mn:
                        need = max(need, 1)
                if w.kind == 'valu' and w.dot and i.kind != 'valu':
                    need = max(need, 3)
            else:
                if w.kind == 'valu':
                    if i.kind == 'vmem':
                        need = 5
                    elif i.kind in ('valu', 'mfma'):
                        need = 4 if i.mn.startswith(('v_readlane', 'v_writelane')) else 2
                    elif i.kind == 'salu':
                        need = 1
                if w.kind == 'salu' and r == ('s', 'm0') and i.lds_dma:
                    need = 1
            if dd < need:
                err(f'RAW {r} needs {need} states, has {dd}', j)
        for r in set(i.d):
            j = lastw.get(r)
            if j is not None and ins[j].kind == 'mfma' and r[0] in 'va':
                dd = dist(j, n)
                ps = passes(ins[j])
                if i.kind in ('valu', 'ds', 'vmem') and dd < ps + 4:
                    err(f'WAW {r} after mfma needs {ps + 4}, has {dd}', j)
                if i.kind == 'mfma' and r not in i.c and dd < ps + 2 and ins[j].d != i.d:
                    err(f'mfma WAW {r} partial', j)
            if j is not None and ins[j].dot and i.kind == 'valu' and not (i.dot and i.mn == ins[j].mn) and dist(j, n) < 3:
                err(f'WAW {r} after dot', j)
            j = lastc.get(r)
            if j is not None and i.kind == 'valu' and dist(j, n) < passes(ins[j]) - 1:
                err(f'WAR srcC {r}', j)
            j = laststore.get(r)
            if j is not None and dist(j, n) < 2:
                err(f'WAR wide store data {r}', j)
        if i.kind == 'valu' and ('s', 'exec') in i.d:
            pass
        for r in i.d:
            lastw[r] = n
        if i.kind == 'mfma':
            for r in i.c:
                lastc[r] = n
        if i.wide_store:
            for r in i.sdata:
                laststore[r] = n
        if i.kind == 'vmem':
            vm.append((n, [] if (i.store or i.lds_dma) else i.d))
            if len(vm) > 63:
                err('more than 63 vmem outstanding')
        if i.kind in ('ds', 'smem'):
            lg.append((n, [] if i.store else i.d))
            if len(lg) > 15 and False:
                err('more than 15 lgkm outstanding')
    if verbose:
        for e in errs[:40]:
            print(e)
        print(f'check {name}: {len(ins)} instrs, {len(errs)} findings')
    return errs
```

```python
import sys, math, struct
sys.path.insert(0, __file__.rsplit('/', 1)[0])
from asmcheck import check

NAME = "parallel_sum__grouped_kv_mqa__glu_gated_swiglu__prompt"


def f2u(x):
    return struct.unpack('<I', struct.pack('<f', x))[0]


class Cfg:
    diag = False
    ng1 = 16
    prefetch_code = True
    force_fallback = False


WS_KV = 0
WS_KMAX = 0x40000
WS_FLAG = 0x41000
WS_O = 0x80000
WS_H = 0x280000
WS_END = 0x980000
WS_DIAG = 0x1000000

XT = 28672
L_R = 114688
L_WQ = 16384
L_QX = 49152
L_N2 = 57344
L_RING = 65536
RING = 24576
L_ORED = 0
LDS_BYTES = 163840


def slot_u(u, s):
    if u == 0:
        return L_R + 4096 * s if s < 12 else 4096 * (s - 12)
    if s < 12:
        return 4096 * (16 + s)
    if s < 24:
        return L_R + 4096 * (s - 12)
    return 4096 * (s - 24)


sX, sW, sQ, sWS, sW2, sWO, sOUT, sDBG, sH = 28, 32, 36, 40, 44, 48, 52, 56, 60
sPC = 64
sWV, sTT, sI, sJ, sNT, sP, sFS, sMODE = 66, 67, 68, 69, 70, 71, 72, 73
sT0, sT1, sT2, sT3 = 74, 75, 76, 77
sCNT = 78
sKMAX = 79
sMASK = 80
sTMP2 = 82
sEX = 84
sHI = 86
sTS = 88
sSO = 90
sM0 = 91
sHO = 92
sUP = 94


def srd(r):
    return f"s[{r}:{r + 3}]"


def vr(a, n):
    return f"v[{a}:{a + n - 1}]"


def mfma(d, a, b, first=False):
    return f"v_mfma_f32_32x32x16_bf16 {vr(d, 16)}, {vr(a, 4)}, {vr(b, 4)}, " + ("0" if first else vr(d, 16))


class Q:
    def __init__(self):
        self.q = []

    def issue(self, tag):
        self.q.append(tag)

    def need(self, pred):
        last = -1
        for k, t in enumerate(self.q):
            if pred(t):
                last = k
        if last < 0:
            return None
        n = len(self.q) - 1 - last
        self.q = self.q[last + 1:]
        return n


vLANE, vTS, vTSG = 1, 238, 31


def ts(cfg, idx, g=False):
    if not cfg.diag:
        return []
    return [f"s_memtime s[{sTS}:{sTS + 1}]", "s_waitcnt lgkmcnt(0)", f"v_writelane_b32 v{vTSG if g else vTS}, s{sTS}, {idx}"]


def ts_move(cfg):
    return [f"v_mov_b32 v{vTS}, v{vTSG}"] if cfg.diag else []


def poll(label, vdst, voff, srdr, cond, limit=1 << 20):
    return ([f"s_mov_b32 s{sCNT}, {limit}", f"{label}:",
             f"buffer_load_dword v{vdst}, v{voff}, {srd(srdr)}, 0 offen sc1",
             "s_waitcnt vmcnt(0)"] + cond +
            [f"s_cbranch_scc0 {label}_ok",
             f"s_sub_u32 s{sCNT}, s{sCNT}, 1",
             f"s_cbranch_scc1 {label}_ok",
             "s_sleep 1",
             f"s_branch {label}",
             f"{label}_ok:"])


def half_sum(a, t, op="v_add_f32"):
    return [f"v_mov_b32 v{t}, v{a}", "s_nop 1", f"v_permlane32_swap_b32 v{a}, v{t}", f"{op} v{a}, v{a}, v{t}"]


def wave_max_to_sgpr(v, s):
    o = []
    for sh in (1, 2, 4, 8):
        o += ["s_nop 1", f"v_max_f32_dpp v{v}, v{v}, v{v} row_shr:{sh} row_mask:0xf bank_mask:0xf"]
    o += ["s_nop 1", f"v_max_f32_dpp v{v}, v{v}, v{v} row_bcast:15 row_mask:0xa bank_mask:0xf",
          "s_nop 1", f"v_max_f32_dpp v{v}, v{v}, v{v} row_bcast:31 row_mask:0xc bank_mask:0xf",
          "s_nop 1", f"v_readlane_b32 s{s}, v{v}, 63"]
    return o


def prologue(cfg):
    o = []
    a = o.append
    a("s_cmp_ge_u32 s2, 256")
    a("s_cbranch_scc1 L_end")
    a("s_load_dwordx16 s[4:19], s[0:1], 0")
    a("s_load_dwordx8 s[20:27], s[0:1], 64")
    a(f"v_and_b32 v{vLANE}, 63, v0")
    a("v_lshrrev_b32 v2, 6, v0")
    a(f"s_lshr_b32 s{sT0}, s2, 3")
    a(f"v_readfirstlane_b32 s{sWV}, v2")
    a(f"s_and_b32 s{sP}, s2, 1")
    a(f"s_lshr_b32 s{sNT}, s{sT0}, 2")
    a(f"s_and_b32 s{sT1}, s{sT0}, 3")
    a(f"s_bfe_u32 s{sI}, s2, 0x20001")
    a(f"s_lshl_b32 s{sI}, s{sI}, 2")
    a(f"s_add_u32 s{sI}, s{sI}, s{sT1}")
    a(f"s_lshl_b32 s{sJ}, s{sP}, 3")
    a(f"s_add_u32 s{sJ}, s{sJ}, s{sNT}")
    a(f"s_mul_i32 s{sFS}, s{sP}, 7")
    a(f"s_add_u32 s{sFS}, s{sFS}, s{sNT}")
    a(f"s_and_b32 s{sTT}, s{sWV}, 3")
    a(f"s_mov_b32 s{sHI}, 0xffff0000")
    a(f"s_mov_b32 s{sUP}, 0")
    a(f"s_mov_b32 s{sUP + 1}, -1")
    if cfg.diag:
        a(f"v_mov_b32 v{vTS}, 0")
        a(f"v_mov_b32 v{vTSG}, 0")
        o += [f"s_memtime s[{sTS}:{sTS + 1}]"]
    if cfg.prefetch_code:
        a(f"s_cmp_lg_u32 s{sWV}, 0")
        a("s_cbranch_scc1 L_nopf")
        a(f"s_getpc_b64 s[{sPC}:{sPC + 1}]")
        a("L_pc:")
        a(f"s_lshl_b32 s{sT1}, s{sT1}, 13")
        a(f"v_lshl_add_u32 v2, v{vLANE}, 7, s{sT1}")
        a("v_min_u32 v2, L_codeend-L_pc-4, v2")
        a(f"global_load_dword v239, v2, s[{sPC}:{sPC + 1}]")
        a("L_nopf:")
    a("s_waitcnt lgkmcnt(0)")
    if cfg.diag:
        a(f"v_writelane_b32 v{vTS}, s{sTS}, 0")
        a(f"v_writelane_b32 v{vTSG}, s{sTS}, 0")
        o += ts(cfg, 13) + ts(cfg, 13, True)

    def mk(r, lo, size):
        return [f"s_mov_b32 s{r}, s{lo}", f"s_mov_b32 s{r + 1}, s{lo + 1}", f"s_mov_b32 s{r + 2}, {size}",
                f"s_mov_b32 s{r + 3}, 0x20000"]
    o += mk(sX, 4, 2048 * 896)
    a(f"s_cmp_ge_u32 s{sWV}, 4")
    a("s_cbranch_scc1 L_G")
    return o


def rest_srds(cfg):
    def mk(r, lo, size):
        return [f"s_mov_b32 s{r}, s{lo}", f"s_mov_b32 s{r + 1}, s{lo + 1}", f"s_mov_b32 s{r + 2}, {size}",
                f"s_mov_b32 s{r + 3}, 0x20000"]
    o = []
    o += mk(sWS, 26, WS_END if not cfg.diag else WS_DIAG + (1 << 20))
    o += mk(sOUT, 22, 2048 * 896)
    o += mk(sDBG, 24, 256)
    return o


A0, A4 = 64, 32
XC = 128
FR = 240
vWR = 2
vMEAN, vC, vK1, vRSTD, vKQ, vKQ2 = 8, 9, 10, 11, 12, 13
vT = 14
vHQ = 20
vQR, vL16, vONE = 28, 29, 30


def stream():
    st = []
    for s in range(28):
        for q in range(4):
            st.append(dict(acc=A0 + 16 * q, s=s, kind='W', u=0, q=q))
    for half, base in ((0, A4), (1, A0)):
        for s in range(28):
            for q in range(2):
                st.append(dict(acc=base + 16 * q, s=s, kind='W', u=1, q=2 * half + q))
    for s in range(28):
        st.append(dict(acc=A0 + 32, s=s, kind='Q'))
    return st


BARRIERS = [12, 44, 76, 108, 132, 156]


def center_reg(r, t):
    return [f"v_lshlrev_b32 v{t}, 16, v{r}", f"v_and_b32 v{t + 1}, s{sHI}, v{r}",
            f"v_sub_f32 v{t}, v{t}, v{vMEAN}", f"v_sub_f32 v{t + 1}, v{t + 1}, v{vMEAN}",
            f"v_cvt_pk_bf16_f32 v{r}, v{t}, v{t + 1}"]


def silu_tile(acc, quad, ks_off):
    def stage(r):
        t = vT + (r % 3)
        return [[f"v_mul_f32 v{t}, v{acc + r}, v{vK1}"],
                [f"v_exp_f32 v{t}, v{t}"],
                [f"v_mul_f32 v{acc + r}, v{acc + r}, v{acc + 8 + r}"],
                [f"v_fma_f32 v{t}, v{t}, v{vC}, v{vC}"],
                [f"v_rcp_f32 v{t}, v{t}"],
                [f"v_mul_f32 v{acc + r}, v{acc + r}, v{t}"]]
    o = []
    prev_last = None
    for r in range(8):
        sg = stage(r)
        o += sg[0]
        if prev_last:
            o += prev_last
            if r % 2 == 0:
                o.append(f"v_cvt_pk_bf16_f32 v{quad + r // 2 - 1}, v{acc + r - 2}, v{acc + r - 1}")
        o += sg[1] + sg[2] + sg[3] + sg[4]
        prev_last = sg[5]
    o += [f"s_add_u32 s{sT0}, s{sHO}, {ks_off * 1024}"] + prev_last
    o.append(f"v_cvt_pk_bf16_f32 v{quad + 3}, v{acc + 6}, v{acc + 7}")
    o.append(f"buffer_store_dwordx4 {vr(quad, 4)}, v{vL16}, {srd(sH)}, s{sT0} offen sc1")
    return o


def frag_reads(e, buf, wbase):
    o = []
    d = FR + 4 * buf
    if e['kind'] == 'Q':
        off = e['s'] * 1024
        return [f"ds_read_b64_tr_b16 {vr(d, 2)}, v{vQR} offset:{off}",
                f"ds_read_b64_tr_b16 {vr(d + 2, 2)}, v{vQR} offset:{off + 256}"]
    q = e['q']
    sl = slot_u(e['u'], e['s'])
    if not (wbase[q] <= sl and sl + 512 - wbase[q] <= 65535):
        nb = 0 if sl < 65536 else (65536 if sl < L_R else L_R)
        delta = nb - wbase[q]
        o.append(f"v_add_u32 v{vWR + q}, {delta & 0xffffffff:#x}, v{vWR + q}")
        wbase[q] = nb
    off = sl - wbase[q]
    o += [f"ds_read_b64_tr_b16 {vr(d, 2)}, v{vWR + q} offset:{off}",
          f"ds_read_b64_tr_b16 {vr(d + 2, 2)}, v{vWR + q} offset:{off + 512}"]
    return o


def g_stream(cfg):
    st = stream()
    N = len(st)
    wbase = [L_R] * 4
    lq = Q()
    pre = []
    for r in range(5):
        pre += center_reg(XC + r, vT + 2 * (r & 1))
    for n in range(4):
        pre += frag_reads(st[n], n, wbase)
        lq.issue(n), lq.issue(n)
    fill = {}

    def spread(ops, g0, g1):
        k = g1 - g0 + 1
        for x, op in enumerate(ops):
            fill.setdefault(g0 + x * k // len(ops), []).append(op)
    for n in range(107):
        fill.setdefault(n, []).extend(center_reg(XC + 5 + n, vT + 2 * (n & 1)))
    e0 = []
    for q in range(4):
        e0 += silu_tile(A0 + 16 * q, vHQ + 4 * (q & 1), q)
    spread(e0, 114, 166)
    e1 = []
    for q in range(2):
        e1 += silu_tile(A4 + 16 * q, vHQ + 4 * (q & 1), 4 + q)
    spread(e1, 172, 220)
    e2 = []
    for q in range(2):
        e2 += silu_tile(A0 + 16 * q, vHQ + 4 * (q & 1), 6 + q)
    spread(e2, 227, 251)
    body, qp = pre, []
    cur = body
    for n, e in enumerate(st):
        if n == 224:
            cur = qp
        k = lq.need(lambda t: t == n)
        cur.append(f"s_waitcnt lgkmcnt({k})")
        cur.append(mfma(e['acc'], FR + 4 * (n & 3), XC + 4 * e['s'], first=(e['s'] == 0)))
        if n in BARRIERS:
            cur.append("s_barrier")
        if n + 4 < N:
            cur += frag_reads(st[n + 4], n & 3, wbase)
            lq.issue(n + 4), lq.issue(n + 4)
        cur += fill.get(n, [])
        if n == 223:
            cur.append("s_barrier")
    return body, qp


def loader_heavy(cfg):
    st = stream()
    first_read, last_use = {}, {}
    for n, e in enumerate(st):
        key = (e['u'], e['s']) if e['kind'] == 'W' else ('Q', e['s'])
        first_read.setdefault(key, n - 4)
        last_use[key] = n
    fills = [(0, s) for s in range(28)] + [(1, s) for s in range(28)] + [('Q', m) for m in range(7)]

    def target(f):
        return slot_u(*f) if f[0] != 'Q' else L_WQ + 4096 * f[1]
    prev_owner = {}
    for s in range(28):
        prev_owner[slot_u(0, s)] = (0, s)
    o = []
    vq = Q()
    issued = set()

    def issue(f):
        if f[0] == 'Q':
            m = f[1]
            o.extend([f"s_add_u32 m0, s{sT2}, {L_WQ + 4096 * m}", f"s_add_u32 s{sSO}, s{sT3}, {4 * m * 16 * 896}",
                      f"buffer_load_dwordx4 v3, {srd(sQ)}, s{sSO} offen lds"])
        else:
            u, s = f
            o.extend([f"s_add_u32 m0, s{sM0}, {slot_u(u, s)}", f"s_mov_b32 s{sSO}, {s * 16 * 3584 + u * 128}",
                      f"buffer_load_dwordx4 v2, {srd(sW)}, s{sSO} offen lds"])
        vq.issue(f)
        issued.add(f)

    def needed_before(nb):
        out = []
        for f in fills:
            keys = [f] if f[0] != 'Q' else [('Q', 4 * f[1] + x) for x in range(4)]
            if min(first_read[k] for k in keys) < nb:
                out.append(f)
        return out

    def wait_for(fs):
        for f in fs:
            assert f in issued, f
        k = vq.need(lambda t: t in fs)
        if k is not None:
            o.append(f"s_waitcnt vmcnt({k})")
    o.append("s_barrier")
    for s in range(12):
        issue((0, s))
    pts = BARRIERS + [223]
    wait_for(needed_before(pts[0]))
    o.append("s_barrier")
    done_upto = -1
    for bi in range(len(pts)):
        for f in fills:
            if f in issued:
                continue
            t = target(f)
            own = prev_owner.get(t)
            if own == f or own is None or last_use[own] <= done_upto:
                issue(f)
            else:
                break
        nxt = pts[bi + 1] if bi + 1 < len(pts) else 10 ** 9
        wait_for(needed_before(nxt))
        if bi == len(pts) - 1:
            break
        o.append("s_barrier")
        done_upto = pts[bi]
    assert len(issued) == len(fills)
    return o


def a_setup(cfg):
    o = []
    a = o.append
    a(f"s_bitcmp1_b32 s{sWV}, 0")
    a(f"s_cselect_b32 s{sW}, s18, s16")
    a(f"s_cselect_b32 s{sW + 1}, s19, s17")
    a(f"s_mov_b32 s{sW + 2}, {448 * 3584}")
    a(f"s_mov_b32 s{sW + 3}, 0x20000")
    a(f"s_mov_b32 s{sQ}, s6")
    a(f"s_mov_b32 s{sQ + 1}, s7")
    a(f"s_mov_b32 s{sQ + 2}, {448 * 896}")
    a(f"s_mov_b32 s{sQ + 3}, 0x20000")
    o += rest_srds(cfg)
    a(f"v_lshrrev_b32 v4, 3, v{vLANE}")
    a(f"s_lshr_b32 s{sT0}, s{sWV}, 1")
    a(f"s_and_b32 s{sT1}, s{sWV}, 1")
    a(f"s_lshl_b32 s{sM0}, s{sWV}, 10")
    a("v_and_b32 v5, 2, v4")
    a(f"s_lshl_b32 s{sT1}, s{sT1}, 2")
    a(f"v_or_b32 v5, s{sT1}, v5")
    a(f"v_and_b32 v6, 7, v{vLANE}")
    a("v_xor_b32 v5, v5, v6")
    a(f"s_mul_i32 s{sT0}, s{sT0}, {8 * 3584}")
    a(f"s_lshl_b32 s{sT1}, s{sFS}, 8")
    a(f"s_add_u32 s{sT0}, s{sT0}, s{sT1}")
    a("v_mul_u32_u24 v4, 3584, v4")
    a("v_lshl_add_u32 v2, v5, 4, v4")
    a(f"v_add_u32 v2, s{sT0}, v2")
    a(f"v_lshrrev_b32 v4, 2, v{vLANE}")
    a(f"v_and_b32 v5, 3, v{vLANE}")
    a("v_lshlrev_b32 v5, 4, v5")
    a("v_mad_u32_u24 v7, v4, 56, v5")
    a("v_mul_u32_u24 v4, 896, v4")
    a(f"s_mul_i32 s{sT0}, s{sJ}, 56")
    a(f"v_add3_u32 v3, v4, v5, s{sT0}")
    a(f"s_lshl_b32 s{sT2}, s{sWV}, 10")
    a(f"s_mul_i32 s{sT3}, s{sWV}, {16 * 896}")
    return o


AS0, AS1, AP, AO, AQ, AK, AV = 16, 32, 48, 64, 128, 160, 176
vA16, vKVO = 8, 9


def a_init_regs():
    o = [f"v_mov_b32 v{r}, 0" for r in list(range(AO, AO + 64)) + list(range(AP, AP + 8)) + [AS1 + 14, AS1 + 15] +
         list(range(AV + 8, AV + 16))]
    o.append(f"v_lshlrev_b32 v{vA16}, 4, v{vLANE}")
    return o


def loader_light(cfg):
    o = []
    a = o.append
    a(f"s_cmp_eq_u32 s{sP}, 0")
    a(f"s_cselect_b32 s{sW}, s8, s10")
    a(f"s_cselect_b32 s{sW + 1}, s9, s11")
    a(f"s_mov_b32 s{sW + 2}, {448 * 56}")
    a("s_barrier")
    a(f"s_cmp_lg_u32 s{sWV}, 0")
    a("s_cbranch_scc1 L_noclr")
    a(f"s_lshl_b32 s{sT0}, s{sI}, 10")
    a(f"s_lshl_b32 s{sT1}, s{sP}, 9")
    a(f"s_add_u32 s{sT0}, s{sT0}, s{sT1}")
    a(f"s_add_u32 s{sT0}, s{sT0}, {WS_FLAG}")
    a(f"v_lshlrev_b32 v4, 3, v{vLANE}")
    a(f"buffer_store_dwordx2 {vr(AP, 2)}, v4, {srd(sWS)}, s{sT0} offen sc1")
    a("L_noclr:")
    a(f"s_mul_i32 s{sT1}, s{sWV}, 896")
    for m in range(7):
        a(f"s_add_u32 m0, s{sT2}, {L_R + 4096 * m}")
        a(f"s_add_u32 s{sSO}, s{sT1}, {4 * m * 896}")
        a(f"buffer_load_dwordx4 v7, {srd(sW)}, s{sSO} offen lds")
    a("s_waitcnt vmcnt(0)")
    a("s_barrier")
    for m in range(7):
        a(f"s_add_u32 m0, s{sT2}, {L_WQ + 4096 * m}")
        a(f"s_add_u32 s{sSO}, s{sT3}, {4 * m * 16 * 896}")
        a(f"buffer_load_dwordx4 v3, {srd(sQ)}, s{sSO} offen lds")
    a("s_waitcnt vmcnt(0)")
    return o


def kv_load(kind, buf, rel):
    base = (AK if kind == 'K' else AV) + 8 * buf
    off = 0 if kind == 'K' else 2048
    return [f"buffer_load_dwordx4 {vr(base + 4 * u, 4)}, v{vA16}, {srd(sWS)}, s{rel} offen offset:{off + 1024 * u} sc1"
            for u in range(2)]


THRESH = 96.0 * 96.0 / 1.02


def a_pre_attn(cfg):
    o = []
    a = o.append
    a("s_barrier")
    o += ts(cfg, 1)
    a(f"v_and_b32 v4, 3, v{vLANE}")
    a("v_lshlrev_b32 v4, 6, v4")
    o += poll("L_pkv", 5, 4, sDBG, ["v_cmp_ne_u32 vcc, 32, v5", "s_nop 0", "s_cmp_lg_u64 vcc, 0"])
    o += ts(cfg, 2)
    a(f"v_lshlrev_b32 v4, 2, v{vLANE}")
    a(f"s_mov_b32 s{sT0}, {WS_KMAX}")
    a(f"buffer_load_dword v5, v4, {srd(sWS)}, s{sT0} offen sc1")
    a(f"s_lshl_b32 s{sSO}, s{sWV}, 16")
    a(f"s_add_u32 s{sT0}, s{sSO}, 4096")
    o += kv_load('K', 0, sSO) + kv_load('V', 0, sSO) + kv_load('K', 1, sT0)
    for sg in range(4):
        a(f"s_add_u32 s{sT0}, s{sWV}, {1 + sg}")
        a(f"s_and_b32 s{sT0}, s{sT0}, 3")
        a(f"s_lshl_b32 s{sT0}, s{sT0}, 11")
        a(f"s_add_u32 s{sT0}, s{sT0}, {L_QX}")
        a(f"v_add_u32 v{10 + sg}, s{sT0}, v{vA16}")
    a(f"v_lshrrev_b32 v6, 5, v{vLANE}")
    a(f"v_and_b32 v7, 31, v{vLANE}")
    a("v_lshlrev_b32 v7, 2, v7")
    a("v_lshl_add_u32 v6, v6, 8, v7")
    a("s_waitcnt vmcnt(6)")
    o += wave_max_to_sgpr(5, sKMAX)
    o += ts(cfg, 3)
    a("s_barrier")
    o += ts(cfg, 4)
    a(f"ds_read_b32 v4, v6 offset:{L_N2}")
    a(f"ds_read_b32 v5, v6 offset:{L_N2 + 512}")
    for sg in range(4):
        a(f"ds_read_b128 {vr(AQ + 8 * sg, 4)}, v{10 + sg}")
        a(f"ds_read_b128 {vr(AQ + 8 * sg + 4, 4)}, v{10 + sg} offset:1024")
    a("s_waitcnt lgkmcnt(8)")
    a("v_max_f32 v4, v4, v5")
    a(f"v_mul_f32 v4, s{sKMAX}, v4")
    a(f"v_cmp_nge_f32 vcc, {f2u(-1.0 if cfg.force_fallback else THRESH):#x}, v4")
    a("s_waitcnt lgkmcnt(0)")
    a("s_cbranch_vccnz L_fallback")
    a("L_attn:")
    return o


def fallback(cfg):
    o = ["L_fallback:", "s_waitcnt vmcnt(0)"]
    a = o.append
    M = 192
    KB = 200
    for sg in range(4):
        a(f"v_mov_b32 v{M + sg}, 0xff800000")
    a(f"s_mov_b32 s{sT0}, 0")
    a("L_fb_loop:")
    for u in range(2):
        a(f"buffer_load_dwordx4 {vr(KB + 4 * u, 4)}, v{vA16}, {srd(sWS)}, s{sT0} offen offset:{1024 * u} sc1")
    a("s_waitcnt vmcnt(0)")
    for sg in range(4):
        a(mfma(AS0, KB, AQ + 8 * sg, first=True))
        a(mfma(AS0, KB + 4, AQ + 8 * sg + 4))
        a("s_nop 11")
        for r in range(0, 16, 2):
            a(f"v_max3_f32 v{M + sg}, v{M + sg}, v{AS0 + r}, v{AS0 + r + 1}")
    a(f"s_add_u32 s{sT0}, s{sT0}, 4096")
    a(f"s_cmp_lt_u32 s{sT0}, {64 * 4096}")
    a("s_cbranch_scc1 L_fb_loop")
    for sg in range(4):
        o += half_sum(M + sg, 4, "v_max_f32")
        a(f"v_cvt_pk_bf16_f32 v4, -v{M + sg}, -v{M + sg}")
        a("v_lshlrev_b32 v4, 16, v4")
        a(f"v_sub_f32 v4, -v{M + sg}, v4")
        a(f"v_cvt_pk_bf16_f32 v4, -v{M + sg}, v4")
        a(f"v_cndmask_b32 v{AQ + 8 * sg + 6}, v{AQ + 8 * sg + 6}, v4, s[{sUP}:{sUP + 1}]")
    a("s_nop 1")
    a("s_branch L_attn")
    return o


def attn_block(n, last=False):
    X, Y = (AS0, AS1) if n % 2 == 0 else (AS1, AS0)
    q, qn, qp = n & 3, (n + 1) & 3, (n - 1) & 3
    kb = AK + 8 * (((n + 1) >> 2) & 1)
    vb = AV + 8 * (((n - 1) >> 2) & 1)
    E = lambda i: f"v_exp_f32 v{X + i}, v{X + i}"
    C = lambda i: f"v_cvt_pk_bf16_f32 v{AP + i}, v{X + 2 * i}, v{X + 2 * i + 1}"
    Cp7 = f"v_cvt_pk_bf16_f32 v{AP + 7}, v{Y + 14}, v{Y + 15}"
    QK0, QK1 = mfma(Y, kb, AQ + 8 * qn, first=True), mfma(Y, kb + 4, AQ + 8 * qn + 4)
    PV0, PV1 = mfma(AO + 16 * qp, vb, AP), mfma(AO + 16 * qp, vb + 4, AP + 4)
    if last:
        return [Cp7, PV0, "s_nop 0", PV1]
    o = [Cp7]
    if q == 3:
        o.append("s_waitcnt vmcnt(2)")
    o += [QK0, E(0), E(1), E(2), QK1]
    o += [E(3), E(4), E(5)]
    if q == 1:
        o.append("s_waitcnt vmcnt(4)")
    o += [PV0, E(6), E(7), E(8), PV1]
    if q == 0:
        o += kv_load('V', ((n >> 2) + 1) & 1, sT1)
    if q == 3:
        o += [f"s_add_u32 s{sT1}, s{sT1}, 4096"] + kv_load('K', (n >> 2) & 1, sT1)
        o += [f"s_nop 0"] if False else []
    o += [E(9), C(0), E(10), C(1), E(11), C(2), E(12), C(3), E(13), C(4), E(14), C(5), E(15), C(6)]
    return o


def attention(cfg):
    o = ["s_waitcnt vmcnt(4)",
         mfma(AS0, AK, AQ, first=True), mfma(AS0, AK + 4, AQ + 4),
         f"s_add_u32 s{sT1}, s{sSO}, 4096",
         f"s_mov_b32 s{sCNT}, 8",
         "s_nop 9"]
    loop = []
    for n in range(8):
        loop += attn_block(n)
    loop += [f"s_sub_u32 s{sCNT}, s{sCNT}, 1", f"s_cmp_lg_u32 s{sCNT}, 0", "s_cbranch_scc1 L_attn_loop"]
    post = attn_block(8, last=True)
    return o, loop, post


def a_post(cfg):
    o = []
    a = o.append
    o += ts(cfg, 5)
    for sg in range(3):
        a(f"s_add_u32 s{sT0}, s{sWV}, {1 + sg}")
        a(f"s_and_b32 s{sT0}, s{sT0}, 3")
        a(f"s_mul_i32 s{sT0}, s{sT0}, 12288")
        a(f"v_add_u32 v{10 + sg}, s{sT0}, v{vA16}")
    for sg in range(3):
        for u in range(4):
            a(f"ds_write_b128 v{10 + sg}, {vr(AO + 16 * sg + 4 * u, 4)} offset:{L_ORED + sg * 4096 + u * 1024}")
    a(f"s_mul_i32 s{sT0}, s{sWV}, 12288")
    a(f"v_add_u32 v10, s{sT0}, v{vA16}")
    a("s_waitcnt vmcnt(0) lgkmcnt(0)")
    a("s_barrier")
    o += ts(cfg, 6)
    R = 128
    for x in range(12):
        a(f"ds_read_b128 {vr(R + 4 * x, 4)}, v10 offset:{L_ORED + x * 1024}")
    a(f"s_lshl_b32 s{sT0}, s{sI}, 2")
    a(f"s_add_u32 s{sT0}, s{sT0}, s{sWV}")
    a(f"s_lshl_b32 s{sT1}, s{sT0}, 4")
    a(f"s_add_u32 s{sT1}, s{sT1}, s{sJ}")
    a(f"s_lshl_b32 s{sT1}, s{sT1}, 11")
    a(f"s_add_u32 s{sT1}, s{sT1}, {WS_O}")
    O = AO + 48
    for sg in range(3):
        for u in range(4):
            a(f"s_waitcnt lgkmcnt({11 - 4 * sg - u})")
            for r in range(4):
                a(f"v_add_f32 v{O + 4 * u + r}, v{O + 4 * u + r}, v{R + 16 * sg + 4 * u + r}")
    a(f"v_mov_b32 v4, v{O + 12}")
    a(f"v_mov_b32 v5, v{O + 12}")
    a("s_nop 1")
    a("v_permlane32_swap_b32 v4, v5")
    a("v_rcp_f32 v5, v5")
    a("s_nop 0")
    a(f"v_cndmask_b32 v4, v5, 0, s[{sUP}:{sUP + 1}]")
    for r in range(16):
        a(f"v_mul_f32 v{O + r}, v{O + r}, v{5 if r < 12 else 4}")
    for r in range(8):
        a(f"v_cvt_pk_bf16_f32 v{AP + r}, v{O + 2 * r}, v{O + 2 * r + 1}")
    for u in range(2):
        a(f"buffer_store_dwordx4 {vr(AP + 4 * u, 4)}, v{vA16}, {srd(sWS)}, s{sT1} offen offset:{1024 * u} sc1")
    a(f"s_lshl_b32 s{sT0}, s{sI}, 10")
    a(f"s_lshl_b32 s{sT2}, s{sWV}, 7")
    a(f"s_add_u32 s{sT0}, s{sT0}, s{sT2}")
    a(f"s_lshl_b32 s{sT2}, s{sJ}, 2")
    a(f"s_add_u32 s{sT0}, s{sT0}, s{sT2}")
    a(f"s_add_u32 s{sT0}, s{sT0}, {WS_FLAG + 512}")
    a("v_mov_b32 v4, 0")
    a("v_mov_b32 v5, 1")
    a("s_mov_b64 exec, 1")
    a("s_waitcnt vmcnt(0)")
    a(f"buffer_store_dword v5, v4, {srd(sWS)}, s{sT0} offen sc1")
    a("s_mov_b64 exec, -1")
    o += ts(cfg, 7)
    a(f"s_cmp_eq_u32 s{sNT}, 7")
    a("s_cbranch_scc1 L_fin")
    return o


vXRES = 20


def res_load():
    o = []
    a = o.append
    a(f"v_lshrrev_b32 v25, 3, v{vLANE}")
    a(f"v_and_b32 v26, 7, v{vLANE}")
    a("v_mul_u32_u24 v24, 896, v25")
    a("v_lshl_add_u32 v24, v26, 4, v24")
    a(f"s_lshl_b32 s{sT0}, s{sI}, 7")
    a(f"s_lshl_b32 s{sT1}, s{sP}, 6")
    a(f"s_add_u32 s{sT0}, s{sT0}, s{sT1}")
    a(f"s_lshl_b32 s{sT1}, s{sWV}, 3")
    a(f"s_add_u32 s{sT0}, s{sT0}, s{sT1}")
    a(f"s_mul_i32 s{sT0}, s{sT0}, 896")
    a(f"s_lshl_b32 s{sT2}, s{sNT}, 7")
    a(f"s_add_u32 s{sT0}, s{sT0}, s{sT2}")
    a(f"v_add_u32 v24, s{sT0}, v24")
    a(f"buffer_load_dwordx4 {vr(vXRES, 4)}, v24, {srd(sX)}, 0 offen")
    a(f"v_add_u32 v25, s{sT1}, v25")
    a("v_mul_u32_u24 v25, 272, v25")
    a("v_lshl_add_u32 v25, v26, 5, v25")
    a(f"v_add_u32 v25, {L_RING}, v25")
    a(f"v_add_u32 v26, {2 * RING}, v25")
    return o


def final(cfg):
    o = ["L_final:", "s_barrier"]
    a = o.append
    o += ts(cfg, 12)
    R = 32
    for kq in range(4):
        for u in range(2):
            a(f"ds_read_b128 {vr(R + 8 * kq + 4 * u, 4)}, v{25 + (kq >> 1)} offset:{(kq & 1) * RING + 16 * u}")
    a("s_waitcnt vmcnt(0)")
    for r in range(4):
        a(f"v_lshlrev_b32 v{8 + 2 * r}, 16, v{vXRES + r}")
        a(f"v_and_b32 v{9 + 2 * r}, s{sHI}, v{vXRES + r}")
    for kq in range(4):
        a(f"s_waitcnt lgkmcnt({6 - 2 * kq})")
        for r in range(8):
            a(f"v_add_f32 v{8 + r}, v{8 + r}, v{R + 8 * kq + r}")
    for r in range(4):
        a(f"v_cvt_pk_bf16_f32 v{vXRES + r}, v{8 + 2 * r}, v{9 + 2 * r}")
    a(f"buffer_store_dwordx4 {vr(vXRES, 4)}, v24, {srd(sOUT)}, 0 offen")
    a("L_fin:")
    if cfg.diag:
        o += ts(cfg, 15)
        a(f"s_lshl_b32 s{sT0}, s2, 3")
        a(f"s_add_u32 s{sT0}, s{sT0}, s{sWV}")
        a(f"s_lshl_b32 s{sT0}, s{sT0}, 8")
        a(f"s_add_u32 s{sT0}, s{sT0}, {WS_DIAG}")
        a(f"v_lshlrev_b32 v4, 2, v{vLANE}")
        a(f"buffer_store_dword v{vTS}, v4, {srd(sWS)}, s{sT0} offen")
    a("L_end:")
    a("s_endpgm")
    return o


def g_front(cfg):
    o = ["L_G:"]
    a = o.append
    a(f"v_lshrrev_b32 v4, 3, v{vLANE}")
    a(f"v_and_b32 v5, 7, v{vLANE}")
    a("v_lshrrev_b32 v6, 1, v4")
    a("v_xor_b32 v5, v5, v6")
    a("v_mul_u32_u24 v4, 896, v4")
    a("v_lshl_add_u32 v6, v5, 4, v4")
    a("v_xor_b32 v7, 64, v6")
    a(f"s_lshl_b32 s{sT0}, s{sI}, 2")
    a(f"s_add_u32 s{sT0}, s{sT0}, s{sTT}")
    a(f"s_mul_i32 s{sSO}, s{sT0}, {32 * 896}")
    a(f"s_mul_i32 s{sM0}, s{sTT}, {XT}")
    for L in range(7):
        for rb in range(4):
            a(f"s_add_u32 m0, s{sM0}, {L * 4096 + rb * 1024}")
            a(f"s_add_u32 s{sT1}, s{sSO}, {rb * 8 * 896 + L * 128}")
            a(f"buffer_load_dwordx4 v{6 + (rb & 1)}, {srd(sX)}, s{sT1} offen lds")
    a("s_barrier")
    o += ts(cfg, 1, True)
    o += rest_srds(cfg)
    a(f"s_mov_b32 s{sH}, s26")
    a(f"s_mov_b32 s{sH + 1}, s27")
    a(f"s_cmp_eq_u32 s{sNT}, 7")
    a(f"s_cselect_b32 s{sH + 2}, 0, {WS_END}")
    a(f"s_mov_b32 s{sH + 3}, 0x20000")
    a(f"s_mul_i32 s{sHO}, s{sT0}, 112")
    a(f"s_lshl_b32 s{sT1}, s{sFS}, 3")
    a(f"s_add_u32 s{sHO}, s{sHO}, s{sT1}")
    a(f"s_lshl_b32 s{sHO}, s{sHO}, 10")
    a(f"s_add_u32 s{sHO}, s{sHO}, {WS_H}")
    a(f"v_and_b32 v8, 31, v{vLANE}")
    a(f"v_lshrrev_b32 v9, 5, v{vLANE}")
    a("v_bfe_u32 v10, v8, 1, 3")
    a("v_xor_b32 v10, v10, v9")
    a("v_lshlrev_b32 v10, 4, v10")
    a("v_lshl_add_u32 v10, v8, 7, v10")
    a(f"v_add_u32 v2, s{sM0}, v10")
    for k in range(1, 4):
        a(f"v_xor_b32 v{2 + k}, {32 * k}, v2")
    a(f"v_mov_b32 v{vONE}, 0x3f803f80")
    for r in range(4):
        a(f"v_mov_b32 v{vT + r}, 0")
    a(f"v_lshlrev_b32 v{vL16}, 4, v{vLANE}")

    def dots(L):
        d = []
        for r in range(16):
            x = XC + 16 * L + r
            d += [f"v_dot2c_f32_bf16 v{vT + (r & 1)}, v{x}, v{vONE}", f"v_dot2c_f32_bf16 v{vT + 2 + (r & 1)}, v{x}, v{x}"]
        return d
    for L in range(7):
        a(f"s_waitcnt vmcnt({24 - 4 * L})")
        for k in range(4):
            a(f"ds_read_b128 {vr(XC + 16 * L + 4 * k, 4)}, v{2 + k} offset:{L * 4096}")
        if L:
            a("s_waitcnt lgkmcnt(4)")
            o += dots(L - 1)
    a(f"v_bfe_u32 v8, v{vLANE}, 4, 1")
    a(f"v_bfe_u32 v10, v{vLANE}, 2, 2")
    a(f"v_and_b32 v11, 3, v{vLANE}")
    a("v_lshlrev_b32 v11, 3, v11")
    a("v_lshl_add_u32 v12, v9, 3, v10")
    a("v_lshlrev_b32 v12, 6, v12")
    a("v_lshl_add_u32 v12, v8, 5, v12")
    a(f"v_add_u32 v{vQR}, v12, v11")
    a("v_lshrrev_b32 v12, 1, v10")
    a("v_lshl_or_b32 v12, v8, 1, v12")
    a("v_lshl_add_u32 v12, v12, 5, v11")
    a("v_lshl_add_u32 v12, v10, 7, v12")
    a("v_lshl_add_u32 v12, v8, 10, v12")
    a("v_lshl_add_u32 v12, v9, 11, v12")
    a("s_waitcnt lgkmcnt(0)")
    a("s_barrier")
    o += ts(cfg, 2, True)
    a(f"v_add_u32 v2, {L_R}, v12")
    for k in range(1, 4):
        a(f"v_xor_b32 v{2 + k}, {32 * k}, v2")
    o += dots(6)
    a("s_nop 2")
    a(f"v_add_f32 v{vMEAN}, v{vT}, v{vT + 1}")
    a(f"v_add_f32 v{vC}, v{vT + 2}, v{vT + 3}")
    a(f"v_mov_b32 v{vT}, v{vMEAN}")
    a(f"v_mov_b32 v{vT + 1}, v{vC}")
    a("s_nop 0")
    a(f"v_permlane32_swap_b32 v{vMEAN}, v{vT}")
    a(f"v_permlane32_swap_b32 v{vC}, v{vT + 1}")
    a(f"v_add_f32 v{vMEAN}, v{vMEAN}, v{vT}")
    a(f"v_add_f32 v{vC}, v{vC}, v{vT + 1}")
    a(f"v_mul_f32 v{vMEAN}, {f2u(1.0 / 448):#x}, v{vMEAN}")
    a(f"v_mul_f32 v{vC}, {f2u(1.0 / 448):#x}, v{vC}")
    a(f"v_fma_f32 v{vC}, -v{vMEAN}, v{vMEAN}, v{vC}")
    a(f"v_max_f32 v{vC}, 0, v{vC}")
    a(f"v_add_f32 v{vC}, {f2u(1e-5):#x}, v{vC}")
    a(f"v_rsq_f32 v{vRSTD}, v{vC}")
    a(f"s_mov_b32 s{sMODE}, 0")
    a(f"v_mul_f32 v{vK1}, {f2u(-math.log2(math.e)):#x}, v{vRSTD}")
    a(f"s_cmp_eq_u32 s{sNT}, 7")
    a("s_cbranch_scc1 L_G_light")
    a(f"v_add_u32 v{vQR}, {L_WQ}, v{vQR}")
    return o


def g_light(cfg):
    o = ["L_G_light:"]
    a = o.append
    a(f"v_mov_b32 v6, 0x00003f80")
    a(f"v_mov_b32 v7, 0x3f800000")
    a(f"v_sub_f32 v{vT + 4}, 0, v{vMEAN}")
    pend = []
    for r in range(112):
        t = vT + 2 * (r & 1)
        a(f"v_dot2_f32_bf16 v{t}, v{XC + r}, v6, v{vT + 4}")
        a(f"v_dot2_f32_bf16 v{t + 1}, v{XC + r}, v7, v{vT + 4}")
        if r:
            tp = vT + 2 * ((r - 1) & 1)
            a("s_nop 0")
            a(f"v_cvt_pk_bf16_f32 v{XC + r - 1}, v{tp}, v{tp + 1}")
    a("s_nop 2")
    a(f"v_cvt_pk_bf16_f32 v{XC + 111}, v{vT + 2}, v{vT + 3}")
    a(f"s_add_u32 s{sMODE}, s{sP}, 1")
    a(f"v_add_u32 v{vQR}, {L_R}, v{vQR}")
    a("L_G_restart:")
    for n in range(4):
        o += frag_reads(dict(kind='Q', s=n), n, None)
    a("s_branch L_qpass")
    return o


def proj_scale(scale_reg_setup):
    AC = A0 + 32
    o = list(scale_reg_setup)
    o.append(f"v_cndmask_b32 v{vKQ2}, v{vKQ}, 0, s[{sUP}:{sUP + 1}]")
    for r in range(16):
        o.append(f"v_mul_f32 v{AC + r}, v{AC + r}, v{vKQ if r < 12 else vKQ2}")
    return o


def sumsq():
    AC = A0 + 32
    o = [f"v_mul_f32 v{vT}, v{AC}, v{AC}", f"v_mul_f32 v{vT + 1}, v{AC + 1}, v{AC + 1}"]
    for r in range(2, 16):
        o.append(f"v_fmac_f32 v{vT + (r & 1)}, v{AC + r}, v{AC + r}")
    o.append(f"v_add_f32 v{vT}, v{vT}, v{vT + 1}")
    o += half_sum(vT, vT + 1)
    return o


def pack16(dst):
    AC = A0 + 32
    return [f"v_cvt_pk_bf16_f32 v{dst + r}, v{AC + 2 * r}, v{AC + 2 * r + 1}" for r in range(8)]


def g_after_pass(cfg):
    o = [f"s_cmp_lg_u32 s{sMODE}, 0", "s_cbranch_scc1 L_kv_epi"]
    a = o.append
    P = A4
    o += ts(cfg, 3, True)
    cq = math.log2(math.e) / math.sqrt(28.0)
    a(f"s_lshl_b32 s{sT0}, s{sTT}, 11")
    a(f"s_add_u32 s{sT0}, s{sT0}, {L_QX}")
    a(f"v_add_u32 v6, s{sT0}, v{vL16}")
    a(f"s_lshl_b32 s{sT0}, s{sTT}, 8")
    a(f"v_lshl_add_u32 v7, v{vLANE}, 2, s{sT0}")
    a("s_nop 3")
    o += proj_scale([f"v_mul_f32 v{vKQ}, {f2u(cq):#x}, v{vRSTD}"])
    o += pack16(P)
    a(f"ds_write_b128 v6, {vr(P, 4)}")
    a(f"ds_write_b128 v6, {vr(P + 4, 4)} offset:1024")
    o += sumsq()
    a(f"ds_write_b32 v7, v{vT} offset:{L_N2}")
    a("s_waitcnt lgkmcnt(0)")
    a("s_barrier")
    o += ts(cfg, 4, True) + ts_move(cfg)
    a(f"s_cmp_eq_u32 s{sNT}, 7")
    a("s_cbranch_scc1 L_fin")
    return o


def kv_epi(cfg):
    o = ["L_kv_epi:"]
    a = o.append
    P = A4
    AC = A0 + 32
    a(f"s_lshl_b32 s{sT1}, s{sI}, 2")
    a(f"s_add_u32 s{sT1}, s{sT1}, s{sTT}")
    a(f"s_lshl_b32 s{sT2}, s{sT1}, 12")
    a("s_nop 6")
    o += proj_scale([f"v_mov_b32 v{vKQ}, v{vRSTD}"])
    a(f"s_cmp_eq_u32 s{sMODE}, 2")
    a("s_cbranch_scc1 L_v_epi")
    o += pack16(P)
    a(f"v_cndmask_b32 v{P + 6}, v{P + 6}, v{vONE}, s[{sUP}:{sUP + 1}]")
    o += sumsq()
    a(f"buffer_store_dwordx4 {vr(P, 4)}, v{vL16}, {srd(sWS)}, s{sT2} offen sc1")
    a(f"buffer_store_dwordx4 {vr(P + 4, 4)}, v{vL16}, {srd(sWS)}, s{sT2} offen offset:1024 sc1")
    o += wave_max_to_sgpr(vT, sT3)
    a(f"s_lshl_b32 s{sT1}, s{sT1}, 2")
    a(f"s_add_u32 s{sT1}, s{sT1}, {WS_KMAX}")
    a("v_mov_b32 v6, 0")
    a(f"v_mov_b32 v7, s{sT3}")
    a("s_mov_b64 exec, 1")
    a(f"buffer_store_dword v7, v6, {srd(sWS)}, s{sT1} offen sc1")
    a("s_mov_b64 exec, -1")
    a("s_branch L_kv_pub")
    vpart = ["L_v_epi:"]
    a = vpart.append
    a(f"v_mov_b32 v6, 1.0")
    a(f"v_cndmask_b32 v{AC + 12}, v{AC + 12}, v6, s[{sUP}:{sUP + 1}]")
    vpart += pack16(P)
    a(f"v_and_b32 v6, 31, v{vLANE}")
    a(f"v_lshrrev_b32 v7, 5, v{vLANE}")
    a("v_lshlrev_b32 v6, 6, v6")
    a("v_lshl_add_u32 v6, v7, 3, v6")
    a(f"s_lshl_b32 s{sT0}, s{sTT}, 11")
    a(f"v_add_u32 v6, s{sT0}, v6")
    for u in range(4):
        a(f"ds_write_b64 v6, {vr(P + 2 * u, 2)} offset:{16 * u}")
    a(f"v_bfe_u32 v6, v{vLANE}, 2, 2")
    a("v_lshl_add_u32 v6, v7, 2, v6")
    a("v_lshlrev_b32 v6, 6, v6")
    a(f"v_bfe_u32 v7, v{vLANE}, 4, 1")
    a("v_lshl_add_u32 v6, v7, 5, v6")
    a(f"v_and_b32 v7, 3, v{vLANE}")
    a("v_lshl_add_u32 v6, v7, 3, v6")
    a(f"v_add_u32 v6, s{sT0}, v6")
    a("s_waitcnt lgkmcnt(0)")
    for u in range(4):
        a(f"ds_read_b64_tr_b16 {vr(P + 8 + 2 * u, 2)}, v6 offset:{512 * u}")
    a("s_waitcnt lgkmcnt(0)")
    a(f"buffer_store_dwordx4 {vr(P + 8, 4)}, v{vL16}, {srd(sWS)}, s{sT2} offen offset:2048 sc1")
    a(f"buffer_store_dwordx4 {vr(P + 12, 4)}, v{vL16}, {srd(sWS)}, s{sT2} offen offset:3072 sc1")
    pub = ["L_kv_pub:"]
    a = pub.append
    a(f"s_lshl_b32 s{sT0}, s{sTT}, 6")
    a("v_mov_b32 v6, 0")
    a("v_mov_b32 v7, 1")
    a("s_mov_b64 exec, 1")
    a("s_waitcnt vmcnt(0)")
    a(f"buffer_atomic_add v7, v6, {srd(sDBG)}, s{sT0} offen")
    a("s_mov_b64 exec, -1")
    pub += ts(cfg, 5, True)
    a(f"s_mov_b32 s{sMODE}, 0")
    a(f"v_add_u32 v{vQR}, {(L_WQ - L_R) & 0xffffffff:#x}, v{vQR}")
    a("s_barrier")
    a("s_branch L_G_restart")
    return o, vpart, pub


GH = 128
NH = 12
vW2R = 2
vW2D = 4
vFL = 5


def gemm2(cfg):
    o = []
    a = o.append
    ng1 = cfg.ng1
    a(f"s_lshl_b32 s{sT0}, s{sI}, 10")
    a(f"s_lshl_b32 s{sT2}, s{sTT}, 7")
    a(f"s_add_u32 s{sT1}, s{sT0}, s{sT2}")
    a(f"s_lshl_b32 s{sT2}, s{sJ}, 2")
    a(f"s_add_u32 s{sT1}, s{sT1}, s{sT2}")
    a(f"s_add_u32 s{sT1}, s{sT1}, {WS_FLAG}")
    a("v_mov_b32 v6, 0")
    a("v_mov_b32 v7, 1")
    a("s_mov_b64 exec, 1")
    a("s_waitcnt vmcnt(0)")
    a(f"buffer_store_dword v7, v6, {srd(sWS)}, s{sT1} offen sc1")
    a("s_mov_b64 exec, -1")
    o += ts(cfg, 5, True)
    for r, lo, size in ((sW2, 20, 1792 * 896), (sWO, 12, 448 * 896)):
        o += [f"s_mov_b32 s{r}, s{lo}", f"s_mov_b32 s{r + 1}, s{lo + 1}", f"s_mov_b32 s{r + 2}, {size}",
              f"s_mov_b32 s{r + 3}, 0x20000"]
    a(f"v_bfe_u32 v6, v{vLANE}, 4, 1")
    a(f"v_and_b32 v7, 15, v{vLANE}")
    a("v_lshlrev_b32 v7, 2, v7")
    a("v_lshl_add_u32 v7, v6, 7, v7")
    a(f"s_lshl_b32 s{sT1}, s{sP}, 8")
    a(f"s_add_u32 s{sT0}, s{sT0}, s{sT1}")
    a(f"s_add_u32 s{sT0}, s{sT0}, {WS_FLAG}")
    a(f"v_add_u32 v{vFL}, s{sT0}, v7")
    a(f"v_lshrrev_b32 v8, 3, v{vLANE}")
    a("v_and_b32 v9, 2, v8")
    a("v_lshlrev_b32 v9, 1, v9")
    a(f"v_and_b32 v10, 7, v{vLANE}")
    a("v_xor_b32 v9, v9, v10")
    a("v_mul_u32_u24 v8, 896, v8")
    a("v_lshl_add_u32 v8, v9, 4, v8")
    a(f"s_lshl_b32 s{sT1}, s{sNT}, 7")
    a(f"v_add_u32 v{vW2D}, s{sT1}, v8")
    a(f"s_mul_i32 s{sM0}, s{sTT}, {RING}")
    a(f"s_add_u32 s{sM0}, s{sM0}, {L_RING}")
    a(f"v_bfe_u32 v8, v{vLANE}, 2, 2")
    a(f"v_lshrrev_b32 v9, 5, v{vLANE}")
    a("v_lshl_add_u32 v9, v9, 2, v8")
    a("v_lshlrev_b32 v9, 7, v9")
    a("v_lshrrev_b32 v8, 1, v8")
    a("v_lshl_add_u32 v9, v8, 6, v9")
    a("v_lshl_add_u32 v9, v6, 5, v9")
    a(f"v_and_b32 v8, 3, v{vLANE}")
    a("v_lshl_add_u32 v9, v8, 3, v9")
    a(f"v_add_u32 v{vW2R}, s{sM0}, v9")
    a(f"v_xor_b32 v{vW2R + 1}, 64, v{vW2R}")
    a(f"s_mul_i32 s{sT3}, s{sTT}, {28 * 16 * 896}")
    a(f"s_lshl_b32 s{sT0}, s{sI}, 2")
    a(f"s_lshl_b32 s{sT1}, s{sP}, 1")
    a(f"s_add_u32 s{sT0}, s{sT0}, s{sT1}")
    a(f"s_mul_i32 s{sHO}, s{sT0}, 112")
    a(f"s_mul_i32 s{sT1}, s{sTT}, 28")
    a(f"s_add_u32 s{sHO}, s{sHO}, s{sT1}")
    a(f"s_lshl_b32 s{sHO}, s{sHO}, 10")
    a(f"s_add_u32 s{sHO}, s{sHO}, {WS_H}")
    a(f"s_lshl_b32 s{sKMAX}, s{sT0}, 2")
    a(f"s_add_u32 s{sKMAX}, s{sKMAX}, s{sTT}")
    a(f"s_lshl_b32 s{sKMAX}, s{sKMAX}, 13")
    a(f"s_add_u32 s{sKMAX}, s{sKMAX}, {WS_O}")
    vq, lq = Q(), Q()

    def w2dma(s):
        for b in range(2):
            o.extend([f"s_add_u32 m0, s{sM0}, {(s % 12) * 2048 + b * 1024}",
                      f"s_add_u32 s{sSO}, s{sT3}, {(16 * s + 8 * b) * 896}",
                      f"buffer_load_dwordx4 v{vW2D}, {srd(sW2)}, s{sSO} offen lds"])
            vq.issue(('w', s))

    def hload(s):
        d = GH + 8 * (s % NH)
        for b in range(2):
            o.extend([f"s_add_u32 s{sSO}, s{sHO}, {(b * 112 + s) * 1024}",
                      f"buffer_load_dwordx4 {vr(d + 4 * b, 4)}, v{vL16}, {srd(sWS)}, s{sSO} offen sc1"])
            vq.issue(('h', s))
    WO0 = (16 % 12) * 2048

    def wodma(b):
        o.extend([f"s_add_u32 m0, s{sM0}, {WO0 + b * 1024}",
                  f"s_add_u32 s{sSO}, s{sT2}, {8 * b * 896}",
                  f"buffer_load_dwordx4 v{vW2D}, {srd(sWO)}, s{sSO} offen lds"])
        vq.issue(('wo', b))

    def wreads(s, aidx):
        d = FR + 8 * (s & 1) + 4 * aidx
        if s < 28:
            off = (s % 12) * 2048
        else:
            hh, sg = (s - 28) >> 1, (s - 28) & 1
            off = WO0 + (28 * hh + 16 * sg) * 128
        for t in range(2):
            o.append(f"ds_read_b64_tr_b16 {vr(d + 2 * t, 2)}, v{vW2R + aidx} offset:{off + 1024 * t}")
            lq.issue((s, aidx))

    def vwait(pred):
        k = vq.need(pred)
        if k is not None:
            o.append(f"s_waitcnt vmcnt({k})")

    def lwait(tag):
        k = lq.need(lambda t: t == tag)
        if k is not None:
            o.append(f"s_waitcnt lgkmcnt({k})")
    for s in range(12):
        w2dma(s)
    o += res_load()
    a(f"s_mul_i32 s{sT2}, s{sTT}, {112 * 896}")
    a(f"s_mul_i32 s{sT0}, s{sTT}, 3")
    a(f"s_and_b32 s{sT1}, s{sTT}, 2")
    a(f"s_add_u32 s{sT0}, s{sT0}, s{sT1}")
    a(f"s_lshl_b32 s{sMASK}, 0x000f000f, s{sT0}")
    a(f"s_mov_b32 s{sMASK + 1}, 0")
    cond = [f"v_cmp_eq_u32 vcc, 0, v6", "s_nop 0", f"s_and_b64 vcc, vcc, s[{sMASK}:{sMASK + 1}]"]
    o += poll("L_ph", 6, vFL, sWS, cond)
    vq.q = []
    o += ts(cfg, 6, True)
    for s in range(NH):
        hload(s)

    def step(s):
        d = GH + 8 * (s % NH) if s < 28 else GH + 8 * (s - 28)
        first = s == 0
        vwait(lambda t: t == ('h', s) or t == ('o', s))
        for aidx in range(2):
            lwait((s, aidx))
            w = FR + 8 * (s & 1) + 4 * aidx
            for b in range(2):
                a(mfma(A0 + 32 * aidx + 16 * b, w, d + 4 * b, first=first))
            nxt = s + 2
            if nxt < 28:
                if aidx == 0:
                    vwait(lambda t: t == ('w', nxt))
                wreads(nxt, aidx)
            elif 30 <= nxt < 36:
                wreads(nxt, aidx)
        if s + NH < 28:
            hload(s + NH)
        if s + 12 < 28:
            w2dma(s + 12)
        if 16 <= s < 24:
            for b in (2 * (s - 16), 2 * (s - 16) + 1):
                if b < 15:
                    wodma(b)
    for s in range(2):
        for aidx in range(2):
            wreads(s, aidx)
    for s in range(28):
        if s == ng1:
            o += ts(cfg, 7, True) if False else []
            a("s_barrier")
        step(s)
    if ng1 >= 28:
        a("s_barrier")
    o += ts(cfg, 8, True)
    a(f"s_lshl_b32 s{sT0}, s{sTT}, 2")
    a(f"s_lshl_b32 s{sMASK}, 0x000f000f, s{sT0}")
    a(f"v_add_u32 v{vFL}, 512, v{vFL}")
    o += poll("L_po", 6, vFL, sWS, cond)
    vq.q = []
    o += ts(cfg, 9, True)
    for s in range(28, 36):
        d = GH + 8 * (s - 28)
        for b in range(2):
            o.extend([f"s_add_u32 s{sSO}, s{sKMAX}, {b * 16 * 2048 + (s - 28) * 1024}",
                      f"buffer_load_dwordx4 {vr(d + 4 * b, 4)}, v{vL16}, {srd(sWS)}, s{sSO} offen sc1"])
            vq.issue(('o', s))
    for s in (28, 29):
        for aidx in range(2):
            wreads(s, aidx)
    a(f"v_and_b32 v8, 31, v{vLANE}")
    a(f"v_lshrrev_b32 v9, 5, v{vLANE}")
    a("v_mul_u32_u24 v8, 272, v8")
    a("v_lshl_add_u32 v8, v9, 4, v8")
    a(f"v_add_u32 v8, s{sM0}, v8")
    for s in range(28, 36):
        step(s)
    o += ts(cfg, 10, True)
    a("s_nop 7")
    for aidx in range(2):
        for b in range(2):
            if (aidx, b) == (1, 1):
                a("s_nop 3")
            for i4 in range(4):
                a(f"ds_write_b128 v8, {vr(A0 + 32 * aidx + 16 * b + 4 * i4, 4)} offset:{b * 32 * 272 + aidx * 128 + i4 * 32}")
    a("s_waitcnt lgkmcnt(0)")
    o += ts(cfg, 11, True) + ts_move(cfg)
    a("s_branch L_final")
    return o


def build(cfg):
    pro = prologue(cfg)
    aset = a_setup(cfg) + a_init_regs()
    lh, ll = loader_heavy(cfg), loader_light(cfg)
    apre = a_pre_attn(cfg)
    at0, atl, atp = attention(cfg)
    apost = a_post(cfg)
    ares = res_load()
    fin = final(cfg)
    fb = fallback(cfg)
    gf = g_front(cfg)
    gs, qp = g_stream(cfg)
    gap = g_after_pass(cfg)
    gl = g_light(cfg)
    ke, ve, pub = kv_epi(cfg)
    g2 = gemm2(cfg)
    ne = 0
    ne += len(check(pro + aset + lh + apre + at0 + atl + atl + atp + apost + ares + fin, 'A heavy'))
    ne += len(check(pro + aset + ll + apre + fb + fb[2:] + at0 + atl + atp + apost, 'A light+fallback'))
    ne += len(check(pro + gf + gs + qp + gap + g2 + fin, 'G heavy'))
    ne += len(check(pro + gf + gl + qp + gap[:2] + ke + pub + gl[-9:] + qp + gap, 'G light K'))
    iv = ke.index("s_cbranch_scc1 L_v_epi")
    ne += len(check(pro + gf + gl + qp + gap[:2] + ke[:iv + 1] + ve + pub + gl[-9:] + qp + gap, 'G light V'))
    nb = lambda l: sum(1 for x in l if x == "s_barrier")
    print("barriers A heavy", nb(lh + apre + apost + fin), "G heavy", nb(gf + gs + qp + gap + g2 + fin),
          "| A light (until B9)", nb(ll + apre), "G light", nb(gf + gl + qp + ke + pub + qp + gap))
    code = (pro + aset + [f"s_cmp_eq_u32 s{sNT}, 7", "s_cbranch_scc1 L_A_light"] + lh + ["L_A_join:"] + apre + at0 +
            [".p2align 6", "L_attn_loop:"] + atl + atp + apost + ares + fin)
    tail = (gf + gs + ["L_qpass:"] + qp + gap + g2 + ["L_A_light:"] + ll + ["s_branch L_A_join"] + gl + ke + ve + pub + fb)
    text = [f"; fused LayerNorm + MQA attention + SwiGLU + residual, generated by gen/gen.py",
            f"; @launch grid=(256,1,1) block=(512,1,1) lds={LDS_BYTES}",
            '.amdgcn_target "amdgcn-amd-amdhsa--gfx950"', ".text", f".globl {NAME}_kernel", ".p2align 8",
            f".type {NAME}_kernel,@function", f"{NAME}_kernel:"]
    text += [("    " + x if not x.endswith(':') else x) for x in code + tail]
    text += ["L_codeend:", "    s_endpgm", '.section .rodata,"a"', ".p2align 6", f".amdhsa_kernel {NAME}_kernel",
             "  .amdhsa_next_free_vgpr 256", "  .amdhsa_next_free_sgpr 102", "  .amdhsa_accum_offset 256",
             "  .amdhsa_group_segment_fixed_size 0", "  .amdhsa_kernarg_size 96", "  .amdhsa_user_sgpr_count 2",
             "  .amdhsa_user_sgpr_kernarg_segment_ptr 1", "  .amdhsa_system_sgpr_workgroup_id_x 1",
             ".end_amdhsa_kernel", ""]
    return "\n".join(text), ne


if __name__ == "__main__":
    cfg = Cfg()
    out = f"cdna_kernels/{NAME}.s"
    for arg in sys.argv[1:]:
        if arg.startswith("-o"):
            out = arg[2:]
        else:
            k, v = arg.split("=")
            setattr(cfg, k, type(getattr(cfg, k))(int(v)))
    text, ne = build(cfg)
    open(out, "w").write(text)
    print("wrote", out, "findings:", ne)
```

```python
import re

REG = re.compile(r'(?<![\w])([vsa])(\d+)(?![\w\[])|(?<![\w])([vsa])\[(\d+):(\d+)\]')
TRANS = ('v_exp_f32', 'v_log_f32', 'v_rcp_f32', 'v_rsq_f32', 'v_sqrt_f32', 'v_sin_f32', 'v_cos_f32')


def regs_of(op):
    out = []
    for m in REG.finditer(op):
        if m.group(1):
            out.append((m.group(1), int(m.group(2))))
        else:
            out += [(m.group(3), r) for r in range(int(m.group(4)), int(m.group(5)) + 1)]
    o = op.strip()
    if re.search(r'(?<![\w])vcc(_lo|_hi)?(?![\w])', o):
        out += [('s', 'vcc')]
    if re.search(r'(?<![\w])exec(_lo|_hi)?(?![\w])', o):
        out += [('s', 'exec')]
    if re.search(r'(?<![\w])m0(?![\w])', o):
        out += [('s', 'm0')]
    return out


def split_ops(rest):
    ops, depth, cur = [], 0, ''
    for ch in rest:
        if ch == '[':
            depth += 1
        if ch == ']':
            depth -= 1
        if ch == ',' and depth == 0:
            ops.append(cur.strip())
            cur = ''
        else:
            cur += ch
    if cur.strip():
        ops.append(cur.strip())
    return ops


class I:
    def __init__(self, text):
        self.text = text
        t = text.split(';')[0].strip()
        self.mn = t.split()[0] if t else ''
        rest = t[len(self.mn):].strip()
        self.ops = split_ops(rest)
        mn = self.mn
        self.kind = ('mfma' if mn.startswith('v_mfma') else 'valu' if mn.startswith('v_') else
                     'ds' if mn.startswith('ds_') else
                     'vmem' if mn.startswith(('buffer_', 'global_')) else
                     'smem' if mn.startswith(('s_load', 's_memtime', 's_memrealtime')) else
                     'salu' if mn.startswith('s_') else 'other')
        self.d, self.u = [], []
        ops = self.ops
        R = [regs_of(o) for o in ops]
        self.lds_dma = self.kind == 'vmem' and re.search(r'\blds\b', rest) is not None
        self.store = False
        if self.kind == 'mfma':
            self.d = R[0]
            self.a, self.b, self.c = R[1], R[2], R[3]
            self.u = R[1] + R[2] + R[3]
        elif self.kind == 'valu':
            if mn.startswith('v_cmp'):
                self.d = R[0]
                self.u = sum(R[1:], [])
            elif mn.startswith(('v_permlane32_swap', 'v_permlane16_swap', 'v_swap')):
                self.d = R[0] + R[1]
                self.u = R[0] + R[1]
            elif mn.startswith(('v_add_co', 'v_sub_co', 'v_addc_co')):
                self.d = R[0] + R[1]
                self.u = sum(R[2:], [])
            else:
                self.d = R[0]
                self.u = sum(R[1:], [])
                if mn.startswith(('v_fmac', 'v_dot2c', 'v_writelane')) or '_dpp' in mn or 'UNUSED_PRESERVE' in t:
                    self.u += R[0]
        elif self.kind == 'ds':
            if mn.startswith('ds_read') or 'rtn' in mn or 'permute' in mn or 'swizzle' in mn:
                self.d = R[0]
                self.u = sum(R[1:], [])
            else:
                self.u = sum(R, [])
                self.store = True
        elif self.kind == 'vmem':
            if mn.startswith(('buffer_inv', 'buffer_wbl2')):
                pass
            elif self.lds_dma:
                self.u = sum(R, []) + [('s', 'm0')]
            elif 'load' in mn:
                self.d = R[0]
                self.u = sum(R[1:], [])
            elif 'atomic' in mn and re.search(r'\bsc0\b', rest):
                self.d = R[0]
                self.u = sum(R, [])
            else:
                self.u = sum(R, [])
                self.store = True
                self.sdata = R[0] if mn.startswith('buffer_') else R[1]
        elif self.kind == 'smem':
            self.d = R[0]
            self.u = sum(R[1:], [])
        elif self.kind == 'salu':
            if mn.startswith(('s_cmp', 's_bitcmp', 's_cbranch', 's_branch', 's_waitcnt', 's_nop', 's_barrier', 's_setprio',
                              's_sleep', 's_endpgm')):
                self.u = sum(R, [])
            elif mn.startswith('s_bitset'):
                self.d = R[0]
                self.u = R[0]
            elif 'saveexec' in mn:
                self.d = R[0] + [('s', 'exec')]
                self.u = sum(R[1:], []) + [('s', 'exec')]
            else:
                self.d = R[0] if R else []
                self.u = sum(R[1:], [])
        self.states = 1
        if mn == 's_nop':
            self.states = int(ops[0], 0) + 1
        self.trans = mn.startswith(TRANS)
        self.dot = mn.startswith('v_dot')
        self.wide_store = self.kind == 'vmem' and self.store and ('x4' in mn or 'x3' in mn)


def passes(i):
    return 8 if '32x32' in i.mn else 4


def check(trace, name='', verbose=True):
    ins = []
    for t in trace:
        s = t.split(';')[0].strip()
        if not s or s.endswith(':') or s.startswith('.'):
            continue
        ins.append(I(t))
    errs = []
    pos = []
    p = 0
    for i in ins:
        pos.append(p)
        p += i.states

    def dist(a, b):
        return pos[b] - pos[a] - ins[a].states

    lastw = {}
    lastc = {}
    laststore = {}
    vm = []
    lg = []
    for n, i in enumerate(ins):
        def err(msg, j=None):
            errs.append(f"[{name}] #{n} '{i.text.strip()}': {msg}" + (f"  <- #{j} '{ins[j].text.strip()}'" if j is not None else ''))
        if i.mn == 's_waitcnt':
            m = re.search(r'vmcnt\((\d+)\)', i.text)
            if m:
                k = int(m.group(1))
                vm = vm[len(vm) - k:] if k < len(vm) else vm
                if k == 0:
                    vm = []
            m = re.search(r'lgkmcnt\((\d+)\)', i.text)
            if m:
                k = int(m.group(1))
                if k and any(ins[j].kind == 'smem' for j, _ in lg):
                    err('counted lgkmcnt with SMEM outstanding')
                lg = lg[len(lg) - k:] if k < len(lg) else lg
                if k == 0:
                    lg = []
            continue
        touched = set(i.u) | set(i.d)
        for (j, dr) in vm + lg:
            bad = touched & set(dr)
            if bad:
                err(f'touches {sorted(bad, key=str)[:3]} with load outstanding', j)
        for r in set(i.u):
            j = lastw.get(r)
            if j is None:
                continue
            w = ins[j]
            dd = dist(j, n)
            need = 0
            if r[0] in 'va':
                if w.kind == 'valu' and i.kind == 'mfma':
                    need = 2
                if w.kind == 'mfma':
                    ps = passes(w)
                    if i.kind == 'mfma':
                        if r in i.a or r in i.b:
                            need = ps + 4
                        elif w.d != i.c:
                            need = ps + 2
                    elif i.kind in ('valu', 'vmem', 'ds'):
                        need = ps + 4
                if w.kind == 'valu' and i.kind == 'valu':
                    if w.trans and not i.trans:
                        need = max(need, 1)
                    if w.dot and not (i.dot and i.mn == w.mn and r in i.d):
                        need = max(need, 3)
                    if i.mn.startswith(('v_permlane',)) or '_dpp' in i.mn:
                        need = max(need, 2)
                    if i.mn.startswith(('v_readlane', 'v_readfirstlane')):
                        need = max(need, 1)
                    if 'sdwa' in w.mn:
                        need = max(need, 1)
                if w.kind == 'valu' and w.dot and i.kind != 'valu':
                    need = max(need, 3)
            else:
                if w.kind == 'valu':
                    if i.kind == 'vmem':
                        need = 5
                    elif i.kind in ('valu', 'mfma'):
                        need = 4 if i.mn.startswith(('v_readlane', 'v_writelane')) else 2
                    elif i.kind == 'salu':
                        need = 1
                if w.kind == 'salu' and r == ('s', 'm0') and i.lds_dma:
                    need = 1
            if dd < need:
                err(f'RAW {r} needs {need} states, has {dd}', j)
        for r in set(i.d):
            j = lastw.get(r)
            if j is not None and ins[j].kind == 'mfma' and r[0] in 'va':
                dd = dist(j, n)
                ps = passes(ins[j])
                if i.kind in ('valu', 'ds', 'vmem') and dd < ps + 4:
                    err(f'WAW {r} after mfma needs {ps + 4}, has {dd}', j)
                if i.kind == 'mfma' and r not in i.c and dd < ps + 2 and ins[j].d != i.d:
                    err(f'mfma WAW {r} partial', j)
            if j is not None and ins[j].dot and i.kind == 'valu' and not (i.dot and i.mn == ins[j].mn) and dist(j, n) < 3:
                err(f'WAW {r} after dot', j)
            j = lastc.get(r)
            if j is not None and i.kind == 'valu' and dist(j, n) < passes(ins[j]) - 1:
                err(f'WAR srcC {r}', j)
            j = laststore.get(r)
            if j is not None and dist(j, n) < 2:
                err(f'WAR wide store data {r}', j)
        if i.kind == 'valu' and ('s', 'exec') in i.d:
            pass
        for r in i.d:
            lastw[r] = n
        if i.kind == 'mfma':
            for r in i.c:
                lastc[r] = n
        if i.wide_store:
            for r in i.sdata:
                laststore[r] = n
        if i.kind == 'vmem':
            vm.append((n, [] if (i.store or i.lds_dma) else i.d))
            if len(vm) > 63:
                err('more than 63 vmem outstanding')
        if i.kind in ('ds', 'smem'):
            lg.append((n, [] if i.store else i.d))
            if len(lg) > 15 and False:
                err('more than 15 lgkm outstanding')
    if verbose:
        for e in errs[:40]:
            print(e)
        print(f'check {name}: {len(ins)} instrs, {len(errs)} findings')
    return errs
```

```python
import sys, math, struct
sys.path.insert(0, __file__.rsplit('/', 1)[0])
from asmcheck import check

NAME = "parallel_sum__grouped_kv_mqa__glu_gated_swiglu__prompt"


def f2u(x):
    return struct.unpack('<I', struct.pack('<f', x))[0]


class Cfg:
    diag = False
    diag2 = False
    diag3 = False
    diag4 = False
    dbgout = -1
    rt = False
    ng1 = 17
    prefetch_code = True
    rot = True
    ft = -1
    hs0 = 223
    hsd = 2
    dyn_o = False
    nsplit = False
    o_at = 27
    pfmod = 0
    wsoff = 0
    pf_kv = True
    xd = 3
    pre_c = 8
    late_c = False
    outsc = 0
    pf_at = (0, 0, 0, 4, 3, 1, 0)
    sl_kv = 4
    sl_h = 4
    sl_o = 1
    touch = False
    caps = (12, 10, 12, 12, 12, 12, 99)
    early_w = 0
    pf_w2 = True
    thr = 16
    wait2 = True
    bal = True
    defer_h = True
    force_fallback = False


WS_KV = 0
WS_KMAX = 0x40000
WS_FLAG = 0x980000
WS_O = 0x80000
WS_H = 0x280000
WS_END = 0x9c0000
WS_DIAG = 0x1000000

LDS_BYTES_ = 163840
XT = 28672
L_R = 114688
L_WQ = 16384
L_QX = 49152
L_N2 = 57344
L_RING = 65536
RING = 24576
L_ORED = 0
L_KVC = LDS_BYTES_ - 4
LDS_BYTES = 163840


def slot_u(u, s):
    if u == 0:
        return L_R + 4096 * s if s < 12 else 4096 * (s - 12)
    if s < 12:
        return 4096 * (16 + s)
    if s < 24:
        return L_R + 4096 * (s - 12)
    return 4096 * (s - 24)


sX, sW, sQ, sWS, sW2, sWO, sOUT, sDBG, sH = 28, 32, 36, 40, 44, 48, 52, 56, 60
sPC = 64
sWV, sTT, sI, sJ, sNT, sP, sFS, sMODE = 66, 67, 68, 69, 70, 71, 72, 73
sT0, sT1, sT2, sT3 = 74, 75, 76, 77
sCNT = 78
sKMAX = 79
sMASK = 80
sTMP2 = 82
sEX = 84
sHI = 86
sTS = 88
sSO = 90
sM0 = 91
sHO = 92
sMT, sNC = 81, 82
sOO = 83
sUP = 94
sROT = 93
sRA, sRB = 4, 11


def srd(r):
    return f"s[{r}:{r + 3}]"


def vr(a, n):
    return f"v[{a}:{a + n - 1}]"


def mfma(d, a, b, first=False):
    return f"v_mfma_f32_32x32x16_bf16 {vr(d, 16)}, {vr(a, 4)}, {vr(b, 4)}, " + ("0" if first else vr(d, 16))


class Q:
    def __init__(self):
        self.q = []

    def issue(self, tag):
        self.q.append(tag)

    def need(self, pred):
        last = -1
        for k, t in enumerate(self.q):
            if pred(t):
                last = k
        if last < 0:
            return None
        n = len(self.q) - 1 - last
        self.q = self.q[last + 1:]
        return n


vLANE, vTS, vTSG = 1, 238, 31


def ts(cfg, idx, g=False):
    if not cfg.diag:
        return []
    o = [f"s_memtime s[{sTS}:{sTS + 1}]", "s_waitcnt lgkmcnt(0)", f"v_writelane_b32 v{vTSG if g else vTS}, s{sTS}, {idx}"]
    if cfg.rt and idx < 16:
        o += [f"s_memrealtime s[{sTS}:{sTS + 1}]", "s_waitcnt lgkmcnt(0)", f"v_writelane_b32 v{vTSG if g else vTS}, s{sTS}, {40 + idx}"]
    return o


def ts_move(cfg):
    return [f"v_mov_b32 v{vTS}, v{vTSG}"] if cfg.diag else []


def poll(label, vdst, voff, srdr, cond, limit=1 << 18, sleep=1):
    return ([f"s_mov_b32 s{sCNT}, {limit}", f"{label}:",
             f"buffer_load_dword v{vdst}, v{voff}, {srd(srdr)}, 0 offen sc1",
             "s_waitcnt vmcnt(0)"] + cond +
            [f"s_cbranch_scc0 {label}_ok",
             f"s_sub_u32 s{sCNT}, s{sCNT}, 1",
             f"s_cbranch_scc1 {label}_ok",
             f"s_sleep {sleep}",
             f"s_branch {label}",
             f"{label}_ok:"])


def half_sum(a, t, op="v_add_f32"):
    return [f"v_mov_b32 v{t}, v{a}", "s_nop 1", f"v_permlane32_swap_b32 v{a}, v{t}", f"{op} v{a}, v{a}, v{t}"]


def wave_max_to_sgpr(v, s):
    o = []
    for sh in (1, 2, 4, 8):
        o += ["s_nop 1", f"v_max_f32_dpp v{v}, v{v}, v{v} row_shr:{sh} row_mask:0xf bank_mask:0xf"]
    o += ["s_nop 1", f"v_max_f32_dpp v{v}, v{v}, v{v} row_bcast:15 row_mask:0xa bank_mask:0xf",
          "s_nop 1", f"v_max_f32_dpp v{v}, v{v}, v{v} row_bcast:31 row_mask:0xc bank_mask:0xf",
          "s_nop 1", f"v_readlane_b32 s{s}, v{v}, 63"]
    return o


def x_dma(L):
    o = [f"s_add_u32 m0, s{sM0}, {L * 4096}", f"s_add_u32 s{sT1}, s{sSO}, s{sT2}"]
    o += [f"buffer_load_dwordx4 v{4 + rb}, {srd(sX)}, s{sT1} offen offset:{1024 * rb} lds" for rb in range(4)]
    if L < 6:
        o += [f"s_add_u32 s{sT2}, s{sT2}, 128", f"s_cmp_eq_u32 s{sT2}, 896", f"s_cselect_b32 s{sT2}, 0, s{sT2}"]
    return o


def code_pf(cfg):
    if not cfg.prefetch_code:
        return []
    return [f"s_load_dword s{96 + k}, s[{sPC}:{sPC + 1}], {64 * k}" for k in range(2)]


def prologue(cfg):
    o = []
    a = o.append
    a("s_load_dwordx16 s[4:19], s[0:1], 0")
    a("s_load_dwordx8 s[20:27], s[0:1], 64")
    a("s_cmp_ge_u32 s2, 256")
    a("s_cbranch_scc1 L_end")
    a(f"v_and_b32 v{vLANE}, 63, v0")
    a("v_lshrrev_b32 v2, 6, v0")
    a(f"s_lshr_b32 s{sNT}, s2, 5")
    a(f"v_readfirstlane_b32 s{sWV}, v2")
    a(f"s_bfe_u32 s{sT1}, s2, 0x20003")
    a(f"s_bfe_u32 s{sI}, s2, 0x20001")
    a(f"s_lshl2_add_u32 s{sI}, s{sI}, s{sT1}")
    a(f"s_and_b32 s{sTT}, s{sWV}, 3")
    if cfg.rot:
        a(f"s_lshl1_add_u32 s{sROT}, s{sT1}, s{sNT}")
        a(f"s_cmp_ge_u32 s{sROT}, 7")
        a(f"s_cselect_b32 s{sT2}, 7, 0")
        a(f"s_sub_u32 s{sROT}, s{sROT}, s{sT2}")
    else:
        a(f"s_mov_b32 s{sROT}, 0")
    a(f"v_lshrrev_b32 v2, 3, v{vLANE}")
    a(f"v_and_b32 v5, 7, v{vLANE}")
    a("v_lshrrev_b32 v6, 1, v2")
    a("v_xor_b32 v5, v5, v6")
    a("v_mul_u32_u24 v2, 896, v2")
    a("v_lshl_add_u32 v4, v5, 4, v2")
    a("v_xor_b32 v5, 64, v4")
    a("v_add_u32 v6, 12288, v4")
    a("v_add_u32 v5, 6144, v5")
    a("v_add_u32 v7, 12288, v5")
    a(f"s_lshl2_add_u32 s{sT0}, s{sI}, s{sTT}")
    a(f"s_mul_i32 s{sSO}, s{sT0}, {32 * 896}")
    a(f"s_mul_i32 s{sM0}, s{sTT}, {XT}")
    a(f"s_lshl_b32 s{sT2}, s{sROT}, 7")
    a(f"s_mov_b32 s{sX + 2}, {2048 * 896}")
    a(f"s_mov_b32 s{sX + 3}, 0x20000")
    if cfg.prefetch_code:
        a(f"s_getpc_b64 s[{sPC}:{sPC + 1}]")
        a("L_pc:")
        a(f"s_and_b32 s{sT3}, s2, 0xf8")
        a(f"s_add_u32 s{sT3}, s{sT3}, s{sWV}")
        a(f"s_lshl_b32 s{sT3}, s{sT3}, 7")
        a(f"s_min_u32 s{sT3}, s{sT3}, L_codeend-L_pc-128")
        a(f"s_add_u32 s{sPC}, s{sPC}, s{sT3}")
        a(f"s_addc_u32 s{sPC + 1}, s{sPC + 1}, 0")
    if cfg.diag:
        a(f"v_mov_b32 v{vTS}, 0")
        a(f"v_mov_b32 v{vTSG}, 0")
        o += [f"s_memtime s[{sTS}:{sTS + 1}]"]
    a(f"s_cmp_lt_u32 s{sWV}, 4")
    a("s_waitcnt lgkmcnt(0)")
    if cfg.diag:
        a(f"v_writelane_b32 v{vTS}, s{sTS}, 0")
        a(f"v_writelane_b32 v{vTSG}, s{sTS}, 0")
        o += ts(cfg, 13) + ts(cfg, 13, True)
        o += [f"s_memrealtime s[{sTS}:{sTS + 1}]", "s_waitcnt lgkmcnt(0)", f"v_writelane_b32 v{vTS}, s{sTS}, 16", f"v_writelane_b32 v{vTSG}, s{sTS}, 16"]
    a(f"s_mov_b32 s{sX}, s4")
    a(f"s_mov_b32 s{sX + 1}, s5")
    a("s_cbranch_scc1 L_A")
    return o


def g_first(cfg):
    o = []
    for L in range(cfg.xd):
        o += x_dma(L)
    return o + code_pf(cfg)


def ids(cfg):
    o = [f"s_add_u32 s26, s26, {cfg.wsoff << 20}", "s_addc_u32 s27, s27, 0"] if cfg.wsoff else []
    o += [f"s_and_b32 s{sP}, s2, 1", f"s_lshl3_add_u32 s{sJ}, s{sP}, s{sNT}", f"s_sub_u32 s{sFS}, s{sJ}, s{sP}",
          f"s_mov_b32 s{sHI}, 0xffff0000", f"s_mov_b32 s{sUP}, 0", f"s_mov_b32 s{sUP + 1}, -1"]
    if cfg.nsplit:
        o += [f"s_lshr_b32 s{sNC}, s{sNT}, 1", f"s_lshl2_add_u32 s{sNC}, s{sP}, s{sNC}", f"s_and_b32 s{sMT}, s{sNT}, 1",
              f"s_cmp_eq_u32 s{sNT}, 6", f"s_cselect_b32 s{sNC}, 3, s{sNC}", f"s_cselect_b32 s{sMT}, s{sP}, s{sMT}"]
    else:
        o += [f"s_mov_b32 s{sNC}, s{sNT}", f"s_mov_b32 s{sMT}, s{sP}"]
    return o


def rot_table(dst, stride, add=None):
    o = [f"s_mul_i32 s{dst}, s{sROT}, {stride}"]
    for c in range(1, 7):
        o += [f"s_add_u32 s{dst + c}, s{dst + c - 1}, {stride}", f"s_cmp_eq_u32 s{dst + c}, {7 * stride}",
              f"s_cselect_b32 s{dst + c}, 0, s{dst + c}"]
    if add is not None:
        o += [f"s_add_u32 s{dst + c}, s{dst + c}, s{add}" for c in range(7)]
    return o


def rest_srds(cfg):
    def mk(r, lo, size):
        return [f"s_mov_b32 s{r}, s{lo}", f"s_mov_b32 s{r + 1}, s{lo + 1}", f"s_mov_b32 s{r + 2}, {size}",
                f"s_mov_b32 s{r + 3}, 0x20000"]
    o = []
    o += mk(sWS, 26, WS_END if not cfg.diag else WS_DIAG + (1 << 20))
    o += mk(sOUT, 22, 2048 * 896)
    o += mk(sDBG, 24, 256)
    return o


A0, A4 = 64, 32
XC = 128
FR = 240
vWR = 2
vMEAN, vC, vK1, vRSTD, vKQ, vKQ2 = 8, 9, 10, 11, 12, 13
vT = 14
vHQ = 20
vQR, vL16, vONE = 28, 29, 30


def stream():
    st = []
    for s in range(28):
        for q in range(4):
            st.append(dict(acc=A0 + 16 * q, s=s, kind='W', u=0, q=q))
    for half, base in ((0, A4), (1, A0)):
        for s in range(28):
            for q in range(2):
                st.append(dict(acc=base + 16 * q, s=s, kind='W', u=1, q=2 * half + q))
    for s in range(28):
        st.append(dict(acc=A0 + 32, s=s, kind='Q'))
    return st


BARRIERS = [12, 44, 76, 108, 132, 156]


def center_reg(r, t):
    return [f"v_lshlrev_b32 v{t}, 16, v{r}", f"v_and_b32 v{t + 1}, s{sHI}, v{r}",
            f"v_sub_f32 v{t}, v{t}, v{vMEAN}", f"v_sub_f32 v{t + 1}, v{t + 1}, v{vMEAN}",
            f"v_cvt_pk_bf16_f32 v{r}, v{t}, v{t + 1}"]


def h_store(quad, ks_off):
    r = sT0 if ks_off >= 6 else sT1
    return [f"s_add_u32 s{r}, s{sHO}, {ks_off * 1024}",
            f"buffer_store_dwordx4 {vr(quad, 4)}, v{vL16}, {srd(sH)}, s{r} offen sc1"]


def silu_tile(acc, quad, ks_off, store=True):
    def stage(r):
        t = vT + (r % 3)
        return [[f"v_mul_f32 v{t}, v{acc + r}, v{vK1}"],
                [f"v_exp_f32 v{t}, v{t}"],
                [f"v_mul_f32 v{acc + r}, v{acc + r}, v{acc + 8 + r}"],
                [f"v_fma_f32 v{t}, v{t}, v{vC}, v{vC}"],
                [f"v_rcp_f32 v{t}, v{t}"],
                [f"v_mul_f32 v{acc + r}, v{acc + r}, v{t}"]]
    o = []
    prev_last = None
    for r in range(8):
        sg = stage(r)
        o += sg[0]
        if prev_last:
            o += prev_last
            if r % 2 == 0:
                o.append(f"v_cvt_pk_bf16_f32 v{quad + r // 2 - 1}, v{acc + r - 2}, v{acc + r - 1}")
        o += sg[1] + sg[2] + sg[3] + sg[4]
        prev_last = sg[5]
    o += [h_store(quad, ks_off)[0] if store else "s_nop 0"] + prev_last
    o.append(f"v_cvt_pk_bf16_f32 v{quad + 3}, v{acc + 6}, v{acc + 7}")
    if store:
        o.append(h_store(quad, ks_off)[1])
    return o


def frag_reads(e, buf, wbase):
    o = []
    d = FR + 4 * buf
    if e['kind'] == 'Q':
        off = e['s'] * 1024
        return [f"ds_read_b64_tr_b16 {vr(d, 2)}, v{vQR} offset:{off}",
                f"ds_read_b64_tr_b16 {vr(d + 2, 2)}, v{vQR} offset:{off + 256}"]
    q = e['q']
    sl = slot_u(e['u'], e['s'])
    if not (wbase[q] <= sl and sl + 512 - wbase[q] <= 65535):
        nb = 0 if sl < 65536 else (65536 if sl < L_R else L_R)
        delta = nb - wbase[q]
        o.append(f"v_add_u32 v{vWR + q}, {delta & 0xffffffff:#x}, v{vWR + q}")
        wbase[q] = nb
    off = sl - wbase[q]
    o += [f"ds_read_b64_tr_b16 {vr(d, 2)}, v{vWR + q} offset:{off}",
          f"ds_read_b64_tr_b16 {vr(d + 2, 2)}, v{vWR + q} offset:{off + 512}"]
    return o


def g_stream(cfg):
    st = stream()
    N = len(st)
    wbase = [L_R] * 4
    lq = Q()
    pre = []
    for n in range(4):
        pre += frag_reads(st[n], n, wbase)
        lq.issue(n), lq.issue(n)
    fill = {}

    def spread(ops, g0, g1):
        k = g1 - g0 + 1
        for x, op in enumerate(ops):
            fill.setdefault(g0 + x * k // len(ops), []).append(op)
    todo = list(range(cfg.pre_c, 112))
    g0 = 0 if not cfg.late_c else max(0, cfg.pre_c - 5)
    for x, r in enumerate(todo):
        g = g0 + x if cfg.late_c else x * 107 // max(len(todo), 1)
        assert g <= 4 * (r // 4) - 2, (r, g)
        fill.setdefault(g, []).extend(center_reg(XC + r, vT + 2 * (x & 1)))
    tiles = [(A0 + 16 * q, q) for q in range(4)] + [(A4 + 16 * q, 4 + q) for q in range(2)]
    cut = 3 if cfg.bal else 4
    e0, e1 = [], []
    late = []
    for x, (ac, ks) in enumerate(tiles):
        quad = vHQ + 4 * (x & 1)
        if cfg.defer_h:
            quad = vHQ + 4 * x if x < 2 else ac + 8
            late += h_store(quad, ks)
        (e0 if x < cut else e1).extend(silu_tile(ac, quad, ks, store=not cfg.defer_h))
    spread(e0, 114, 166)
    spread(e1, 168 if cfg.bal else 172, 222)
    e2 = []
    for q in range(2):
        e2 += silu_tile(A0 + 16 * q, A0 + 16 * q + 8 if cfg.defer_h else vHQ + 4 * (q & 1), 6 + q)
    spread(e2, 227, 251)
    ready = {}
    for g in sorted(fill):
        for op in fill[g]:
            for x in range(len(late) // 2):
                q4 = int(late[2 * x + 1].split('[')[1].split(':')[0])
                if op.startswith(f"v_cvt_pk_bf16_f32 v{q4 + 3},") and g < 224:
                    ready[x] = g + 1
    g = cfg.hs0
    for x in ([2, 0, 1, 3, 4, 5] if late else []):
        g = max(g, ready[x])
        if x == 2:
            g = min(g, 223)
        fill.setdefault(g, []).extend(late[2 * x:2 * x + 2])
        g += cfg.hsd
    body, qp = pre, []
    cur = body
    for n, e in enumerate(st):
        if n == 224:
            cur = qp
        if cfg.wait2 and n % 2 == 0:
            k = lq.need(lambda t: t in (n, n + 1))
        else:
            k = lq.need(lambda t: t == n)
        if k is not None:
            cur.append(f"s_waitcnt lgkmcnt({k})")
        cur.append(mfma(e['acc'], FR + 4 * (n & 3), XC + 4 * e['s'], first=(e['s'] == 0)))
        if n in BARRIERS:
            bi = BARRIERS.index(n)
            cur += (ts(cfg, 18 + 2 * bi, True) if cfg.diag2 else []) + ["s_barrier"] + (ts(cfg, 19 + 2 * bi, True) if cfg.diag2 else [])
        if n in (111, 167) and cfg.diag2:
            cur += ts(cfg, 32 if n == 111 else 33, True)
        if n + 4 < N:
            cur += frag_reads(st[n + 4], n & 3, wbase)
            lq.issue(n + 4), lq.issue(n + 4)
        cur += fill.get(n, [])
        if n == 223:
            cur += (ts(cfg, 30, True) if cfg.diag2 else []) + ["s_barrier"] + (ts(cfg, 31, True) if cfg.diag2 else [])
    return body, qp


sPFW, sPFO = 18, 19


PFMOD = ['']


def pf_setup(cfg):
    o = [f"s_lshr_b32 s{sT0}, s2, 1", f"s_and_b32 s{sT0}, s{sT0}, 0x7c", f"s_add_u32 s{sT0}, s{sT0}, s{sWV}",
         f"s_mul_i32 s{sPFW}, s{sT0}, {14 * 896}", f"v_lshlrev_b32 v9, 7, v{vLANE}"]
    if cfg.nsplit:
        o += [f"s_mul_i32 s{sPFO}, s{sT0}, 7", f"s_lshr_b32 s{sPFO}, s{sPFO}, 1", f"s_mul_i32 s{sPFO}, s{sPFO}, 896",
              f"v_lshrrev_b32 v14, 2, v{vLANE}", "v_mul_u32_u24 v14, 896, v14", f"v_and_b32 v15, 3, v{vLANE}",
              "v_lshl_add_u32 v14, v15, 7, v14", f"s_mul_i32 s{sT0}, s{sP}, 384", f"v_add_u32 v14, s{sT0}, v14"]
    else:
        o += [f"s_mul_i32 s{sPFO}, s{sT0}, {3584 - 448}", f"s_and_b32 s{sPFO}, s{sPFO}, 0xffffff80"]
    return o


def pf_w2(cfg, part, n=1):
    o = []
    nw = max(0, min(part + n, 7) - part)
    per, va = (8, 14) if cfg.nsplit else (14, 9)
    if nw:
        mask = (1 << (per * nw)) - 1
        assert per * nw <= 64
        o += [f"s_mov_b32 exec_lo, {mask & 0xffffffff:#x}", f"s_mov_b32 exec_hi, {mask >> 32:#x}",
              f"s_add_u32 s{sT1}, s{sPFW}, {2 * 896 * part}",
              f"buffer_load_dword v{228 + part}, v{va}, {srd(sW2)}, s{sT1} offen {PFMOD[0]}"]
    if part <= 7 < part + n:
        o += [f"s_mov_b64 exec, {0xffff if cfg.nsplit else 0x3ffffff:#x}",
              f"buffer_load_dword v235, v{va}, {srd(sWO)}, s{sPFO} offen {PFMOD[0]}"]
    if o:
        o.append("s_mov_b64 exec, -1")
    return o


def first_touch():
    o = []
    for wv, r, nl, stride, add in ((0, sW2, 25, 6272, 0), (1, sWO, 14, 1568, 0), (2, sQ, 14, 1568, 0), (3, sW2, 25, 6272, 3072)):
        o += [f"s_cmp_lg_u32 s{sWV}, {wv}", f"s_cbranch_scc1 L_ft{wv}_@",
              f"s_mul_i32 s{sT1}, s2, {stride}", f"s_and_b32 s{sT1}, s{sT1}, 0xffffff80",
              f"s_mov_b64 exec, {(1 << nl) - 1:#x}",
              f"buffer_load_dword v{244 + wv}, v9, {srd(r)}, s{sT1} offen offset:{add}", "s_mov_b64 exec, -1", f"L_ft{wv}_@:"]
    return o


def loader_heavy(cfg):
    st = stream()
    first_read, last_use = {}, {}
    for n, e in enumerate(st):
        key = (e['u'], e['s']) if e['kind'] == 'W' else ('Q', e['s'])
        first_read.setdefault(key, n - 4)
        last_use[key] = n
    fills = [(0, s) for s in range(28)] + [(1, s) for s in range(28)] + [('Q', m) for m in range(7)]

    def target(f):
        return slot_u(*f) if f[0] != 'Q' else L_WQ + 4096 * f[1]
    prev_owner = {}
    for s in range(28):
        prev_owner[slot_u(0, s)] = (0, s)
    o = []
    vq = Q()
    issued = set()

    def issue(f):
        if f[0] == 'Q':
            m = f[1]
            o.extend([f"s_add_u32 m0, s{sT2}, {L_WQ + 4096 * m}", "s_nop 0",
                      f"buffer_load_dwordx4 v3, {srd(sQ)}, s{sRB + m} offen lds"])
        else:
            u, s = f
            o.extend([f"s_add_u32 m0, s{sM0}, {slot_u(u, s)}", f"s_add_u32 s{sSO}, s{sRA + (s >> 2)}, {(s & 3) * 16 * 3584 + u * 128}",
                      f"buffer_load_dwordx4 v2, {srd(sW)}, s{sSO} offen lds"])
        vq.issue(f)
        issued.add(f)

    def needed_before(nb):
        out = []
        for f in fills:
            keys = [f] if f[0] != 'Q' else [('Q', 4 * f[1] + x) for x in range(4)]
            if min(first_read[k] for k in keys) < nb:
                out.append(f)
        return out

    def wait_for(fs):
        for f in fs:
            assert f in issued, f
        k = vq.need(lambda t: t in fs)
        if k is not None:
            o.append(f"s_waitcnt vmcnt({k})")
    o += rot_table(sRA, 64 * 3584)
    for s in range(cfg.early_w):
        issue((0, s))
    o += code_pf(cfg)
    o += rot_table(sRB, 64 * 896, sT3) + a_init_regs() + pf_setup(cfg)
    o.append("s_barrier")
    for s in range(cfg.early_w, 12):
        issue((0, s))
    pts = BARRIERS + [223]
    o.append("s_barrier")
    wait_for(needed_before(pts[0]))
    o.append("s_barrier")
    done_upto = -1
    flags = set()
    for bi in range(len(pts)):
        cnt = 0
        for f in fills:
            if f in issued:
                continue
            t = target(f)
            own = prev_owner.get(t)
            if (own == f or own is None or last_use[own] <= done_upto) and cnt < cfg.caps[bi]:
                issue(f)
                cnt += 1
            else:
                break
        if cfg.ft == bi:
            o.extend([x.replace('@', 'h') for x in first_touch()])
            vq.issue('ft')
        pf = pf_w2(cfg, sum(cfg.pf_at[:bi]), cfg.pf_at[bi]) if cfg.pf_w2 else []
        o.extend(pf)
        for x in pf:
            if x.startswith("buffer_load"):
                vq.issue('pf')
        nxt = pts[bi + 1] if bi + 1 < len(pts) else 10 ** 9
        if cfg.diag4:
            o.extend(ts(cfg, 18 + 2 * bi))
        wait_for(needed_before(nxt))
        if cfg.diag4:
            o.extend(ts(cfg, 19 + 2 * bi))
        if bi == len(pts) - 1:
            break
        o.append("s_barrier")
        done_upto = pts[bi]
    assert len(issued) == len(fills)
    o += o_sentinel() + res_load()
    if cfg.diag4:
        o += ts(cfg, 32) + ["s_waitcnt vmcnt(3)"] + ts(cfg, 33) + ["s_waitcnt vmcnt(1)"] + ts(cfg, 34) + ["s_waitcnt vmcnt(0)"] + ts(cfg, 35)
    return o


def a_setup(cfg):
    o = []
    a = o.append
    o += ids(cfg)
    if cfg.touch:
        for wv, items in enumerate((((26, 0), (26, 0x200000), (26, 0x400000)), ((26, 0x600000), (26, 0x800000), (22, 0)),
                                    ((20, 0), (12, 0), (6, 0)), ((24, 0), (16, 0), (18, 0)))):
            a(f"s_cmp_lg_u32 s{sWV}, {wv}")
            a(f"s_cbranch_scc1 L_touch{wv}")
            for k, (p, off) in enumerate(items):
                if off:
                    a(f"s_mov_b32 s{sT0}, {off}")
                    a(f"s_load_dword s{100 + (k & 1)}, s[{p}:{p + 1}], s{sT0}")
                else:
                    a(f"s_load_dword s{100 + (k & 1)}, s[{p}:{p + 1}], 0")
            a(f"L_touch{wv}:")
    a(f"s_bitcmp1_b32 s{sWV}, 0")
    a(f"s_cselect_b32 s{sW}, s18, s16")
    a(f"s_cselect_b32 s{sW + 1}, s19, s17")
    a(f"s_mov_b32 s{sW + 2}, {448 * 3584}")
    a(f"s_mov_b32 s{sW + 3}, 0x20000")
    a(f"s_mov_b32 s{sQ}, s6")
    a(f"s_mov_b32 s{sQ + 1}, s7")
    a(f"s_mov_b32 s{sQ + 2}, {448 * 896}")
    a(f"s_mov_b32 s{sQ + 3}, 0x20000")
    o += rest_srds(cfg)
    for r, lo, size in ((sW2, 20, 1792 * 896), (sWO, 12, 448 * 896)):
        o += [f"s_mov_b32 s{r}, s{lo}", f"s_mov_b32 s{r + 1}, s{lo + 1}", f"s_mov_b32 s{r + 2}, {size}",
              f"s_mov_b32 s{r + 3}, 0x20000"]
    a(f"v_lshrrev_b32 v4, 3, v{vLANE}")
    a(f"s_lshr_b32 s{sT0}, s{sWV}, 1")
    a(f"s_and_b32 s{sT1}, s{sWV}, 1")
    a(f"s_lshl_b32 s{sM0}, s{sWV}, 10")
    a("v_and_b32 v5, 2, v4")
    a(f"s_lshl_b32 s{sT1}, s{sT1}, 2")
    a(f"v_or_b32 v5, s{sT1}, v5")
    a(f"v_and_b32 v6, 7, v{vLANE}")
    a("v_xor_b32 v5, v5, v6")
    a(f"s_mul_i32 s{sT0}, s{sT0}, {8 * 3584}")
    a(f"s_lshl_b32 s{sT1}, s{sFS}, 8")
    a(f"s_add_u32 s{sT0}, s{sT0}, s{sT1}")
    a("v_mul_u32_u24 v4, 3584, v4")
    a("v_lshl_add_u32 v2, v5, 4, v4")
    a(f"v_add_u32 v2, s{sT0}, v2")
    a(f"v_lshrrev_b32 v4, 2, v{vLANE}")
    a(f"v_and_b32 v5, 3, v{vLANE}")
    a("v_lshlrev_b32 v5, 4, v5")
    a("v_mad_u32_u24 v7, v4, 56, v5")
    a("v_mul_u32_u24 v4, 896, v4")
    a(f"s_mul_i32 s{sT0}, s{sJ}, 56")
    a(f"v_add3_u32 v3, v4, v5, s{sT0}")
    a(f"s_lshl_b32 s{sT2}, s{sWV}, 10")
    a(f"s_mul_i32 s{sT3}, s{sWV}, {16 * 896}")
    return o


AS0, AS1, AP, AO, AQ, AK, AV = 16, 32, 48, 64, 128, 160, 176
vA16, vKVO = 8, 9


def a_init_regs():
    o = [f"v_mov_b32 v{r}, 0" for r in list(range(AO, AO + 64)) + list(range(AP, AP + 8)) + [AS1 + 14, AS1 + 15] +
         list(range(AV + 8, AV + 16))]
    o.append(f"v_lshlrev_b32 v{vA16}, 4, v{vLANE}")
    o.append("v_mov_b32 v56, 0")
    return o


vOW = 224


def o_sentinel():
    o = []
    a = o.append
    a(f"s_lshl_b32 s{sT0}, s{sI}, 2")
    a(f"s_add_u32 s{sT0}, s{sT0}, s{sWV}")
    a(f"s_lshl_b32 s{sOO}, s{sT0}, 4")
    a(f"s_add_u32 s{sOO}, s{sOO}, s{sJ}")
    a(f"s_lshl_b32 s{sOO}, s{sOO}, 11")
    a(f"s_add_u32 s{sOO}, s{sOO}, {WS_O}")
    for r in range(4):
        a(f"v_mov_b32 v{240 + r}, -1")
    for u in range(2):
        a(f"buffer_store_dwordx4 {vr(240, 4)}, v{vA16}, {srd(sWS)}, s{sOO} offen offset:{1024 * u} sc1")
    return o


def loader_light(cfg):
    o = []
    a = o.append
    a(f"s_cmp_eq_u32 s{sP}, 0")
    a(f"s_cselect_b32 s{sW}, s8, s10")
    a(f"s_cselect_b32 s{sW + 1}, s9, s11")
    a(f"s_mov_b32 s{sW + 2}, {448 * 56}")
    a(f"s_mul_i32 s{sT1}, s{sWV}, 896")
    o += rot_table(sRA, 64 * 56, sT1)
    for m in range(7):
        a(f"s_add_u32 m0, s{sT2}, {L_R + 4096 * m}")
        a("s_nop 0")
        a(f"buffer_load_dwordx4 v7, {srd(sW)}, s{sRA + m} offen lds")
    o += code_pf(cfg)
    o += rot_table(sRB, 64 * 896, sT3) + a_init_regs() + pf_setup(cfg)
    a("s_barrier")
    a(f"s_cmp_lg_u32 s{sWV}, 0")
    a("s_cbranch_scc1 L_noclr")
    a(f"s_lshl_b32 s{sT0}, s{sI}, 14")
    a(f"s_lshl_b32 s{sT1}, s{sP}, 13")
    a(f"s_add_u32 s{sT0}, s{sT0}, s{sT1}")
    a(f"s_add_u32 s{sT0}, s{sT0}, {WS_FLAG}")
    a(f"v_lshlrev_b32 v4, 7, v{vLANE}")
    a(f"buffer_store_dword v{AP}, v4, {srd(sWS)}, s{sT0} offen sc1")
    a(f"v_mov_b32 v4, {L_KVC}")
    a(f"ds_write_b32 v4, v{AP}")
    a("L_noclr:")
    o += o_sentinel()
    a("s_barrier")
    a("s_waitcnt vmcnt(0) lgkmcnt(0)")
    a("s_barrier")
    a("s_barrier")
    for m in range(7):
        a(f"s_add_u32 m0, s{sT2}, {L_WQ + 4096 * m}")
        a("s_nop 0")
        a(f"buffer_load_dwordx4 v3, {srd(sQ)}, s{sRB + m} offen lds")
    if cfg.ft >= 0:
        o += [x.replace('@', 'l') for x in first_touch()] + ["s_waitcnt vmcnt(0)"]
    if cfg.pf_w2:
        o += pf_w2(cfg, 0, 4)
    a(f"s_waitcnt vmcnt({1 if cfg.pf_w2 else 0})")
    if cfg.pf_w2:
        o += pf_w2(cfg, 4, 4)
    a("s_barrier")
    return o


def kv_load(kind, buf, rel):
    base = (AK if kind == 'K' else AV) + 8 * buf
    off = 0 if kind == 'K' else 2048
    return [f"buffer_load_dwordx4 {vr(base + 4 * u, 4)}, v{vA16}, {srd(sWS)}, s{rel} offen offset:{off + 1024 * u} sc1"
            for u in range(2)]


THRESH = 96.0 * 96.0 / 1.02


def a_pre_attn(cfg):
    o = []
    a = o.append
    o += ts(cfg, 1)
    a("v_mov_b32 v4, 128")
    o += poll("L_pkv", 5, 4, sDBG, ["v_cmp_eq_u32 vcc, 0, v5", "s_nop 0", "s_cmp_lg_u64 vcc, 0"], sleep=cfg.sl_kv)
    o += ts(cfg, 2)
    a(f"v_lshlrev_b32 v4, 2, v{vLANE}")
    a(f"s_mov_b32 s{sT0}, {WS_KMAX}")
    a(f"buffer_load_dword v5, v4, {srd(sWS)}, s{sT0} offen sc1")
    a(f"s_lshl_b32 s{sSO}, s{sWV}, 16")
    a(f"s_add_u32 s{sT0}, s{sSO}, 4096")
    o += kv_load('K', 0, sSO) + kv_load('V', 0, sSO) + kv_load('K', 1, sT0)
    npf = 0
    if cfg.pf_kv:
        a(f"s_lshr_b32 s{sT0}, s2, 1")
        a(f"s_and_b32 s{sT0}, s{sT0}, 0x7c")
        a(f"s_add_u32 s{sT0}, s{sT0}, s{sWV}")
        a(f"s_lshl_b32 s{sT0}, s{sT0}, 11")
        a("s_mov_b64 exec, 0xffff")
        a(f"buffer_load_dword v236, v9, {srd(sWS)}, s{sT0} offen sc1")
        a("s_mov_b64 exec, -1")
        npf = 1
    for sg in range(4):
        a(f"s_add_u32 s{sT0}, s{sWV}, {1 + sg}")
        a(f"s_and_b32 s{sT0}, s{sT0}, 3")
        a(f"s_lshl_b32 s{sT0}, s{sT0}, 11")
        a(f"s_add_u32 s{sT0}, s{sT0}, {L_QX}")
        a(f"v_add_u32 v{10 + sg}, s{sT0}, v{vA16}")
    for sg in range(4):
        a(f"s_add_u32 s{sT0}, s{sWV}, {1 + sg}")
        a(f"s_and_b32 s{sT0}, s{sT0}, 3")
        a(f"s_mul_i32 s{sT0}, s{sT0}, 12288")
        a(f"v_add_u32 v{vOW + sg}, s{sT0}, v{vA16}")
    a(f"v_lshrrev_b32 v6, 5, v{vLANE}")
    a(f"v_and_b32 v7, 31, v{vLANE}")
    a("v_lshlrev_b32 v7, 2, v7")
    a("v_lshl_add_u32 v6, v6, 8, v7")
    a(f"s_waitcnt vmcnt({6 + npf}) lgkmcnt(0)")
    o += wave_max_to_sgpr(5, sKMAX)
    o += ts(cfg, 3)
    a(f"s_cmp_eq_u32 s{sNT}, 7")
    a("s_cbranch_scc1 L_A_b9")
    a("s_barrier")
    a("L_A_b9:")
    a("s_barrier")
    o += ts(cfg, 4)
    a(f"ds_read_b32 v4, v6 offset:{L_N2}")
    a(f"ds_read_b32 v5, v6 offset:{L_N2 + 512}")
    for sg in range(4):
        a(f"ds_read_b128 {vr(AQ + 8 * sg, 4)}, v{10 + sg}")
        a(f"ds_read_b128 {vr(AQ + 8 * sg + 4, 4)}, v{10 + sg} offset:1024")
    a("s_waitcnt lgkmcnt(8)")
    a("v_max_f32 v4, v4, v5")
    a(f"v_mul_f32 v4, s{sKMAX}, v4")
    a(f"v_cmp_nge_f32 vcc, {f2u(-1.0 if cfg.force_fallback else THRESH):#x}, v4")
    a("s_waitcnt lgkmcnt(0)")
    a("s_cbranch_vccnz L_fallback")
    a("L_attn:")
    return o


def fallback(cfg):
    o = ["L_fallback:", "s_waitcnt vmcnt(0)"]
    a = o.append
    M = 192
    KB = 200
    for sg in range(4):
        a(f"v_mov_b32 v{M + sg}, 0xff800000")
    a(f"s_mov_b32 s{sT0}, 0")
    a("L_fb_loop:")
    for u in range(2):
        a(f"buffer_load_dwordx4 {vr(KB + 4 * u, 4)}, v{vA16}, {srd(sWS)}, s{sT0} offen offset:{1024 * u} sc1")
    a("s_waitcnt vmcnt(0)")
    for sg in range(4):
        a(mfma(AS0, KB, AQ + 8 * sg, first=True))
        a(mfma(AS0, KB + 4, AQ + 8 * sg + 4))
        a("s_nop 11")
        for r in range(0, 16, 2):
            a(f"v_max3_f32 v{M + sg}, v{M + sg}, v{AS0 + r}, v{AS0 + r + 1}")
    a(f"s_add_u32 s{sT0}, s{sT0}, 4096")
    a(f"s_cmp_lt_u32 s{sT0}, {64 * 4096}")
    a("s_cbranch_scc1 L_fb_loop")
    for sg in range(4):
        o += half_sum(M + sg, 4, "v_max_f32")
        a(f"v_cvt_pk_bf16_f32 v4, -v{M + sg}, -v{M + sg}")
        a("v_lshlrev_b32 v4, 16, v4")
        a(f"v_sub_f32 v4, -v{M + sg}, v4")
        a(f"v_cvt_pk_bf16_f32 v4, -v{M + sg}, v4")
        a(f"v_cndmask_b32 v{AQ + 8 * sg + 6}, v{AQ + 8 * sg + 6}, v4, s[{sUP}:{sUP + 1}]")
    a("s_nop 1")
    a("s_branch L_attn")
    return o


def o_writes(sg):
    return [f"ds_write_b128 v{vOW + sg}, {vr(AO + 16 * sg + 4 * u, 4)} offset:{L_ORED + sg * 4096 + u * 1024}" for u in range(4)]


def attn_block(n, last=False, peel=False):
    X, Y = (AS0, AS1) if n % 2 == 0 else (AS1, AS0)
    q, qn, qp = n & 3, (n + 1) & 3, (n - 1) & 3
    kb = AK + 8 * (((n + 1) >> 2) & 1)
    vb = AV + 8 * (((n - 1) >> 2) & 1)
    E = lambda i: f"v_exp_f32 v{X + i}, v{X + i}"
    C = lambda i: f"v_cvt_pk_bf16_f32 v{AP + i}, v{X + 2 * i}, v{X + 2 * i + 1}"
    Cp7 = f"v_cvt_pk_bf16_f32 v{AP + 7}, v{Y + 14}, v{Y + 15}"
    QK0, QK1 = mfma(Y, kb, AQ + 8 * qn, first=True), mfma(Y, kb + 4, AQ + 8 * qn + 4)
    PV0, PV1 = mfma(AO + 16 * qp, vb, AP), mfma(AO + 16 * qp, vb + 4, AP + 4)
    if last:
        return [Cp7, PV0, "s_nop 0", PV1]
    if peel and n == 7:
        W = o_writes(1)
        return ([Cp7, E(0), E(1), PV0, E(2), E(3), E(4), PV1, E(5), W[0], E(6), C(0), E(7), W[1], E(8), C(1), E(9), W[2],
                 E(10), C(2), E(11), W[3], E(12), C(3), E(13), C(4), E(14), C(5), E(15), C(6)])
    o = [Cp7]
    if q == 3:
        o.append("s_waitcnt vmcnt(2)")
    o += [QK0, E(0), E(1), E(2), QK1]
    o += [E(3), E(4), E(5)]
    if q == 1:
        o.append("s_waitcnt vmcnt(0)" if peel and n == 5 else "s_waitcnt vmcnt(4)")
    o += [PV0, E(6), E(7), E(8), PV1]
    if q == 0 and not (peel and n == 4):
        o += kv_load('V', ((n >> 2) + 1) & 1, sT1)
    if q == 3 and not peel:
        o += [f"s_add_u32 s{sT1}, s{sT1}, 4096"] + kv_load('K', (n >> 2) & 1, sT1)
    tail = [E(9), C(0), E(10), C(1), E(11), C(2), E(12), C(3), E(13), C(4), E(14), C(5), E(15), C(6)]
    if peel and n == 6:
        W = o_writes(0)
        tail = tail[:2] + [W[0]] + tail[2:5] + [W[1]] + tail[5:8] + [W[2]] + tail[8:11] + [W[3]] + tail[11:]
    return o + tail


def attention(cfg):
    o = [f"s_waitcnt vmcnt({5 if cfg.pf_kv else 4})",
         mfma(AS0, AK, AQ, first=True), mfma(AS0, AK + 4, AQ + 4),
         f"s_add_u32 s{sT1}, s{sSO}, 4096",
         f"s_mov_b32 s{sCNT}, 7",
         "s_nop 9"]
    loop = []
    for n in range(8):
        loop += attn_block(n)
    loop += [f"s_sub_u32 s{sCNT}, s{sCNT}, 1", f"s_cmp_lg_u32 s{sCNT}, 0", "s_cbranch_scc1 L_attn_loop"]
    post = []
    for n in range(8):
        post += attn_block(n, peel=True)
    post += attn_block(8, last=True) + o_writes(2)
    return o, loop, post


def a_post(cfg):
    o = []
    a = o.append
    a("s_waitcnt lgkmcnt(0)")
    o += ts(cfg, 5)
    a("s_barrier")
    o += ts(cfg, 6)
    R = 128
    for x in range(12):
        a(f"ds_read_b128 {vr(R + 4 * x, 4)}, v{vOW + 3} offset:{L_ORED + x * 1024}")
    O = AO + 48
    order = [3, 0, 1, 2]
    lq = Q()
    o = o[:len(o) - 12]
    a = o.append
    for u in order:
        for sg in range(3):
            a(f"ds_read_b128 {vr(R + 16 * sg + 4 * u, 4)}, v{vOW + 3} offset:{L_ORED + (4 * sg + u) * 1024}")
            lq.issue((sg, u))
    for u in order:
        a(f"s_waitcnt lgkmcnt({lq.need(lambda t: t == (1, u))})")
        for r in range(4):
            a(f"v_add_f32 v{R + 4 * u + r}, v{R + 4 * u + r}, v{R + 16 + 4 * u + r}")
        a(f"s_waitcnt lgkmcnt({lq.need(lambda t: t == (2, u))})")
        for r in range(4):
            a(f"v_add_f32 v{O + 4 * u + r}, v{O + 4 * u + r}, v{R + 32 + 4 * u + r}")
        for r in range(4):
            a(f"v_add_f32 v{O + 4 * u + r}, v{O + 4 * u + r}, v{R + 4 * u + r}")
        if u == 3:
            a(f"v_mov_b32 v4, v{O + 12}")
            a(f"v_mov_b32 v5, v{O + 12}")
            a("s_nop 1")
            a("v_permlane32_swap_b32 v4, v5")
            a("v_rcp_f32 v5, v5")
            a("s_nop 0")
            a(f"v_cndmask_b32 v4, v5, 0, s[{sUP}:{sUP + 1}]")
        for r in range(4):
            a(f"v_mul_f32 v{O + 4 * u + r}, v{O + 4 * u + r}, v{5 if u < 3 else 4}")
        for r in range(2):
            a(f"v_cvt_pk_bf16_f32 v{AP + 2 * u + r}, v{O + 4 * u + 2 * r}, v{O + 4 * u + 2 * r + 1}")
        if u in (1, 2):
            b = u - 1
            a(f"buffer_store_dwordx4 {vr(AP + 4 * b, 4)}, v{vA16}, {srd(sWS)}, s{sOO} offen offset:{1024 * b} sc1")
    o += ts(cfg, 7)
    a(f"s_cmp_eq_u32 s{sNT}, 7")
    a("s_cbranch_scc1 L_fin")
    return o


vXRES = 60


def res_load():
    o = []
    a = o.append
    a(f"v_lshrrev_b32 v57, 3, v{vLANE}")
    a(f"v_and_b32 v58, 7, v{vLANE}")
    a("v_mul_u32_u24 v56, 896, v57")
    a("v_lshl_add_u32 v56, v58, 4, v56")
    a(f"s_lshl_b32 s{sT0}, s{sI}, 7")
    a(f"s_lshl_b32 s{sT1}, s{sMT}, 6")
    a(f"s_add_u32 s{sT0}, s{sT0}, s{sT1}")
    a(f"s_lshl_b32 s{sT1}, s{sWV}, 3")
    a(f"s_add_u32 s{sT0}, s{sT0}, s{sT1}")
    a(f"s_mul_i32 s{sT0}, s{sT0}, 896")
    a(f"s_lshl_b32 s{sT2}, s{sNC}, 7")
    a(f"s_add_u32 s{sT0}, s{sT0}, s{sT2}")
    a(f"v_add_u32 v56, s{sT0}, v56")
    a(f"buffer_load_dwordx4 {vr(vXRES, 4)}, v56, {srd(sX)}, 0 offen")
    a(f"v_add_u32 v57, s{sT1}, v57")
    a("v_mul_u32_u24 v57, 272, v57")
    a("v_lshl_add_u32 v57, v58, 5, v57")
    a(f"v_add_u32 v57, {L_RING}, v57")
    a(f"v_add_u32 v58, {2 * RING}, v57")
    return o


def final(cfg):
    o = ["L_final:", "s_barrier"]
    a = o.append
    o += ts(cfg, 12)
    R = 64
    for kq in range(4):
        for u in range(2):
            a(f"ds_read_b128 {vr(R + 8 * kq + 4 * u, 4)}, v{57 + (kq >> 1)} offset:{(kq & 1) * RING + 16 * u}")
    a("s_waitcnt vmcnt(0)")
    for r in range(4):
        a(f"v_lshlrev_b32 v{8 + 2 * r}, 16, v{vXRES + r}")
        a(f"v_and_b32 v{9 + 2 * r}, s{sHI}, v{vXRES + r}")
    for kq in range(4):
        a(f"s_waitcnt lgkmcnt({6 - 2 * kq})")
        for r in range(8):
            a(f"v_add_f32 v{8 + r}, v{8 + r}, v{R + 8 * kq + r}")
    for r in range(4):
        a(f"v_cvt_pk_bf16_f32 v{vXRES + r}, v{8 + 2 * r}, v{9 + 2 * r}")
    a(f"buffer_store_dwordx4 {vr(vXRES, 4)}, v56, {srd(sOUT)}, 0 offen {('', 'sc1', 'sc0 sc1', 'nt')[cfg.outsc]}")
    a("L_fin:")
    if cfg.diag:
        o += ts(cfg, 15)
        o += [f"s_memrealtime s[{sTS}:{sTS + 1}]", "s_waitcnt lgkmcnt(0)", f"v_writelane_b32 v{vTS}, s{sTS}, 17"]
        a(f"s_lshl_b32 s{sT0}, s2, 3")
        a(f"s_add_u32 s{sT0}, s{sT0}, s{sWV}")
        a(f"s_lshl_b32 s{sT0}, s{sT0}, 8")
        a(f"s_add_u32 s{sT0}, s{sT0}, {WS_DIAG}")
        a(f"v_lshlrev_b32 v4, 2, v{vLANE}")
        a(f"buffer_store_dword v{vTS}, v4, {srd(sWS)}, s{sT0} offen")
        if cfg.dbgout >= 0:
            a(f"s_lshl_b32 s{sT0}, s2, 3")
            a(f"s_add_u32 s{sT0}, s{sT0}, s{sWV}")
            a(f"s_cmp_lg_u32 s{sT0}, {cfg.dbgout}")
            a("s_cbranch_scc1 L_end")
            a(f"v_readlane_b32 s{sT1}, v{vTS}, 0")
            a(f"v_readlane_b32 s{sT2}, v{vTS}, 16")
            a(f"v_readlane_b32 s{sT3}, v{vTS}, 17")
            a("s_nop 3")
            a(f"s_sub_u32 s{sT2}, s{sT3}, s{sT2}")
            a(f"v_subrev_u32 v5, s{sT1}, v{vTS}")
            a(f"v_writelane_b32 v5, s{sT2}, 14")
            a("s_mov_b64 exec, 0xfffe")
            a(f"buffer_store_dword v5, v4, {srd(sDBG)}, 0 offen")
    a("L_end:")
    a("s_endpgm")
    return o


def g_front(cfg):
    o = ["L_G:"] + ids(cfg)
    a = o.append
    if cfg.diag3:
        o += ts(cfg, 34, True)
    o += rest_srds(cfg)
    a(f"s_mov_b32 s{sH}, s26")
    a(f"s_mov_b32 s{sH + 1}, s27")
    a(f"s_cmp_eq_u32 s{sNT}, 7")
    a(f"s_cselect_b32 s{sH + 2}, 0, {WS_END}")
    a(f"s_mov_b32 s{sH + 3}, 0x20000")
    a(f"s_mul_i32 s{sHO}, s{sT0}, 112")
    a(f"s_lshl3_add_u32 s{sHO}, s{sFS}, s{sHO}")
    a(f"s_lshl_b32 s{sHO}, s{sHO}, 10")
    a(f"s_add_u32 s{sHO}, s{sHO}, {WS_H}")
    a(f"v_and_b32 v8, 31, v{vLANE}")
    a(f"v_lshrrev_b32 v9, 5, v{vLANE}")
    a("v_bfe_u32 v10, v8, 1, 3")
    a("v_xor_b32 v10, v10, v9")
    a("v_lshlrev_b32 v10, 4, v10")
    a("v_lshl_add_u32 v10, v8, 7, v10")
    a(f"v_add_u32 v20, s{sM0}, v10")
    for k in range(1, 4):
        a(f"v_xor_b32 v{20 + k}, {32 * k}, v20")
    a(f"v_mov_b32 v{vONE}, 0x3f803f80")
    for r in range(4):
        a(f"v_mov_b32 v{vT + r}, 0")
    a(f"v_lshlrev_b32 v{vL16}, 4, v{vLANE}")
    a("s_waitcnt lgkmcnt(0)")

    def dots(L):
        d = []
        for r in range(16):
            x = XC + 16 * L + r
            d += [f"v_dot2c_f32_bf16 v{vT + (r & 1)}, v{x}, v{vONE}", f"v_dot2c_f32_bf16 v{vT + 2 + (r & 1)}, v{x}, v{x}"]
        return d
    if cfg.xd >= 7:
        a("s_barrier")
    for L in range(7):
        a(f"s_waitcnt vmcnt({4 * (min(L + cfg.xd, 7) - 1 - L)})")
        if cfg.diag3:
            o += ts(cfg, 26 + L, True)
        for k in range(4):
            a(f"ds_read_b128 {vr(XC + 16 * L + 4 * k, 4)}, v{20 + k} offset:{L * 4096}")
        if L + cfg.xd < 7:
            o += x_dma(L + cfg.xd)
            if L + cfg.xd == 6:
                a("s_barrier")
                o += ts(cfg, 1, True)
        if L:
            a("s_waitcnt lgkmcnt(4)")
            o += dots(L - 1)
    a(f"v_bfe_u32 v8, v{vLANE}, 4, 1")
    a(f"v_bfe_u32 v10, v{vLANE}, 2, 2")
    a(f"v_and_b32 v11, 3, v{vLANE}")
    a("v_lshlrev_b32 v11, 3, v11")
    a("v_lshl_add_u32 v12, v9, 3, v10")
    a("v_lshlrev_b32 v12, 6, v12")
    a("v_lshl_add_u32 v12, v8, 5, v12")
    a(f"v_add_u32 v{vQR}, v12, v11")
    a("v_lshrrev_b32 v12, 1, v10")
    a("v_lshl_or_b32 v12, v8, 1, v12")
    a("v_lshl_add_u32 v12, v12, 5, v11")
    a("v_lshl_add_u32 v12, v10, 7, v12")
    a("v_lshl_add_u32 v12, v8, 10, v12")
    a("v_lshl_add_u32 v12, v9, 11, v12")
    a("s_waitcnt lgkmcnt(0)")
    a("s_barrier")
    o += ts(cfg, 14, True)
    a(f"v_add_u32 v2, {L_R}, v12")
    for k in range(1, 4):
        a(f"v_xor_b32 v{2 + k}, {32 * k}, v2")
    o += dots(6)
    a("s_nop 2")
    a(f"v_add_f32 v{vMEAN}, v{vT}, v{vT + 1}")
    a(f"v_add_f32 v{vC}, v{vT + 2}, v{vT + 3}")
    a(f"v_mov_b32 v{vT}, v{vMEAN}")
    a(f"v_mov_b32 v{vT + 1}, v{vC}")
    a("s_nop 0")
    a(f"v_permlane32_swap_b32 v{vMEAN}, v{vT}")
    a(f"v_permlane32_swap_b32 v{vC}, v{vT + 1}")
    a(f"v_add_f32 v{vMEAN}, v{vMEAN}, v{vT}")
    a(f"v_add_f32 v{vC}, v{vC}, v{vT + 1}")
    a(f"v_mul_f32 v{vMEAN}, {f2u(1.0 / 448):#x}, v{vMEAN}")
    a(f"v_mul_f32 v{vC}, {f2u(1.0 / 448):#x}, v{vC}")
    a(f"v_fma_f32 v{vC}, -v{vMEAN}, v{vMEAN}, v{vC}")
    a(f"v_max_f32 v{vC}, 0, v{vC}")
    a(f"v_add_f32 v{vC}, {f2u(1e-5):#x}, v{vC}")
    a(f"v_rsq_f32 v{vRSTD}, v{vC}")
    a("s_nop 0")
    a(f"v_mul_f32 v{vK1}, {f2u(-math.log2(math.e)):#x}, v{vRSTD}")
    a(f"s_cmp_eq_u32 s{sNT}, 7")
    a("s_cbranch_scc1 L_G_light")
    a(f"v_add_u32 v{vQR}, {L_WQ}, v{vQR}")
    o += center_all(cfg.pre_c)
    a("s_barrier")
    o += ts(cfg, 2, True)
    return o


def center_all(nreg=112):
    o = [f"v_mov_b32 v6, 0x00003f80", f"v_mov_b32 v7, 0x3f800000", f"v_sub_f32 v{vKQ}, 0, v{vMEAN}"]
    a = o.append
    for r in range(nreg + 2):
        if r < nreg:
            t = vT + 2 * (r % 3)
            a(f"v_dot2_f32_bf16 v{t}, v{XC + r}, v6, v{vKQ}")
            a(f"v_dot2_f32_bf16 v{t + 1}, v{XC + r}, v7, v{vKQ}")
        else:
            a("s_nop 1")
        if r >= 2:
            tp = vT + 2 * ((r - 2) % 3)
            a(f"v_cvt_pk_bf16_f32 v{XC + r - 2}, v{tp}, v{tp + 1}")
    return o


def g_light(cfg):
    o = ["L_G_light:"]
    a = o.append
    a(f"v_add_u32 v{vQR}, {L_R}, v{vQR}")
    a("s_barrier")
    o += ts(cfg, 2, True)
    for n in range(4):
        o += frag_reads(dict(kind='Q', s=n), n, None)
    for r in range(4):
        a(f"v_mov_b32 v{vHQ + r}, v{vONE}")
    lq = Q()
    for n in range(4):
        lq.issue(n), lq.issue(n)
    for n in range(28):
        k = lq.need(lambda t: t == n)
        a(f"s_waitcnt lgkmcnt({k})")
        a(mfma(A0 + 32, FR + 4 * (n & 3), XC + 4 * n, first=(n == 0)))
        a(mfma(A0 + 48, FR + 4 * (n & 3), vHQ, first=(n == 0)))
        if n + 4 < 28:
            o += frag_reads(dict(kind='Q', s=n + 4), n & 3, None)
            lq.issue(n + 4), lq.issue(n + 4)
    a("s_nop 11")
    for r in range(16):
        a(f"v_fma_f32 v{A0 + 32 + r}, -v{vMEAN}, v{A0 + 48 + r}, v{A0 + 32 + r}")
    return o


def g_restart():
    o = []
    for n in range(4):
        o += frag_reads(dict(kind='Q', s=n), n, None)
    return o + ["s_branch L_qpass"]


def proj_scale(scale_reg_setup):
    AC = A0 + 32
    o = list(scale_reg_setup)
    o.append(f"v_cndmask_b32 v{vKQ2}, v{vKQ}, 0, s[{sUP}:{sUP + 1}]")
    for r in range(16):
        o.append(f"v_mul_f32 v{AC + r}, v{AC + r}, v{vKQ if r < 12 else vKQ2}")
    return o


def sumsq():
    AC = A0 + 32
    o = [f"v_mul_f32 v{vT}, v{AC}, v{AC}", f"v_mul_f32 v{vT + 1}, v{AC + 1}, v{AC + 1}"]
    for r in range(2, 16):
        o.append(f"v_fmac_f32 v{vT + (r & 1)}, v{AC + r}, v{AC + r}")
    o.append(f"v_add_f32 v{vT}, v{vT}, v{vT + 1}")
    o += half_sum(vT, vT + 1)
    return o


def pack16(dst):
    AC = A0 + 32
    return [f"v_cvt_pk_bf16_f32 v{dst + r}, v{AC + 2 * r}, v{AC + 2 * r + 1}" for r in range(8)]


def g_after_pass(cfg):
    o = []
    a = o.append
    P = A4
    o += ts(cfg, 3, True)
    cq = math.log2(math.e) / math.sqrt(28.0)
    a(f"s_lshl_b32 s{sT0}, s{sTT}, 11")
    a(f"s_add_u32 s{sT0}, s{sT0}, {L_QX}")
    a(f"v_add_u32 v6, s{sT0}, v{vL16}")
    a(f"s_lshl_b32 s{sT0}, s{sTT}, 8")
    a(f"v_lshl_add_u32 v7, v{vLANE}, 2, s{sT0}")
    a("s_nop 5")
    o += proj_scale([f"v_mul_f32 v{vKQ}, {f2u(cq):#x}, v{vRSTD}"])
    o += pack16(P)
    a(f"ds_write_b128 v6, {vr(P, 4)}")
    a(f"ds_write_b128 v6, {vr(P + 4, 4)} offset:1024")
    o += sumsq()
    a(f"ds_write_b32 v7, v{vT} offset:{L_N2}")
    a("s_waitcnt lgkmcnt(0)")
    a("s_barrier")
    o += ts(cfg, 4, True) + ts_move(cfg)
    a(f"s_cmp_eq_u32 s{sNT}, 7")
    a("s_cbranch_scc1 L_fin")
    return o


def kv_epi(cfg):
    o = ["L_kv_epi:"]
    a = o.append
    P = A4
    AC = A0 + 32
    a(f"s_lshl_b32 s{sT1}, s{sI}, 2")
    a(f"s_add_u32 s{sT1}, s{sT1}, s{sTT}")
    a(f"s_lshl_b32 s{sT2}, s{sT1}, 12")
    o += proj_scale([f"v_mov_b32 v{vKQ}, v{vRSTD}"])
    a(f"s_cmp_eq_u32 s{sP}, 1")
    a("s_cbranch_scc1 L_v_epi")
    o += pack16(P)
    a(f"v_cndmask_b32 v{P + 6}, v{P + 6}, v{vONE}, s[{sUP}:{sUP + 1}]")
    o += sumsq()
    a(f"buffer_store_dwordx4 {vr(P, 4)}, v{vL16}, {srd(sWS)}, s{sT2} offen sc1")
    a(f"buffer_store_dwordx4 {vr(P + 4, 4)}, v{vL16}, {srd(sWS)}, s{sT2} offen offset:1024 sc1")
    o += wave_max_to_sgpr(vT, sT3)
    a(f"s_lshl_b32 s{sT1}, s{sT1}, 2")
    a(f"s_add_u32 s{sT1}, s{sT1}, {WS_KMAX}")
    a("v_mov_b32 v6, 0")
    a(f"v_mov_b32 v7, s{sT3}")
    a("s_mov_b64 exec, 1")
    a(f"buffer_store_dword v7, v6, {srd(sWS)}, s{sT1} offen sc1")
    a("s_mov_b64 exec, -1")
    a("s_branch L_kv_pub")
    vpart = ["L_v_epi:"]
    a = vpart.append
    a(f"v_mov_b32 v6, 1.0")
    a(f"v_cndmask_b32 v{AC + 12}, v{AC + 12}, v6, s[{sUP}:{sUP + 1}]")
    vpart += pack16(P)
    a(f"v_and_b32 v6, 31, v{vLANE}")
    a(f"v_lshrrev_b32 v7, 5, v{vLANE}")
    a("v_lshlrev_b32 v6, 6, v6")
    a("v_lshl_add_u32 v6, v7, 3, v6")
    a(f"s_lshl_b32 s{sT0}, s{sTT}, 11")
    a(f"v_add_u32 v6, s{sT0}, v6")
    for u in range(4):
        a(f"ds_write_b64 v6, {vr(P + 2 * u, 2)} offset:{16 * u}")
    a(f"v_bfe_u32 v6, v{vLANE}, 2, 2")
    a("v_lshl_add_u32 v6, v7, 2, v6")
    a("v_lshlrev_b32 v6, 6, v6")
    a(f"v_bfe_u32 v7, v{vLANE}, 4, 1")
    a("v_lshl_add_u32 v6, v7, 5, v6")
    a(f"v_and_b32 v7, 3, v{vLANE}")
    a("v_lshl_add_u32 v6, v7, 3, v6")
    a(f"v_add_u32 v6, s{sT0}, v6")
    a("s_waitcnt lgkmcnt(0)")
    for u in range(4):
        a(f"ds_read_b64_tr_b16 {vr(P + 8 + 2 * u, 2)}, v6 offset:{512 * u}")
    a("s_waitcnt lgkmcnt(0)")
    a(f"buffer_store_dwordx4 {vr(P + 8, 4)}, v{vL16}, {srd(sWS)}, s{sT2} offen offset:2048 sc1")
    a(f"buffer_store_dwordx4 {vr(P + 12, 4)}, v{vL16}, {srd(sWS)}, s{sT2} offen offset:3072 sc1")
    pub = ["L_kv_pub:"]
    a = pub.append
    pub += ts(cfg, 6, True)
    a(f"v_mov_b32 v6, {L_KVC}")
    a("v_mov_b32 v7, 1")
    a("s_mov_b64 exec, 1")
    a("s_waitcnt vmcnt(0)")
    a(f"ds_add_rtn_u32 v{vT}, v6, v7")
    a("v_mov_b32 v6, 0")
    a("s_waitcnt lgkmcnt(0)")
    a(f"v_cmp_eq_u32 vcc, 3, v{vT}")
    a("s_cbranch_vccz L_kv_notlast")
    a(f"v_mov_b32 v{vT}, 1")
    a(f"buffer_atomic_add v{vT}, v6, {srd(sDBG)}, 0 offen sc0")
    a("s_waitcnt vmcnt(0)")
    a(f"v_cmp_eq_u32 vcc, 31, v{vT}")
    a("s_cbranch_vccz L_kv_notlast")
    a(f"buffer_store_dword v7, v6, {srd(sDBG)}, 0 offen offset:128 sc1")
    a("L_kv_notlast:")
    a("s_mov_b64 exec, -1")
    a("s_barrier")
    pub += ts(cfg, 5, True)
    a(f"v_add_u32 v{vQR}, {(L_WQ - L_R) & 0xffffffff:#x}, v{vQR}")
    pub += center_all()
    a("s_barrier")
    pub += g_restart()
    return o, vpart, pub


GH = 128
NH = 11
WOQ = [12, 16, 20, 24, 32, 36, 40, 44, 48, 52, 216, 220, 224, 228, 232, 236]
vW2R = 2
vW2D = 4
vFL = 5


def gemm2(cfg):
    o = []
    a = o.append
    ng1 = cfg.ng1
    a(f"s_lshl_b32 s{sT0}, s{sI}, 14")
    a(f"s_lshl_b32 s{sT2}, s{sTT}, 11")
    a(f"s_add_u32 s{sT1}, s{sT0}, s{sT2}")
    a(f"s_lshl_b32 s{sT2}, s{sJ}, 7")
    a(f"s_add_u32 s{sT1}, s{sT1}, s{sT2}")
    a(f"s_add_u32 s{sT1}, s{sT1}, {WS_FLAG}")
    a("v_mov_b32 v6, 0")
    a("v_mov_b32 v7, 1")
    a("s_mov_b64 exec, 1")
    a("s_waitcnt vmcnt(0)")
    a(f"buffer_store_dword v7, v6, {srd(sWS)}, s{sT1} offen sc1")
    a("s_mov_b64 exec, -1")
    o += ts(cfg, 5, True)
    for r, lo, size in ((sW2, 20, 1792 * 896), (sWO, 12, 448 * 896)):
        o += [f"s_mov_b32 s{r}, s{lo}", f"s_mov_b32 s{r + 1}, s{lo + 1}", f"s_mov_b32 s{r + 2}, {size}",
              f"s_mov_b32 s{r + 3}, 0x20000"]
    a(f"v_bfe_u32 v6, v{vLANE}, 2, 1")
    a(f"v_and_b32 v7, 3, v{vLANE}")
    a("v_lshlrev_b32 v7, 7, v7")
    a("v_lshl_add_u32 v7, v6, 11, v7")
    a(f"s_lshl_b32 s{sT1}, s{sMT}, 12")
    a(f"s_add_u32 s{sT0}, s{sT0}, s{sT1}")
    a(f"s_add_u32 s{sT0}, s{sT0}, {WS_FLAG}")
    a(f"s_mul_i32 s{sT1}, s{sTT}, 3")
    a(f"s_and_b32 s{sT2}, s{sTT}, 2")
    a(f"s_add_u32 s{sT1}, s{sT1}, s{sT2}")
    a(f"s_lshl_b32 s{sT1}, s{sT1}, 7")
    a(f"s_add_u32 s{sT1}, s{sT1}, s{sT0}")
    a(f"v_add_u32 v{vFL}, s{sT1}, v7")
    a(f"v_bfe_u32 v6, v{vLANE}, 4, 1")
    a(f"v_lshrrev_b32 v8, 3, v{vLANE}")
    a("v_and_b32 v9, 2, v8")
    a("v_lshlrev_b32 v9, 1, v9")
    a(f"v_and_b32 v10, 7, v{vLANE}")
    a("v_xor_b32 v9, v9, v10")
    a("v_mul_u32_u24 v8, 896, v8")
    a("v_lshl_add_u32 v8, v9, 4, v8")
    a(f"s_lshl_b32 s{sT1}, s{sNC}, 7")
    a(f"v_add_u32 v{vW2D}, s{sT1}, v8")
    a(f"s_mul_i32 s{sM0}, s{sTT}, {RING}")
    a(f"s_add_u32 s{sM0}, s{sM0}, {L_RING}")
    a(f"v_bfe_u32 v8, v{vLANE}, 2, 2")
    a(f"v_lshrrev_b32 v9, 5, v{vLANE}")
    a("v_lshl_add_u32 v9, v9, 2, v8")
    a("v_lshlrev_b32 v9, 7, v9")
    a("v_lshrrev_b32 v8, 1, v8")
    a("v_lshl_add_u32 v9, v8, 6, v9")
    a("v_lshl_add_u32 v9, v6, 5, v9")
    a(f"v_and_b32 v8, 3, v{vLANE}")
    a("v_lshl_add_u32 v9, v8, 3, v9")
    a(f"v_add_u32 v{vW2R}, s{sM0}, v9")
    a(f"v_xor_b32 v{vW2R + 1}, 64, v{vW2R}")
    a(f"s_mul_i32 s{sT3}, s{sTT}, {28 * 16 * 896}")
    a(f"s_lshl_b32 s{sT0}, s{sI}, 2")
    a(f"s_lshl_b32 s{sT1}, s{sMT}, 1")
    a(f"s_add_u32 s{sT0}, s{sT0}, s{sT1}")
    a(f"s_mul_i32 s{sHO}, s{sT0}, 112")
    a(f"s_mul_i32 s{sT1}, s{sTT}, 28")
    a(f"s_add_u32 s{sHO}, s{sHO}, s{sT1}")
    a(f"s_lshl_b32 s{sHO}, s{sHO}, 10")
    a(f"s_add_u32 s{sHO}, s{sHO}, {WS_H}")
    a(f"s_lshl_b32 s{sKMAX}, s{sT0}, 2")
    a(f"s_add_u32 s{sKMAX}, s{sKMAX}, s{sTT}")
    a(f"s_lshl_b32 s{sKMAX}, s{sKMAX}, 13")
    a(f"s_add_u32 s{sKMAX}, s{sKMAX}, {WS_O}")
    o += rot_table(sRA, 64 * 896, sT3) + rot_table(sRB, 4096, sHO)
    vq, lq = Q(), Q()

    def w2dma(s):
        for b in range(2):
            o.extend([f"s_add_u32 m0, s{sM0}, {(s % 12) * 2048 + b * 1024}",
                      f"s_add_u32 s{sSO}, s{sRA + (s >> 2)}, {(16 * (s & 3) + 8 * b) * 896}",
                      f"buffer_load_dwordx4 v{vW2D}, {srd(sW2)}, s{sSO} offen lds"])
            vq.issue(('w', s))

    def hload(s):
        d = GH + 8 * (s % NH)
        for b in range(2):
            o.extend([f"s_add_u32 s{sSO}, s{sRB + (s >> 2)}, {(b * 112 + (s & 3)) * 1024}",
                      f"buffer_load_dwordx4 {vr(d + 4 * b, 4)}, v{vL16}, {srd(sWS)}, s{sSO} offen sc1"])
            vq.issue(('h', s))

    def wreads(s, aidx):
        d = FR + 8 * (s & 1) + 4 * aidx
        for t in range(2):
            o.append(f"ds_read_b64_tr_b16 {vr(d + 2 * t, 2)}, v{vW2R + aidx} offset:{(s % 12) * 2048 + 1024 * t}")
            lq.issue((s, aidx))

    def vwait(pred):
        k = vq.need(pred)
        if k is not None:
            o.append(f"s_waitcnt vmcnt({k})")

    def lwait(tag):
        k = lq.need(lambda t: t == tag)
        if k is not None:
            o.append(f"s_waitcnt lgkmcnt({k})")
    nissued = [0]

    def fetch_upto(lim, throttle):
        while nissued[0] < min(lim, 28):
            if throttle and len(vq.q) > cfg.thr - 4:
                keep = cfg.thr - 4
                o.append(f"s_waitcnt vmcnt({keep})")
                vq.q = vq.q[len(vq.q) - keep:]
            w2dma(nissued[0])
            hload(nissued[0])
            nissued[0] += 1
    o += res_load()
    a(f"s_mul_i32 s{sT2}, s{sTT}, {112 * 896}")

    def wo_dma(half, slot):
        for b in range(8):
            o.extend([f"s_add_u32 m0, s{sM0}, {slot * 2048 + b * 1024}",
                      f"s_add_u32 s{sSO}, s{sT2}, {(56 * half + 8 * b) * 896}",
                      f"buffer_load_dwordx4 v{vW2D}, {srd(sWO)}, s{sSO} offen lds"])
            vq.issue(('wo', half))

    def wo_reads(half, slot):
        vwait(lambda t: t == ('wo', half))
        for x in range(4):
            for aidx in range(2):
                for t in range(2):
                    a(f"ds_read_b64_tr_b16 {vr(WOQ[2 * (4 * half + x) + aidx] + 2 * t, 2)}, v{vW2R + aidx} "
                      f"offset:{slot * 2048 + (28 * (x >> 1) + 16 * (x & 1)) * 128 + 1024 * t}")
            if x & 1:
                a("s_waitcnt lgkmcnt(0)")
        lq.q = []
    cond = [f"v_cmp_eq_u32 vcc, 0, v6", "s_nop 0", "s_cmp_lg_u64 vcc, 0"]
    o += poll("L_ph", 6, vFL, sWS, cond, sleep=cfg.sl_h)
    vq.q = []
    o += ts(cfg, 6, True)
    D = 3
    OREG = [GH + 8 * ((28 - NH + x) % NH) for x in range(8)]

    def oload(hh):
        r = []
        for x in (2 * hh, 2 * hh + 1):
            for b in range(2):
                r += [f"s_add_u32 s{sSO}, s{sKMAX}, {b * 16 * 2048 + x * 1024}",
                      f"buffer_load_dwordx4 {vr(OREG[x] + 4 * b, 4)}, v{vL16}, {srd(sWS)}, s{sSO} offen sc1"]
        return r

    def step(s):
        d = GH + 8 * (s % NH)
        vwait(lambda t: t == ('h', s))
        for aidx in range(2):
            lwait((s, aidx))
            w = FR + 8 * (s & 1) + 4 * aidx
            for b in range(2):
                a(mfma(A0 + 32 * aidx + 16 * b, w, d + 4 * b, first=(s == 0)))
            nxt = s + 2
            if nxt < 28:
                if aidx == 0:
                    vwait(lambda t: t == ('w', nxt))
                wreads(nxt, aidx)
        if s < ng1:
            fetch_upto(min(s + 1 + D + 1, s + 1 + NH), True)
        else:
            fetch_upto(s + 1 + NH, False)
        if s == 0:
            wo_dma(0, 8)
        if s == 2:
            wo_reads(0, 8)
        if s == 4:
            wo_dma(1, 0)
        if s == 6:
            wo_reads(1, 0)
        if s == cfg.o_at:
            for hh in range(4):
                o.extend(oload(hh))
    fetch_upto(D + 1, True)
    vwait(lambda t: t in (('w', 0), ('w', 1)))
    for s in range(2):
        for aidx in range(2):
            wreads(s, aidx)
    a(f"v_and_b32 v8, 31, v{vLANE}")
    a(f"v_lshrrev_b32 v9, 5, v{vLANE}")
    a("v_mul_u32_u24 v8, 272, v8")
    a("v_lshl_add_u32 v8, v9, 4, v8")
    a(f"v_add_u32 v8, s{sM0}, v8")
    a(f"s_mov_b32 s{sCNT}, {1 << 16}")
    a(f"s_mov_b32 s{sMASK}, 15")
    assert 24 <= cfg.o_at < 28 and ng1 >= 8
    for s in range(28):
        if s == ng1:
            fetch_upto(s + NH, True)
            o += ts(cfg, 7, True)
            a("s_barrier")
        step(s)
    if ng1 >= 28:
        a("s_barrier")
    o += ts(cfg, 8, True)
    retry = []

    def marker_test(hh):
        regs = [OREG[2 * hh] + r for r in range(8)] + [OREG[2 * hh + 1] + r for r in range(8)]
        t = [f"v_max3_u32 v6, v{regs[0]}, v{regs[1]}, v{regs[2]}", f"v_max3_u32 v7, v{regs[3]}, v{regs[4]}, v{regs[5]}"]
        for r in range(6, 14, 4):
            t += [f"v_max3_u32 v6, v6, v{regs[r]}, v{regs[r + 1]}", f"v_max3_u32 v7, v7, v{regs[r + 2]}, v{regs[r + 3]}"]
        return t + [f"v_max3_u32 v6, v6, v{regs[14]}, v{regs[15]}", "v_max_u32 v6, v6, v7", "v_cmp_eq_u32 vcc, -1, v6"]

    def head_mfmas(hh):
        return [mfma(A0 + 32 * aidx + 16 * b, WOQ[2 * x + aidx], OREG[x] + 4 * b)
                for x in (2 * hh, 2 * hh + 1) for aidx in range(2) for b in range(2)]
    if cfg.dyn_o:
        a("L_o:")
        a("s_waitcnt vmcnt(0)")
        for hh in range(4):
            a(f"s_bitcmp1_b32 s{sMASK}, {hh}")
            a(f"s_cbranch_scc0 L_o{hh}_done")
            o += marker_test(hh)
            a(f"s_cbranch_vccnz L_o{hh}_retry")
            a(f"L_o{hh}_go:")
            o += head_mfmas(hh)
            a(f"s_bitset0_b32 s{sMASK}, {hh}")
            a(f"L_o{hh}_done:")
            retry += [f"L_o{hh}_retry:", f"s_sub_u32 s{sCNT}, s{sCNT}, 1", f"s_cselect_b32 s{sCNT}, 0, s{sCNT}",
                      f"s_cbranch_scc1 L_o{hh}_go"]
            retry += oload(hh) + [f"s_branch L_o{hh}_done"]
        a(f"s_cmp_lg_u32 s{sMASK}, 0")
        a("s_cbranch_scc1 L_o")
    else:
        for hh in range(4):
            a(f"L_o{hh}:")
            a(f"s_waitcnt vmcnt({4 * (3 - hh)})")
            o += marker_test(hh)
            a(f"s_cbranch_vccnz L_o{hh}_retry")
            a(f"L_o{hh}_go:")
            o += head_mfmas(hh)
            retry += [f"L_o{hh}_retry:", "s_waitcnt vmcnt(0)", f"s_sub_u32 s{sCNT}, s{sCNT}, 1",
                      f"s_cselect_b32 s{sCNT}, 0, s{sCNT}", f"s_cbranch_scc1 L_o{hh}_go"]
            for h2 in range(hh, 4):
                retry += oload(h2)
            retry += [f"s_branch L_o{hh}"]
    def pwrite(aidx, b, i4):
        return f"ds_write_b128 v8, {vr(A0 + 32 * aidx + 16 * b + 4 * i4, 4)} offset:{b * 32 * 272 + aidx * 128 + i4 * 32}"
    if cfg.dyn_o:
        o += ts(cfg, 10, True)
        a("s_nop 11")
        o += [pwrite(aidx, b, i4) for aidx in range(2) for b in range(2) for i4 in range(4)]
    else:
        del o[-8:]
        pend, n = [], 0
        for aidx in range(2):
            for b in range(2):
                for x in (6, 7):
                    a(mfma(A0 + 32 * aidx + 16 * b, WOQ[2 * x + aidx], OREG[x] + 4 * b))
                    n += 1
                    if x == 7:
                        pend += [(n + 12, pwrite(aidx, b, i4)) for i4 in range(4)]
                    for _ in range(2):
                        if pend and pend[0][0] <= n:
                            a(pend.pop(0)[1])
                            n += 1
                        elif (aidx, b, x) != (0, 0, 6):
                            a("s_nop 1")
                            n += 2
        while pend:
            if pend[0][0] > n:
                a(f"s_nop {pend[0][0] - n - 1}")
                n = pend[0][0]
            a(pend.pop(0)[1])
            n += 1
    a("s_waitcnt lgkmcnt(0)")
    o += ts(cfg, 11, True) + ts_move(cfg)
    a("s_branch L_final")
    return o, retry


def build(cfg):
    PFMOD[0] = ('', 'nt', 'sc1', 'sc0 sc1')[cfg.pfmod]
    pro = prologue(cfg)
    g0 = g_first(cfg)
    aset = a_setup(cfg)
    lh, ll = loader_heavy(cfg), loader_light(cfg)
    apre = a_pre_attn(cfg)
    at0, atl, atp = attention(cfg)
    apost = a_post(cfg)
    ares = res_load()
    fin = final(cfg)
    fb = fallback(cfg)
    gf = g_front(cfg)
    gs, qp = g_stream(cfg)
    gap = g_after_pass(cfg)
    gl = g_light(cfg)
    ke, ve, pub = kv_epi(cfg)
    g2, g2r = gemm2(cfg)
    ne = 0
    ne += len(check(pro + aset + lh + apre + at0 + atl + atl + atp + apost + fin, 'A heavy'))
    ne += len(check(pro + aset + ll + apre + fb + fb[2:] + at0 + atl + atp + apost, 'A light+fallback'))
    ne += len(check(pro + g0 + gf + gs + qp + gap + g2 + fin, 'G heavy'))
    gfl = gf[:gf.index("s_cbranch_scc1 L_G_light") + 1]
    ne += len(check(pro + g0 + gfl + gl + ke + pub + qp + gap, 'G light K'))
    iv = ke.index("s_cbranch_scc1 L_v_epi")
    ne += len(check(pro + g0 + gfl + gl + ke[:iv + 1] + ve + pub + qp + gap, 'G light V'))
    nb = lambda l: sum(1 for x in l if x == "s_barrier")
    print("barriers A heavy", nb(lh + apre + apost + fin), "G heavy", nb(gf + gs + qp + gap + g2 + fin),
          "| A light (until B9)", nb(ll + apre) - 1, "G light", nb(gfl + gl + ke + pub + qp + gap))
    code = (pro + g0 + ["s_branch L_G", "L_A:"] + aset + [f"s_cmp_eq_u32 s{sNT}, 7", "s_cbranch_scc1 L_A_light"] + lh + ["L_A_join:"] + apre + at0 +
            [".p2align 6", "L_attn_loop:"] + atl + atp + apost + fin)
    tail = (gf + gs + ["L_qpass:"] + qp + gap + g2 + g2r + ["L_A_light:"] + ll + ["s_branch L_A_join"] + gl + ke + ve + pub + fb)
    text = [f"; fused LayerNorm + MQA attention + SwiGLU + residual, generated by gen/gen.py",
            f"; @launch grid=(256,1,1) block=(512,1,1) lds={LDS_BYTES}",
            '.amdgcn_target "amdgcn-amd-amdhsa--gfx950"', ".text", f".globl {NAME}_kernel", ".p2align 8",
            f".type {NAME}_kernel,@function", f"{NAME}_kernel:"]
    text += [("    " + x if not x.endswith(':') else x) for x in code + tail]
    text += ["L_codeend:", "    s_endpgm", '.section .rodata,"a"', ".p2align 6", f".amdhsa_kernel {NAME}_kernel",
             "  .amdhsa_next_free_vgpr 256", "  .amdhsa_next_free_sgpr 102", "  .amdhsa_accum_offset 256",
             "  .amdhsa_group_segment_fixed_size 0", "  .amdhsa_kernarg_size 96", "  .amdhsa_user_sgpr_count 2",
             "  .amdhsa_user_sgpr_kernarg_segment_ptr 1", "  .amdhsa_system_sgpr_workgroup_id_x 1",
             ".end_amdhsa_kernel", ""]
    return "\n".join(text), ne


if __name__ == "__main__":
    cfg = Cfg()
    out = f"cdna_kernels/{NAME}.s"
    for arg in sys.argv[1:]:
        if arg.startswith("-o"):
            out = arg[2:]
        else:
            k, v = arg.split("=")
            setattr(cfg, k, tuple(int(x) for x in v.split(',')) if ',' in v else type(getattr(cfg, k))(int(v)))
    text, ne = build(cfg)
    open(out, "w").write(text)
    print("wrote", out, "findings:", ne)
```

```python
import sys, math, struct
sys.path.insert(0, __file__.rsplit('/', 1)[0])
from asmcheck import check

NAME = "parallel_sum__grouped_kv_mqa__glu_gated_swiglu__prompt"


def f2u(x):
    return struct.unpack('<I', struct.pack('<f', x))[0]


class Cfg:
    diag = False
    diag2 = False
    diag3 = False
    diag4 = False
    diag5 = False
    dbgout = -1
    rt = False
    ng1 = 15
    prefetch_code = True
    rot = True
    ev0 = 97
    ev1 = 95
    nodma = False
    hs1 = 251
    nob8 = True
    w1 = False
    s2 = True
    spill = 10
    lightsafe = False
    nob10 = True
    etest = True
    kvc = 1
    pswap = False
    opipe = True
    o_pre = 0
    bfp = True
    mid_w = 0
    sel_o = False
    gprio = 1
    hchunk = True
    nb = 4
    gd = 4
    sent_at = 6
    ft = -1
    hs0 = 223
    hsd = 2
    dyn_o = False
    nsplit = True
    o_at = 27
    pfmod = 0
    wsoff = 0
    pf_kv = False
    xd = 3
    pre_c = 44
    late_c = False
    outsc = 0
    pf_at = (0, 0, 0, 4, 3, 1, 0)
    sl_kv = 4
    sl_h = 4
    sl_o = 1
    touch = False
    caps = (12, 10, 12, 12, 12, 12, 99)
    early_w = 0
    pf_w2 = True
    thr = 24
    wait2 = True
    bal = True
    defer_h = True
    force_fallback = False


WS_KV = 0
WS_KMAX = 0x40000
WS_FLAG = 0x980000
WS_O = 0x80000
WS_H = 0x280000
WS_END = 0x9c0000
WS_DIAG = 0x1000000

LDS_BYTES_ = 163840
XT = 28672
L_R = 114688
L_WQ = 16384
L_QX = 49152
L_N2 = 57344
L_CNT = 58368
L_RING = 65536
RING = 24576
L_ORED = 0
L_KVC = LDS_BYTES_ - 4
LDS_BYTES = 163840


def slot_u(u, s):
    if u == 0:
        return L_R + 4096 * s if s < 12 else 4096 * (s - 12)
    if s < 12:
        return 4096 * (16 + s)
    if s < 24:
        return L_R + 4096 * (s - 12)
    return 4096 * (s - 24)


sX, sW, sQ, sWS, sW2, sWO, sOUT, sDBG, sH = 28, 32, 36, 40, 44, 48, 52, 56, 60
sPC = 64
sWV, sTT, sI, sJ, sNT, sP, sFS, sMODE = 66, 67, 68, 69, 70, 71, 72, 73
sT0, sT1, sT2, sT3 = 74, 75, 76, 77
sCNT = 78
sKMAX = 79
sMASK = 80
sTMP2 = 82
sEX = 84
sHI = 86
sTS = 88
sSO = 90
sM0 = 91
sHO = 92
sMT, sNC = 81, 82
sOO = 83
sUP = 94
sROT = 93
sRA, sRB = 4, 11


def srd(r):
    return f"s[{r}:{r + 3}]"


def vr(a, n):
    return f"v[{a}:{a + n - 1}]"


def mfma(d, a, b, first=False):
    return f"v_mfma_f32_32x32x16_bf16 {vr(d, 16)}, {vr(a, 4)}, {vr(b, 4)}, " + ("0" if first else vr(d, 16))


class Q:
    def __init__(self):
        self.q = []

    def issue(self, tag):
        self.q.append(tag)

    def need(self, pred):
        last = -1
        for k, t in enumerate(self.q):
            if pred(t):
                last = k
        if last < 0:
            return None
        n = len(self.q) - 1 - last
        self.q = self.q[last + 1:]
        return n


vLANE, vTS, vTSG = 1, 238, 31


def ts(cfg, idx, g=False):
    if not cfg.diag:
        return []
    o = [f"s_memtime s[{sTS}:{sTS + 1}]", "s_waitcnt lgkmcnt(0)", f"v_writelane_b32 v{vTSG if g else vTS}, s{sTS}, {idx}"]
    if cfg.rt and idx < 16:
        o += [f"s_memrealtime s[{sTS}:{sTS + 1}]", "s_waitcnt lgkmcnt(0)", f"v_writelane_b32 v{vTSG if g else vTS}, s{sTS}, {40 + idx}"]
    return o


def ts_move(cfg):
    return [f"v_mov_b32 v{vTS}, v{vTSG}"] if cfg.diag else []


def poll(label, vdst, voff, srdr, cond, limit=1 << 18, sleep=1):
    return ([f"s_mov_b32 s{sCNT}, {limit}", f"{label}:",
             f"buffer_load_dword v{vdst}, v{voff}, {srd(srdr)}, 0 offen sc1",
             "s_waitcnt vmcnt(0)"] + cond +
            [f"s_cbranch_scc0 {label}_ok",
             f"s_sub_u32 s{sCNT}, s{sCNT}, 1",
             f"s_cselect_b32 s{sCNT}, 0, s{sCNT}",
             f"s_cbranch_scc1 {label}_ok",
             f"s_sleep {sleep}",
             f"s_branch {label}",
             f"{label}_ok:"])


def half_sum(a, t, op="v_add_f32"):
    return [f"v_mov_b32 v{t}, v{a}", "s_nop 1", f"v_permlane32_swap_b32 v{a}, v{t}", f"{op} v{a}, v{a}, v{t}"]


def wave_max_to_sgpr(v, s):
    o = []
    for sh in (1, 2, 4, 8):
        o += ["s_nop 1", f"v_max_f32_dpp v{v}, v{v}, v{v} row_shr:{sh} row_mask:0xf bank_mask:0xf"]
    o += ["s_nop 1", f"v_max_f32_dpp v{v}, v{v}, v{v} row_bcast:15 row_mask:0xa bank_mask:0xf",
          "s_nop 1", f"v_max_f32_dpp v{v}, v{v}, v{v} row_bcast:31 row_mask:0xc bank_mask:0xf",
          "s_nop 1", f"v_readlane_b32 s{s}, v{v}, 63"]
    return o


def x_dma(L):
    o = [f"s_add_u32 m0, s{sM0}, {L * 4096}", f"s_add_u32 s{sT1}, s{sSO}, s{sT2}"]
    o += [f"buffer_load_dwordx4 v{4 + rb}, {srd(sX)}, s{sT1} offen offset:{1024 * rb} lds" for rb in range(4)]
    if L < 6:
        o += [f"s_add_u32 s{sT2}, s{sT2}, 128", f"s_cmp_eq_u32 s{sT2}, 896", f"s_cselect_b32 s{sT2}, 0, s{sT2}"]
    return o


def code_pf(cfg):
    if not cfg.prefetch_code:
        return []
    return [f"s_load_dword s{96 + k}, s[{sPC}:{sPC + 1}], {64 * k}" for k in range(3)]


def prologue(cfg):
    o = []
    a = o.append
    a("s_load_dwordx16 s[4:19], s[0:1], 0")
    a("s_load_dwordx8 s[20:27], s[0:1], 64")
    a("s_cmp_ge_u32 s2, 256")
    a("s_cbranch_scc1 L_end")
    a(f"v_and_b32 v{vLANE}, 63, v0")
    a("v_lshrrev_b32 v2, 6, v0")
    a(f"s_lshr_b32 s{sNT}, s2, 5")
    a(f"v_readfirstlane_b32 s{sWV}, v2")
    a(f"s_bfe_u32 s{sT1}, s2, 0x20003")
    a(f"s_bfe_u32 s{sI}, s2, 0x20001")
    a(f"s_lshl2_add_u32 s{sI}, s{sI}, s{sT1}")
    a(f"s_and_b32 s{sTT}, s{sWV}, 3")
    if cfg.rot:
        a(f"s_lshl1_add_u32 s{sROT}, s{sT1}, s{sNT}")
        a(f"s_cmp_ge_u32 s{sROT}, 7")
        a(f"s_cselect_b32 s{sT2}, 7, 0")
        a(f"s_sub_u32 s{sROT}, s{sROT}, s{sT2}")
    else:
        a(f"s_mov_b32 s{sROT}, 0")
    a(f"v_lshrrev_b32 v2, 3, v{vLANE}")
    a(f"v_and_b32 v5, 7, v{vLANE}")
    a("v_lshrrev_b32 v6, 1, v2")
    a("v_xor_b32 v5, v5, v6")
    a("v_mul_u32_u24 v2, 896, v2")
    a("v_lshl_add_u32 v4, v5, 4, v2")
    a("v_xor_b32 v5, 64, v4")
    a("v_add_u32 v6, 12288, v4")
    a("v_add_u32 v5, 6144, v5")
    a("v_add_u32 v7, 12288, v5")
    a(f"s_lshl2_add_u32 s{sT0}, s{sI}, s{sTT}")
    a(f"s_mul_i32 s{sSO}, s{sT0}, {32 * 896}")
    a(f"s_mul_i32 s{sM0}, s{sTT}, {XT}")
    a(f"s_lshl_b32 s{sT2}, s{sROT}, 7")
    a(f"s_mov_b32 s{sX + 2}, {2048 * 896}")
    a(f"s_mov_b32 s{sX + 3}, 0x20000")
    if cfg.prefetch_code:
        a(f"s_getpc_b64 s[{sPC}:{sPC + 1}]")
        a("L_pc:")
        a(f"s_and_b32 s{sT3}, s2, 0xf8")
        a(f"s_add_u32 s{sT3}, s{sT3}, s{sWV}")
        a(f"s_mul_i32 s{sT3}, s{sT3}, 192")
        a(f"s_min_u32 s{sT3}, s{sT3}, L_codeend-L_pc-192")
        a(f"s_add_u32 s{sPC}, s{sPC}, s{sT3}")
        a(f"s_addc_u32 s{sPC + 1}, s{sPC + 1}, 0")
    if cfg.diag:
        a(f"v_mov_b32 v{vTS}, 0")
        a(f"v_mov_b32 v{vTSG}, 0")
        o += [f"s_memtime s[{sTS}:{sTS + 1}]"]
    a(f"s_cmp_lt_u32 s{sWV}, 4")
    a("s_waitcnt lgkmcnt(0)")
    if cfg.diag:
        a(f"v_writelane_b32 v{vTS}, s{sTS}, 0")
        a(f"v_writelane_b32 v{vTSG}, s{sTS}, 0")
        o += ts(cfg, 13) + ts(cfg, 13, True)
        o += [f"s_memrealtime s[{sTS}:{sTS + 1}]", "s_waitcnt lgkmcnt(0)", f"v_writelane_b32 v{vTS}, s{sTS}, 16", f"v_writelane_b32 v{vTSG}, s{sTS}, 16"]
    a(f"s_mov_b32 s{sX}, s4")
    a(f"s_mov_b32 s{sX + 1}, s5")
    a("s_cbranch_scc1 L_A")
    return o


def g_first(cfg):
    o = []
    for L in range(cfg.xd):
        o += x_dma(L)
    return o + code_pf(cfg)


def ids(cfg):
    o = [f"s_add_u32 s26, s26, {cfg.wsoff << 20}", "s_addc_u32 s27, s27, 0"] if cfg.wsoff else []
    o += [f"s_andn2_b32 s{sP}, 1, s2" if cfg.pswap else f"s_and_b32 s{sP}, s2, 1", f"s_lshl3_add_u32 s{sJ}, s{sP}, s{sNT}", f"s_sub_u32 s{sFS}, s{sJ}, s{sP}",
          f"s_mov_b32 s{sHI}, 0xffff0000", f"s_mov_b32 s{sUP}, 0", f"s_mov_b32 s{sUP + 1}, -1"]
    if cfg.nsplit:
        o += [f"s_lshr_b32 s{sNC}, s{sNT}, 1", f"s_lshl2_add_u32 s{sNC}, s{sP}, s{sNC}", f"s_and_b32 s{sMT}, s{sNT}, 1",
              f"s_cmp_eq_u32 s{sNT}, 6", f"s_cselect_b32 s{sNC}, 3, s{sNC}", f"s_cselect_b32 s{sMT}, s{sP}, s{sMT}"]
    else:
        o += [f"s_mov_b32 s{sNC}, s{sNT}", f"s_mov_b32 s{sMT}, s{sP}"]
    return o


def rot_table(dst, stride, add=None):
    o = [f"s_mul_i32 s{dst}, s{sROT}, {stride}"]
    for c in range(1, 7):
        o += [f"s_add_u32 s{dst + c}, s{dst + c - 1}, {stride}", f"s_cmp_eq_u32 s{dst + c}, {7 * stride}",
              f"s_cselect_b32 s{dst + c}, 0, s{dst + c}"]
    if add is not None:
        o += [f"s_add_u32 s{dst + c}, s{dst + c}, s{add}" for c in range(7)]
    return o


def rest_srds(cfg):
    def mk(r, lo, size):
        return [f"s_mov_b32 s{r}, s{lo}", f"s_mov_b32 s{r + 1}, s{lo + 1}", f"s_mov_b32 s{r + 2}, {size}",
                f"s_mov_b32 s{r + 3}, 0x20000"]
    o = []
    o += mk(sWS, 26, WS_END if not cfg.diag else WS_DIAG + (1 << 20))
    o += mk(sOUT, 22, 2048 * 896)
    o += mk(sDBG, 24, 256)
    return o


A0, A4 = 64, 32
XC = 128
FR = 240
vWR = 2
vMEAN, vC, vK1, vRSTD, vKQ, vKQ2 = 8, 9, 10, 11, 12, 13
vT = 14
vHQ = 20
vQR, vL16, vONE = 28, 29, 30


def stream():
    st = []
    for s in range(28):
        for q in range(4):
            st.append(dict(acc=A0 + 16 * q, s=s, kind='W', u=0, q=q))
    for half, base in ((0, A4), (1, A0)):
        for s in range(28):
            for q in range(2):
                st.append(dict(acc=base + 16 * q, s=s, kind='W', u=1, q=2 * half + q))
    for s in range(28):
        st.append(dict(acc=A0 + 32, s=s, kind='Q'))
    return st


BARRIERS = [12, 44, 76, 108, 132, 156]


def center_reg(r, t):
    return [f"v_lshlrev_b32 v{t}, 16, v{r}", f"v_and_b32 v{t + 1}, s{sHI}, v{r}",
            f"v_sub_f32 v{t}, v{t}, v{vMEAN}", f"v_sub_f32 v{t + 1}, v{t + 1}, v{vMEAN}",
            f"v_cvt_pk_bf16_f32 v{r}, v{t}, v{t + 1}"]


def h_store(quad, ks_off):
    r = sT0 if ks_off >= 6 else sT1
    return [f"s_add_u32 s{r}, s{sHO}, {ks_off * 1024}",
            f"buffer_store_dwordx4 {vr(quad, 4)}, v{vL16}, {srd(sH)}, s{r} offen sc1"]


def silu_tile(acc, quad, ks_off, store=True):
    def stage(r):
        t = vT + (r % 3)
        return [[f"v_mul_f32 v{t}, v{acc + r}, v{vK1}"],
                [f"v_exp_f32 v{t}, v{t}"],
                [f"v_mul_f32 v{acc + r}, v{acc + r}, v{acc + 8 + r}"],
                [f"v_fma_f32 v{t}, v{t}, v{vC}, v{vC}"],
                [f"v_rcp_f32 v{t}, v{t}"],
                [f"v_mul_f32 v{acc + r}, v{acc + r}, v{t}"]]
    o = []
    prev_last = None
    for r in range(8):
        sg = stage(r)
        o += sg[0]
        if prev_last:
            o += prev_last
            if r % 2 == 0:
                o.append(f"v_cvt_pk_bf16_f32 v{quad + r // 2 - 1}, v{acc + r - 2}, v{acc + r - 1}")
        o += sg[1] + sg[2] + sg[3] + sg[4]
        prev_last = sg[5]
    o += [h_store(quad, ks_off)[0] if store else "s_nop 0"] + prev_last
    o.append(f"v_cvt_pk_bf16_f32 v{quad + 3}, v{acc + 6}, v{acc + 7}")
    if store:
        o.append(h_store(quad, ks_off)[1])
    return o


def frag_reads(e, buf, wbase):
    o = []
    d = FR + 4 * buf
    if e['kind'] == 'Q':
        off = e['s'] * 1024
        return [f"ds_read_b64_tr_b16 {vr(d, 2)}, v{vQR} offset:{off}",
                f"ds_read_b64_tr_b16 {vr(d + 2, 2)}, v{vQR} offset:{off + 256}"]
    q = e['q']
    sl = slot_u(e['u'], e['s'])
    if not (wbase[q] <= sl and sl + 512 - wbase[q] <= 65535):
        nb = 0 if sl < 65536 else (65536 if sl < L_R else L_R)
        delta = nb - wbase[q]
        o.append(f"v_add_u32 v{vWR + q}, {delta & 0xffffffff:#x}, v{vWR + q}")
        wbase[q] = nb
    off = sl - wbase[q]
    o += [f"ds_read_b64_tr_b16 {vr(d, 2)}, v{vWR + q} offset:{off}",
          f"ds_read_b64_tr_b16 {vr(d + 2, 2)}, v{vWR + q} offset:{off + 512}"]
    return o


def g_stream(cfg):
    st = stream()
    N = len(st)
    wbase = [L_R] * 4
    lq = Q()
    pre = []
    for n in range(4):
        pre += frag_reads(st[n], n, wbase)
        lq.issue(n), lq.issue(n)
    fill = {}

    def spread(ops, g0, g1):
        k = g1 - g0 + 1
        for x, op in enumerate(ops):
            fill.setdefault(g0 + x * k // len(ops), []).append(op)
    todo = list(range(cfg.pre_c, 112))
    g0 = 0 if not cfg.late_c else max(0, cfg.pre_c - 5)
    for x, r in enumerate(todo):
        g = g0 + x if cfg.late_c else x * 107 // max(len(todo), 1)
        assert g <= 4 * (r // 4) - 2, (r, g)
        fill.setdefault(g, []).extend(center_reg(XC + r, vT + 2 * (x & 1)))
    tiles = [(A0 + 16 * q, q) for q in range(4)] + [(A4 + 16 * q, 4 + q) for q in range(2)]
    cut = 3 if cfg.bal else 4
    e0, e1 = [], []
    late = []
    for x, (ac, ks) in enumerate(tiles):
        quad = vHQ + 4 * (x & 1)
        if cfg.defer_h:
            quad = vHQ + 4 * x if x < 2 else ac + 8
            late += h_store(quad, ks)
        (e0 if x < cut else e1).extend(silu_tile(ac, quad, ks, store=not cfg.defer_h))
    spread(e0, 114, 166)
    spread(e1, 168 if cfg.bal else 172, 222)
    e2 = []
    for q in range(2):
        e2 += silu_tile(A0 + 16 * q, A0 + 16 * q + 8 if cfg.defer_h else vHQ + 4 * (q & 1), 6 + q)
    spread(e2, 227, 251)
    ready = {}
    for g in sorted(fill):
        for op in fill[g]:
            for x in range(len(late) // 2):
                q4 = int(late[2 * x + 1].split('[')[1].split(':')[0])
                if op.startswith(f"v_cvt_pk_bf16_f32 v{q4 + 3},") and g < 224:
                    ready[x] = g + 1
    g = cfg.hs0
    for x in ([2, 0, 1, 3, 4, 5] if late else []):
        g = max(g, ready[x])
        if x == 2:
            g = min(g, 223)
        fill.setdefault(g, []).extend(late[2 * x:2 * x + 2])
        g += cfg.hsd
    body, qp = pre, []
    cur = body
    for n, e in enumerate(st):
        if n == 224:
            cur = qp
        if cfg.wait2 and n % 2 == 0:
            k = lq.need(lambda t: t in (n, n + 1))
        else:
            k = lq.need(lambda t: t == n)
        if k is not None:
            cur.append(f"s_waitcnt lgkmcnt({k})")
        cur.append(mfma(e['acc'], FR + 4 * (n & 3), XC + 4 * e['s'], first=(e['s'] == 0)))
        if n in BARRIERS:
            bi = BARRIERS.index(n)
            cur += (ts(cfg, 18 + 2 * bi, True) if cfg.diag2 else []) + ["s_barrier"] + (ts(cfg, 19 + 2 * bi, True) if cfg.diag2 else [])
        if n in (111, 167) and cfg.diag2:
            cur += ts(cfg, 32 if n == 111 else 33, True)
        if n + 4 < N:
            cur += frag_reads(st[n + 4], n & 3, wbase)
            lq.issue(n + 4), lq.issue(n + 4)
        cur += fill.get(n, [])
        if n == 223:
            cur += (ts(cfg, 30, True) if cfg.diag2 else []) + ["s_barrier"] + (ts(cfg, 31, True) if cfg.diag2 else [])
    return body, qp


sHS = [6, 7, 14, 15, 16, 17, 18, 19]


HQUAD = [vHQ, vHQ + 4, A0 + 48, A0 + 56, A4 + 8, A4 + 24, A0 + 8, A0 + 24]


def h_store2(x):
    return f"buffer_store_dwordx4 {vr(HQUAD[x], 4)}, v{vL16}, {srd(sH)}, s{sHS[x]} offen sc1"


def cost(op):
    return 8 if op.startswith(("v_exp", "v_rcp")) else 4


LATE_H = []


def g_stream2(cfg):
    st = stream()
    N = len(st)
    wbase = [L_R] * 4
    reads = {n: frag_reads(st[n], n & 3, wbase) for n in range(N)}
    fill, slot0 = {}, {}
    for n in range(5, N):
        if reads[n][0].startswith("v_add"):
            fill.setdefault(n - 5, []).append(reads[n].pop(0))

    def place(ops, g0, g1, spill=False, even=0.0):
        used = lambda g: sum(cost(x) for x in fill.get(g, []))
        rest = {g: fill.pop(g, []) for g in range(g0, g1 + 1)}
        for budget in range(16, 64, 4):
            for g in rest:
                fill[g] = []
            g, ok, left = g0, True, []
            tot, acc_ = sum(cost(y[2]) for y in ops), 0
            for x, (e, l, t) in enumerate(ops):
                want = g0 + int(acc_ * (g1 - g0 + 1) * even / tot)
                acc_ += cost(t)
                g = max(g, e, min(want, l))
                while g <= g1 and used(g) + cost(t) + sum(cost(y) for y in rest[g]) > budget:
                    g += 1
                if g > g1 and spill and len(ops) - x <= spill:
                    left = [y[2] for y in ops[x:]]
                    break
                if g > min(l, g1):
                    ok = False
                    break
                fill[g].append(t)
            if ok:
                for g in rest:
                    fill[g] += rest[g]
                return budget, left
        raise AssertionError
    ops = []
    for x, r in enumerate(range(cfg.pre_c, 112)):
        ops += [(0, 4 * (r // 4) - 2, t) for t in center_reg(XC + r, vT + 2 * (x & 1))]
    b0, _ = place(ops, 0, 106, even=cfg.ev0 / 100)
    tiles = [(A0, 112, 166), (A0 + 16, 113, 167), (A0 + 32, 114, 221), (A0 + 48, 115, 221), (A4, 171, 226), (A4 + 16, 172, 226)]
    ops = []
    for x in (0, 1, 3, 2, 4, 5):
        ac, e, l = tiles[x]
        ops += [(e, l, t) for t in silu_tile(ac, HQUAD[x], x, store=False) if t != "s_nop 0"]
    quads = HQUAD
    b1, _ = place(ops, 112, 226, even=cfg.ev1 / 100)
    ops = []
    for x in range(2):
        ops += [(227 + x, 999, t) for t in silu_tile(A0 + 16 * x, quads[6 + x], 6 + x, store=False) if t != "s_nop 0"]
    b2, left = place(ops, 227, 251, spill=cfg.spill)
    print("vector budget per gap:", b0, b1, b2, "left over", len(left))
    ready = {}
    for g in sorted(fill):
        for op in fill[g]:
            for x, q4 in enumerate(quads):
                if op.startswith(f"v_cvt_pk_bf16_f32 v{q4 + 3},") and (g >= 227) == (x >= 6) and g >= 112:
                    ready[x] = g + 1
    g = cfg.hs0
    del LATE_H[:]
    for x in [0, 1, 3, 2, 4, 5, 6, 7]:
        g = max(g, ready.get(x, 999))
        g += g & 1
        while g in BARRIERS:
            g += 2
        if g > cfg.hs1:
            LATE_H.append(h_store2(x))
            continue
        slot0[g] = h_store2(x)
        g += cfg.hsd
    post = []
    lq = Q()
    body, qp = [], []
    cur = body
    for n in range(4):
        cur += reads[n]
        lq.issue(n), lq.issue(n)
    cur.append(f"s_waitcnt lgkmcnt({lq.need(lambda t: t in (0, 1))})")

    def emit(t):
        p = cur[-1]
        if p.startswith(("v_exp", "v_rcp")) and t.startswith("v_") and p.split()[1].rstrip(',') in t.replace(',', ' ').split()[2:]:
            cur.append("s_nop 0")
        cur.append(t)
    for n, e in enumerate(st):
        if n == 224:
            cur = qp
        cur.append(mfma(e['acc'], FR + 4 * (n & 3), XC + 4 * e['s'], first=(e['s'] == 0)))
        if cfg.w1 and n + 1 not in slot0 and n + 1 not in BARRIERS and n != 223:
            k = lq.need(lambda t: t == n + 1)
            if k is not None:
                cur.append(f"s_waitcnt lgkmcnt({k})")
        elif n & 1:
            k = lq.need(lambda t: t in (n + 1, n + 2))
            if k is not None:
                cur.append(f"s_waitcnt lgkmcnt({k})")
        if n in slot0:
            cur.append(slot0[n])
        if n == 223 and cfg.nob8 and cfg.diag2:
            cur += ts(cfg, 31, True)
        if n in BARRIERS or (n == 223 and not cfg.nob8):
            bi = BARRIERS.index(n) if n in BARRIERS else 6
            cur += (ts(cfg, 18 + 2 * bi, True) if cfg.diag2 else []) + ["s_barrier"] + (ts(cfg, 19 + 2 * bi, True) if cfg.diag2 else [])
        if n in (111, 167) and cfg.diag2:
            cur += ts(cfg, 32 if n == 111 else 33, True)
        if n + 4 < N:
            cur += reads[n + 4]
            lq.issue(n + 4), lq.issue(n + 4)
        for t in fill.get(n, []):
            emit(t)
    for t in left + post:
        emit(t)
    return body, qp


sPFW, sPFO = 18, 19


PFMOD = ['']


def pf_setup(cfg):
    o = [f"s_lshr_b32 s{sT0}, s2, 1", f"s_and_b32 s{sT0}, s{sT0}, 0x7c", f"s_add_u32 s{sT0}, s{sT0}, s{sWV}",
         f"s_mul_i32 s{sPFW}, s{sT0}, {14 * 896}", f"v_lshlrev_b32 v9, 7, v{vLANE}"]
    if cfg.nsplit:
        o += [f"s_mul_i32 s{sPFO}, s{sT0}, 7", f"s_lshr_b32 s{sPFO}, s{sPFO}, 1", f"s_mul_i32 s{sPFO}, s{sPFO}, 896",
              f"v_lshrrev_b32 v14, 2, v{vLANE}", "v_mul_u32_u24 v14, 896, v14", f"v_and_b32 v15, 3, v{vLANE}",
              "v_lshl_add_u32 v14, v15, 7, v14", f"s_mul_i32 s{sT0}, s{sP}, 384", f"v_add_u32 v14, s{sT0}, v14"]
    else:
        o += [f"s_mul_i32 s{sPFO}, s{sT0}, {3584 - 448}", f"s_and_b32 s{sPFO}, s{sPFO}, 0xffffff80"]
    return o


def pf_w2(cfg, part, n=1):
    o = []
    nw = max(0, min(part + n, 7) - part)
    per, va = (8, 14) if cfg.nsplit else (14, 9)
    if nw:
        mask = (1 << (per * nw)) - 1
        assert per * nw <= 64
        o += [f"s_mov_b32 exec_lo, {mask & 0xffffffff:#x}", f"s_mov_b32 exec_hi, {mask >> 32:#x}",
              f"s_add_u32 s{sT1}, s{sPFW}, {2 * 896 * part}",
              f"buffer_load_dword v{228 + part}, v{va}, {srd(sW2)}, s{sT1} offen {PFMOD[0]}"]
    if part <= 7 < part + n:
        o += [f"s_mov_b64 exec, {0xffff if cfg.nsplit else 0x3ffffff:#x}",
              f"buffer_load_dword v235, v{va}, {srd(sWO)}, s{sPFO} offen {PFMOD[0]}"]
    if o:
        o.append("s_mov_b64 exec, -1")
    return o


def first_touch():
    o = []
    for wv, r, nl, stride, add in ((0, sW2, 25, 6272, 0), (1, sWO, 14, 1568, 0), (2, sQ, 14, 1568, 0), (3, sW2, 25, 6272, 3072)):
        o += [f"s_cmp_lg_u32 s{sWV}, {wv}", f"s_cbranch_scc1 L_ft{wv}_@",
              f"s_mul_i32 s{sT1}, s2, {stride}", f"s_and_b32 s{sT1}, s{sT1}, 0xffffff80",
              f"s_mov_b64 exec, {(1 << nl) - 1:#x}",
              f"buffer_load_dword v{244 + wv}, v9, {srd(r)}, s{sT1} offen offset:{add}", "s_mov_b64 exec, -1", f"L_ft{wv}_@:"]
    return o


def loader_heavy(cfg):
    st = stream()
    first_read, last_use = {}, {}
    for n, e in enumerate(st):
        key = (e['u'], e['s']) if e['kind'] == 'W' else ('Q', e['s'])
        first_read.setdefault(key, n - 4)
        last_use[key] = n
    fills = [(0, s) for s in range(28)] + [(1, s) for s in range(28)] + [('Q', m) for m in range(7)]

    def target(f):
        return slot_u(*f) if f[0] != 'Q' else L_WQ + 4096 * f[1]
    prev_owner = {}
    for s in range(28):
        prev_owner[slot_u(0, s)] = (0, s)
    o = []
    vq = Q()
    issued = set()

    def issue(f):
        if f[0] == 'Q':
            m = f[1]
            o.extend([f"s_add_u32 m0, s{sT2}, {L_WQ + 4096 * m}", "s_nop 0",
                      f"buffer_load_dwordx4 v3, {srd(sQ)}, s{sRB + m} offen lds"])
        else:
            u, s = f
            o.extend([f"s_add_u32 m0, s{sM0}, {slot_u(u, s)}", f"s_add_u32 s{sSO}, s{sRA + (s >> 2)}, {(s & 3) * 16 * 3584 + u * 128}",
                      f"buffer_load_dwordx4 v2, {srd(sW)}, s{sSO} offen lds"])
        vq.issue(f)
        issued.add(f)

    def needed_before(nb):
        out = []
        for f in fills:
            keys = [f] if f[0] != 'Q' else [('Q', 4 * f[1] + x) for x in range(4)]
            if min(first_read[k] for k in keys) < nb:
                out.append(f)
        return out

    def wait_for(fs):
        for f in fs:
            assert f in issued, f
        k = vq.need(lambda t: t in fs)
        if k is not None:
            o.append(f"s_waitcnt vmcnt({k})")
    o += rot_table(sRA, 64 * 3584)
    for s in range(cfg.early_w):
        issue((0, s))
    o += code_pf(cfg)
    o += rot_table(sRB, 64 * 896, sT3) + a_init_regs() + pf_setup(cfg)
    if cfg.mid_w:
        o.append("s_barrier")
        for s in range(cfg.early_w, cfg.early_w + cfg.mid_w):
            issue((0, s))
    o.append("s_barrier")
    for s in range(cfg.early_w + cfg.mid_w, 12):
        issue((0, s))
    pts = BARRIERS + [10 ** 6 if cfg.nob8 else 223]
    o.append("s_barrier")
    wait_for(needed_before(pts[0]))
    o.append("s_barrier")
    done_upto = -1
    flags = set()
    for bi in range(len(pts)):
        cnt = 0
        for f in fills:
            if f in issued:
                continue
            t = target(f)
            own = prev_owner.get(t)
            if (own == f or own is None or last_use[own] <= done_upto) and cnt < cfg.caps[bi]:
                issue(f)
                cnt += 1
            else:
                break
        if cfg.ft == bi:
            o.extend([x.replace('@', 'h') for x in first_touch()])
            vq.issue('ft')
        pf = pf_w2(cfg, sum(cfg.pf_at[:bi]), cfg.pf_at[bi]) if cfg.pf_w2 else []
        o.extend(pf)
        for x in pf:
            if x.startswith("buffer_load"):
                vq.issue('pf')
        nxt = pts[bi + 1] if bi + 1 < len(pts) else 10 ** 9
        if cfg.sent_at == bi:
            o.extend(o_sentinel())
            vq.issue('s'), vq.issue('s')
        if cfg.diag4:
            o.extend(ts(cfg, 18 + 2 * bi))
        wait_for(needed_before(nxt))
        if cfg.diag4:
            o.extend(ts(cfg, 19 + 2 * bi))
        if bi == len(pts) - 1:
            break
        o.append("s_barrier")
        done_upto = pts[bi]
    assert len(issued) == len(fills)
    if cfg.nodma:
        k = [x for x, t in enumerate(o) if t == "s_barrier"][2 + (1 if cfg.mid_w else 0)]
        o = o[:k] + [t for t in o[k:] if not t.startswith("buffer_load")]
    o += res_load()
    if cfg.diag4:
        o += ts(cfg, 32) + ["s_waitcnt vmcnt(3)"] + ts(cfg, 33) + ["s_waitcnt vmcnt(1)"] + ts(cfg, 34) + ["s_waitcnt vmcnt(0)"] + ts(cfg, 35)
    return o


def a_setup(cfg):
    o = []
    a = o.append
    o += ids(cfg)
    if cfg.touch:
        for wv, items in enumerate((((26, 0), (26, 0x200000), (26, 0x400000)), ((26, 0x600000), (26, 0x800000), (22, 0)),
                                    ((20, 0), (12, 0), (6, 0)), ((24, 0), (16, 0), (18, 0)))):
            a(f"s_cmp_lg_u32 s{sWV}, {wv}")
            a(f"s_cbranch_scc1 L_touch{wv}")
            for k, (p, off) in enumerate(items):
                if off:
                    a(f"s_mov_b32 s{sT0}, {off}")
                    a(f"s_load_dword s{100 + (k & 1)}, s[{p}:{p + 1}], s{sT0}")
                else:
                    a(f"s_load_dword s{100 + (k & 1)}, s[{p}:{p + 1}], 0")
            a(f"L_touch{wv}:")
    a(f"s_bitcmp1_b32 s{sWV}, 0")
    a(f"s_cselect_b32 s{sW}, s18, s16")
    a(f"s_cselect_b32 s{sW + 1}, s19, s17")
    a(f"s_mov_b32 s{sW + 2}, {448 * 3584}")
    a(f"s_mov_b32 s{sW + 3}, 0x20000")
    a(f"s_mov_b32 s{sQ}, s6")
    a(f"s_mov_b32 s{sQ + 1}, s7")
    a(f"s_mov_b32 s{sQ + 2}, {448 * 896}")
    a(f"s_mov_b32 s{sQ + 3}, 0x20000")
    o += rest_srds(cfg)
    for r, lo, size in ((sW2, 20, 1792 * 896), (sWO, 12, 448 * 896)):
        o += [f"s_mov_b32 s{r}, s{lo}", f"s_mov_b32 s{r + 1}, s{lo + 1}", f"s_mov_b32 s{r + 2}, {size}",
              f"s_mov_b32 s{r + 3}, 0x20000"]
    a(f"v_lshrrev_b32 v4, 3, v{vLANE}")
    a(f"s_lshr_b32 s{sT0}, s{sWV}, 1")
    a(f"s_and_b32 s{sT1}, s{sWV}, 1")
    a(f"s_lshl_b32 s{sM0}, s{sWV}, 10")
    a("v_and_b32 v5, 2, v4")
    a(f"s_lshl_b32 s{sT1}, s{sT1}, 2")
    a(f"v_or_b32 v5, s{sT1}, v5")
    a(f"v_and_b32 v6, 7, v{vLANE}")
    a("v_xor_b32 v5, v5, v6")
    a(f"s_mul_i32 s{sT0}, s{sT0}, {8 * 3584}")
    a(f"s_lshl_b32 s{sT1}, s{sFS}, 8")
    a(f"s_add_u32 s{sT0}, s{sT0}, s{sT1}")
    a("v_mul_u32_u24 v4, 3584, v4")
    a("v_lshl_add_u32 v2, v5, 4, v4")
    a(f"v_add_u32 v2, s{sT0}, v2")
    a(f"v_lshrrev_b32 v4, 2, v{vLANE}")
    a(f"v_and_b32 v5, 3, v{vLANE}")
    a("v_lshlrev_b32 v5, 4, v5")
    a("v_mad_u32_u24 v7, v4, 56, v5")
    a("v_mul_u32_u24 v4, 896, v4")
    a(f"s_mul_i32 s{sT0}, s{sJ}, 56")
    a(f"v_add3_u32 v3, v4, v5, s{sT0}")
    a(f"s_lshl_b32 s{sT2}, s{sWV}, 10")
    a(f"s_mul_i32 s{sT3}, s{sWV}, {16 * 896}")
    return o


AS0, AS1, AP, AO, AQ, AK, AV = 16, 32, 48, 64, 128, 160, 192
NB = [2]
KVC = [0]
vA16, vKVO = 8, 9


def a_init_regs():
    o = [f"v_mov_b32 v{r}, 0" for r in list(range(AO, AO + 64)) + list(range(AP, AP + 8)) + [AS1 + 14, AS1 + 15] +
         list(range(AV + 8 * (NB[0] - 1), AV + 8 * NB[0]))]
    o.append(f"v_lshlrev_b32 v{vA16}, 4, v{vLANE}")
    o.append("v_mov_b32 v56, 0")
    return o


vOW = 224


def o_sentinel():
    o = []
    a = o.append
    a(f"s_lshl_b32 s{sT0}, s{sI}, 2")
    a(f"s_add_u32 s{sT0}, s{sT0}, s{sWV}")
    a(f"s_lshl_b32 s{sOO}, s{sT0}, 4")
    a(f"s_add_u32 s{sOO}, s{sOO}, s{sJ}")
    a(f"s_lshl_b32 s{sOO}, s{sOO}, 11")
    a(f"s_add_u32 s{sOO}, s{sOO}, {WS_O}")
    for r in range(4):
        a(f"v_mov_b32 v{240 + r}, -1")
    for u in range(2):
        a(f"buffer_store_dwordx4 {vr(240, 4)}, v{vA16}, {srd(sWS)}, s{sOO} offen offset:{1024 * u} sc1")
    return o


def loader_light(cfg):
    o = []
    a = o.append
    a(f"s_cmp_eq_u32 s{sP}, 0")
    a(f"s_cselect_b32 s{sW}, s8, s10")
    a(f"s_cselect_b32 s{sW + 1}, s9, s11")
    a(f"s_mov_b32 s{sW + 2}, {448 * 56}")
    a(f"s_mul_i32 s{sT1}, s{sWV}, 896")
    o += rot_table(sRA, 64 * 56, sT1)
    for m in range(7):
        a(f"s_add_u32 m0, s{sT2}, {L_R + 4096 * m}")
        a("s_nop 0")
        a(f"buffer_load_dwordx4 v7, {srd(sW)}, s{sRA + m} offen lds")
    o += code_pf(cfg)
    o += rot_table(sRB, 64 * 896, sT3) + a_init_regs() + pf_setup(cfg)
    if cfg.mid_w:
        a("s_barrier")
    a("s_barrier")
    a(f"s_cmp_lg_u32 s{sWV}, 0")
    a("s_cbranch_scc1 L_noclr")
    a(f"s_lshl_b32 s{sT0}, s{sI}, 14")
    a(f"s_lshl_b32 s{sT1}, s{sP}, 13")
    a(f"s_add_u32 s{sT0}, s{sT0}, s{sT1}")
    a(f"s_add_u32 s{sT0}, s{sT0}, {WS_FLAG}")
    a(f"v_lshlrev_b32 v4, 7, v{vLANE}")
    a(f"buffer_store_dword v{AP}, v4, {srd(sWS)}, s{sT0} offen sc1")
    a(f"v_mov_b32 v4, {L_KVC}")
    a(f"ds_write_b32 v4, v{AP}")
    a("L_noclr:")
    o += o_sentinel()
    a("s_barrier")
    a("s_waitcnt vmcnt(0) lgkmcnt(0)")
    a("s_barrier")
    a("s_barrier")
    for m in range(7):
        a(f"s_add_u32 m0, s{sT2}, {L_WQ + 4096 * m}")
        a("s_nop 0")
        a(f"buffer_load_dwordx4 v3, {srd(sQ)}, s{sRB + m} offen lds")
    if cfg.ft >= 0:
        o += [x.replace('@', 'l') for x in first_touch()] + ["s_waitcnt vmcnt(0)"]
    if cfg.pf_w2:
        o += pf_w2(cfg, 0, 4)
    a(f"s_waitcnt vmcnt({1 if cfg.pf_w2 else 0})")
    if cfg.pf_w2:
        o += pf_w2(cfg, 4, 4)
    a("s_barrier")
    return o


def kv_load(kind, buf, rel):
    base = (AK if kind == 'K' else AV) + 8 * buf
    off = 0 if kind == 'K' else 2048
    return [f"buffer_load_dwordx4 {vr(base + 4 * u, 4)}, v{vA16}, {srd(sWS)}, s{rel} offen offset:{off + 1024 * u} sc1"
            for u in range(2)]


THRESH = 96.0 * 96.0 / 1.02


def a_pre_attn(cfg):
    o = []
    a = o.append
    o += ts(cfg, 1)
    a("v_mov_b32 v4, 128")
    o += poll("L_pkv", 5, 4, sDBG, ["v_cmp_eq_u32 vcc, 0, v5", "s_nop 0", "s_cmp_lg_u64 vcc, 0"], sleep=cfg.sl_kv)
    o += ts(cfg, 2)
    a(f"v_lshlrev_b32 v4, 2, v{vLANE}")
    a(f"s_mov_b32 s{sT0}, {WS_KMAX}")
    a(f"buffer_load_dword v5, v4, {srd(sWS)}, s{sT0} offen sc1")
    a(f"s_lshl_b32 s{sSO}, s{sWV}, 16")
    if cfg.kvc:
        for kt in range(NB[0] - 1):
            o += kv_load('K', kt, sSO) + kv_load('V', kt, sSO) + [f"s_add_u32 s{sSO}, s{sSO}, 4096"]
        nkv = 4 * NB[0] - 4
    else:
        o += kv_load('K', 0, sSO)
        for kt in range(NB[0] - 1):
            o += kv_load('V', kt, sSO) + [f"s_add_u32 s{sSO}, s{sSO}, 4096"] + kv_load('K', kt + 1, sSO)
        nkv = 4 * NB[0] - 2
    npf = 0
    if cfg.pf_kv:
        a(f"s_lshr_b32 s{sT0}, s2, 1")
        a(f"s_and_b32 s{sT0}, s{sT0}, 0x7c")
        a(f"s_add_u32 s{sT0}, s{sT0}, s{sWV}")
        a(f"s_lshl_b32 s{sT0}, s{sT0}, 11")
        a("s_mov_b64 exec, 0xffff")
        a(f"buffer_load_dword v236, v9, {srd(sWS)}, s{sT0} offen sc1")
        a("s_mov_b64 exec, -1")
        npf = 1
    for sg in range(4):
        a(f"s_add_u32 s{sT0}, s{sWV}, {1 + sg}")
        a(f"s_and_b32 s{sT0}, s{sT0}, 3")
        a(f"s_lshl_b32 s{sT0}, s{sT0}, 11")
        a(f"s_add_u32 s{sT0}, s{sT0}, {L_QX}")
        a(f"v_add_u32 v{10 + sg}, s{sT0}, v{vA16}")
    for sg in range(4):
        a(f"s_add_u32 s{sT0}, s{sWV}, {1 + sg}")
        a(f"s_and_b32 s{sT0}, s{sT0}, 3")
        a(f"s_mul_i32 s{sT0}, s{sT0}, 12288")
        a(f"v_add_u32 v{vOW + sg}, s{sT0}, v{vA16}")
    a(f"v_lshrrev_b32 v6, 5, v{vLANE}")
    a(f"v_and_b32 v7, 31, v{vLANE}")
    a("v_lshlrev_b32 v7, 2, v7")
    a("v_lshl_add_u32 v6, v6, 8, v7")
    a(f"s_waitcnt vmcnt({nkv + npf}) lgkmcnt(0)")
    o += wave_max_to_sgpr(5, sKMAX)
    o += ts(cfg, 3)
    if not cfg.nob8:
        a(f"s_cmp_eq_u32 s{sNT}, 7")
        a("s_cbranch_scc1 L_A_b9")
        a("s_barrier")
        a("L_A_b9:")
    a("s_barrier")
    o += ts(cfg, 4)
    nb = NB[0]
    for sg in range(4):
        a(f"ds_read_b128 {vr(AQ + 8 * sg, 4)}, v{10 + sg}")
        a(f"ds_read_b128 {vr(AQ + 8 * sg + 4, 4)}, v{10 + sg} offset:1024")
    a(f"s_waitcnt vmcnt({(4 * nb - 8 if cfg.kvc else 4 * nb - 4) + npf}) lgkmcnt(6)")
    o += [mfma(AS0, AK, AQ, first=True), mfma(AS0, AK + 4, AQ + 4)]
    a("s_barrier")
    a(f"ds_read_b32 v4, v6 offset:{L_N2}")
    a(f"ds_read_b32 v5, v6 offset:{L_N2 + 512}")
    a(f"s_mov_b32 s{sCNT}, {16 // nb - 1}")
    a(f"v_mov_b32 v10, {L_CNT}")
    a("v_mov_b32 v11, 1")
    a("s_waitcnt lgkmcnt(0)")
    a("v_max_f32 v4, v4, v5")
    a(f"v_mul_f32 v4, s{sKMAX}, v4")
    a(f"v_cmp_nge_f32 vcc, {f2u(-1.0 if cfg.force_fallback else THRESH):#x}, v4")
    a("s_nop 1")
    a("s_cbranch_vccnz L_fallback")
    return o


def fallback(cfg):
    o = ["L_fallback:", "s_waitcnt vmcnt(0)"]
    a = o.append
    M = 228
    KB = 240
    for sg in range(4):
        a(f"v_mov_b32 v{M + sg}, 0xff800000")
    a(f"s_mov_b32 s{sT0}, 0")
    a("L_fb_loop:")
    for u in range(2):
        a(f"buffer_load_dwordx4 {vr(KB + 4 * u, 4)}, v{vA16}, {srd(sWS)}, s{sT0} offen offset:{1024 * u} sc1")
    a("s_waitcnt vmcnt(0)")
    for sg in range(4):
        a(mfma(AS0, KB, AQ + 8 * sg, first=True))
        a(mfma(AS0, KB + 4, AQ + 8 * sg + 4))
        a("s_nop 11")
        for r in range(0, 16, 2):
            a(f"v_max3_f32 v{M + sg}, v{M + sg}, v{AS0 + r}, v{AS0 + r + 1}")
    a(f"s_add_u32 s{sT0}, s{sT0}, 4096")
    a(f"s_cmp_lt_u32 s{sT0}, {64 * 4096}")
    a("s_cbranch_scc1 L_fb_loop")
    for sg in range(4):
        o += half_sum(M + sg, 4, "v_max_f32")
        a(f"v_cvt_pk_bf16_f32 v4, -v{M + sg}, -v{M + sg}")
        a("v_lshlrev_b32 v4, 16, v4")
        a(f"v_sub_f32 v4, -v{M + sg}, v4")
        a(f"v_cvt_pk_bf16_f32 v4, -v{M + sg}, v4")
        a(f"v_cndmask_b32 v{AQ + 8 * sg + 6}, v{AQ + 8 * sg + 6}, v4, s[{sUP}:{sUP + 1}]")
    a("s_nop 1")
    o += [mfma(AS0, AK, AQ, first=True), mfma(AS0, AK + 4, AQ + 4), "s_nop 11"]
    a("s_branch L_attn_loop")
    return o


def o_writes(sg):
    return [f"ds_write_b128 v{vOW + sg}, {vr(AO + 16 * sg + 4 * u, 4)} offset:{L_ORED + sg * 4096 + u * 1024}" for u in range(4)]


def attn_block(n, last=False, peel=None):
    nb = NB[0]
    end = 4 * nb - 1
    X, Y = (AS0, AS1) if n % 2 == 0 else (AS1, AS0)
    q, qn, qp = n & 3, (n + 1) & 3, (n - 1) & 3
    kb = AK + 8 * (((n + 1) >> 2) % nb)
    vb = AV + 8 * (((n - 1) >> 2) % nb)
    E = lambda i: f"v_exp_f32 v{X + i}, v{X + i}"
    C = lambda i: f"v_cvt_pk_bf16_f32 v{AP + i}, v{X + 2 * i}, v{X + 2 * i + 1}"
    Cp7 = f"v_cvt_pk_bf16_f32 v{AP + 7}, v{Y + 14}, v{Y + 15}"
    QK0, QK1 = mfma(Y, kb, AQ + 8 * qn, first=True), mfma(Y, kb + 4, AQ + 8 * qn + 4)
    PV0, PV1 = mfma(AO + 16 * qp, vb, AP), mfma(AO + 16 * qp, vb + 4, AP + 4)
    if last:
        return [Cp7, PV0, "s_nop 0", PV1]
    if peel and n == end:
        W = o_writes(1)
        return ([Cp7, E(0), E(1), PV0, E(2), E(3), E(4), PV1, E(5), W[0], E(6), C(0), E(7), W[1], E(8), C(1), E(9), W[2],
                 E(10), C(2), E(11), W[3], E(12), C(3), E(13), C(4), E(14), C(5), E(15), C(6)])

    def wait(tag, steady):
        if not peel:
            return [f"s_waitcnt vmcnt({steady})"]
        k = peel.need(lambda t: t == tag)
        return [] if k is None else [f"s_waitcnt vmcnt({k})"]
    o = [Cp7]
    kvc = KVC[0]
    if q == 3 and not kvc:
        o += wait(('K', (n >> 2) + 1), 4 * nb - 6)
    s0 = [f"s_add_u32 s{sSO}, s{sSO}, 4096"] if kvc and q == 1 and not peel else []
    s1 = []
    if n == end and not peel:
        s0, s1 = [f"s_sub_u32 s{sCNT}, s{sCNT}, 1"], [f"s_cmp_lg_u32 s{sCNT}, 0"]
    o += [QK0] + s0 + [E(0), E(1), E(2), QK1] + s1
    o += [E(3), E(4), E(5)]
    if q == 1 and not kvc:
        o += wait(('V', n >> 2), 4 * nb - 4)
    o += [PV0, E(6), E(7), E(8), PV1]
    if q == 2 and kvc == 1 and not (peel and (n >> 2) + 1 >= nb):
        o += wait(('V', (n >> 2) + 1), 4 * nb - 8)
    if kvc:
        if q == 0 and kvc == 2 and (n >> 2) + 1 < nb + (0 if peel else 1):
            o += wait(('V', (n >> 2) + 1), 4 * nb - 12)
        if q == 0 and not (peel and n):
            b = ((n >> 2) - 1) % nb
            o += kv_load('K', b, sSO) + kv_load('V', b, sSO)
            if peel:
                for _ in range(4):
                    peel.issue(('V', nb - 1))
    else:
        if q == 0 and not (peel and n):
            o += kv_load('V', ((n >> 2) - 1) % nb, sSO)
            if peel:
                peel.issue(('V', nb - 1)), peel.issue(('V', nb - 1))
        if q == 3 and not peel:
            o += [f"s_add_u32 s{sSO}, s{sSO}, 4096"] + kv_load('K', (n >> 2) % nb, sSO)
    tail = [E(9), C(0), E(10), C(1), E(11), C(2), E(12), C(3), E(13), C(4), E(14), C(5), E(15), C(6)]
    if peel and n == end - 1:
        W = o_writes(0)
        tail = tail[:2] + [W[0]] + tail[2:5] + [W[1]] + tail[5:8] + [W[2]] + tail[8:11] + [W[3]] + tail[11:]
    return o + tail


def attention(cfg):
    nb = NB[0]
    o = []
    loop = []
    for n in range(4 * nb):
        loop += attn_block(n)
    assert cfg.kvc
    loop += ["s_cbranch_scc1 L_attn_loop"]
    pq = Q()
    for kt in range(nb - 1):
        for t in ([('V', kt)] * 4 if cfg.kvc else (('V', kt), ('V', kt), ('K', kt + 1), ('K', kt + 1))):
            pq.issue(t)
    post = []
    for n in range(4 * nb):
        post += attn_block(n, peel=pq)
    post += attn_block(4 * nb, last=True) + o_writes(2)
    return o, loop, post


def lds_wait4(label, first, sleep, d=4):
    return ([f"s_mov_b32 s{sCNT}, {1 << 20}"] + first + [f"{label}:", "s_waitcnt lgkmcnt(0)"] + (["s_setprio 1"] if sleep else []) +
            [f"v_readfirstlane_b32 s{sT0}, v{d}", "s_setprio 0" if sleep else "s_nop 0", f"s_cmp_ge_u32 s{sT0}, 4", f"s_cbranch_scc1 {label}_ok", f"s_sub_u32 s{sCNT}, s{sCNT}, 1",
            f"s_cbranch_scc1 {label}_ok"] + ([f"s_sleep {sleep}"] if sleep else []) +
            [f"ds_read_b32 v{d}, v10", f"s_branch {label}", f"{label}_ok:"])


def a_post(cfg):
    o = []
    a = o.append
    if cfg.nob10:
        o += ts(cfg, 5)
        o += lds_wait4("L_w4", ["s_mov_b64 exec, 1", "ds_add_u32 v10, v11", "s_mov_b64 exec, -1", "ds_read_b32 v4, v10"], 0)
    else:
        a("s_waitcnt lgkmcnt(0)")
        o += ts(cfg, 5)
        a("s_barrier")
    o += ts(cfg, 6)
    R = 128
    for x in range(12):
        a(f"ds_read_b128 {vr(R + 4 * x, 4)}, v{vOW + 3} offset:{L_ORED + x * 1024}")
    O = AO + 48
    order = [3, 0, 1, 2]
    lq = Q()
    o = o[:len(o) - 12]
    a = o.append
    for u in order:
        for sg in range(3):
            a(f"ds_read_b128 {vr(R + 16 * sg + 4 * u, 4)}, v{vOW + 3} offset:{L_ORED + (4 * sg + u) * 1024}")
            lq.issue((sg, u))
    for u in order:
        a(f"s_waitcnt lgkmcnt({lq.need(lambda t: t == (1, u))})")
        for r in range(4):
            a(f"v_add_f32 v{R + 4 * u + r}, v{R + 4 * u + r}, v{R + 16 + 4 * u + r}")
        a(f"s_waitcnt lgkmcnt({lq.need(lambda t: t == (2, u))})")
        for r in range(4):
            a(f"v_add_f32 v{O + 4 * u + r}, v{O + 4 * u + r}, v{R + 32 + 4 * u + r}")
        for r in range(4):
            a(f"v_add_f32 v{O + 4 * u + r}, v{O + 4 * u + r}, v{R + 4 * u + r}")
        if u == 3:
            a(f"v_mov_b32 v4, v{O + 12}")
            a(f"v_mov_b32 v5, v{O + 12}")
            a("s_nop 1")
            a("v_permlane32_swap_b32 v4, v5")
            a("v_rcp_f32 v5, v5")
            a("s_nop 0")
            a(f"v_cndmask_b32 v4, v5, 0, s[{sUP}:{sUP + 1}]")
        for r in range(4):
            a(f"v_mul_f32 v{O + 4 * u + r}, v{O + 4 * u + r}, v{5 if u < 3 else 4}")
        for r in range(2):
            a(f"v_cvt_pk_bf16_f32 v{AP + 2 * u + r}, v{O + 4 * u + 2 * r}, v{O + 4 * u + 2 * r + 1}")
        if u in (1, 2):
            b = u - 1
            a(f"buffer_store_dwordx4 {vr(AP + 4 * b, 4)}, v{vA16}, {srd(sWS)}, s{sOO} offen offset:{1024 * b} sc1")
    o += ts(cfg, 7)
    a(f"s_cmp_eq_u32 s{sNT}, 7")
    a("s_cbranch_scc1 L_fin")
    return o


vXRES = 60


BFP = [False]


def res_load():
    o = []
    a = o.append
    a(f"v_lshrrev_b32 v57, 3, v{vLANE}")
    a(f"v_and_b32 v58, 7, v{vLANE}")
    a("v_mul_u32_u24 v56, 896, v57")
    a("v_lshl_add_u32 v56, v58, 4, v56")
    a(f"s_lshl_b32 s{sT0}, s{sI}, 7")
    a(f"s_lshl_b32 s{sT1}, s{sMT}, 6")
    a(f"s_add_u32 s{sT0}, s{sT0}, s{sT1}")
    a(f"s_lshl_b32 s{sT1}, s{sWV}, 3")
    a(f"s_add_u32 s{sT0}, s{sT0}, s{sT1}")
    a(f"s_mul_i32 s{sT0}, s{sT0}, 896")
    a(f"s_lshl_b32 s{sT2}, s{sNC}, 7")
    a(f"s_add_u32 s{sT0}, s{sT0}, s{sT2}")
    a(f"v_add_u32 v56, s{sT0}, v56")
    a(f"buffer_load_dwordx4 {vr(vXRES, 4)}, v56, {srd(sX)}, 0 offen")
    a(f"v_add_u32 v57, s{sT1}, v57")
    a(f"v_mul_u32_u24 v57, {144 if BFP[0] else 272}, v57")
    a(f"v_lshl_add_u32 v57, v58, {4 if BFP[0] else 5}, v57")
    a(f"v_add_u32 v57, {L_RING}, v57")
    a(f"v_add_u32 v58, {2 * RING}, v57")
    return o


def final(cfg):
    o = ["L_final:", "s_barrier"]
    a = o.append
    o += ts(cfg, 12)
    R = 64
    if cfg.bfp:
        for kq in range(4):
            a(f"ds_read_b128 {vr(R + 4 * kq, 4)}, v{57 + (kq >> 1)} offset:{(kq & 1) * RING}")
        a("v_mov_b32 v6, 0x00003f80")
        a("v_mov_b32 v7, 0x3f800000")
    else:
        for kq in range(4):
            for u in range(2):
                a(f"ds_read_b128 {vr(R + 8 * kq + 4 * u, 4)}, v{57 + (kq >> 1)} offset:{(kq & 1) * RING + 16 * u}")
    a("s_waitcnt vmcnt(0)")
    for r in range(4):
        a(f"v_lshlrev_b32 v{8 + 2 * r}, 16, v{vXRES + r}")
        a(f"v_and_b32 v{9 + 2 * r}, s{sHI}, v{vXRES + r}")
    for kq in range(4):
        if cfg.bfp:
            a(f"s_waitcnt lgkmcnt({3 - kq})")
            for r in range(8):
                a(f"v_dot2c_f32_bf16 v{8 + r}, v{R + 4 * kq + r // 2}, v{6 + (r & 1)}")
        else:
            a(f"s_waitcnt lgkmcnt({6 - 2 * kq})")
            for r in range(8):
                a(f"v_add_f32 v{8 + r}, v{8 + r}, v{R + 8 * kq + r}")
    for r in range(4):
        a(f"v_cvt_pk_bf16_f32 v{vXRES + r}, v{8 + 2 * r}, v{9 + 2 * r}")
    a(f"buffer_store_dwordx4 {vr(vXRES, 4)}, v56, {srd(sOUT)}, 0 offen {('', 'sc1', 'sc0 sc1', 'nt')[cfg.outsc]}")
    a("L_fin:")
    if cfg.diag:
        o += ts(cfg, 15)
        o += [f"s_memrealtime s[{sTS}:{sTS + 1}]", "s_waitcnt lgkmcnt(0)", f"v_writelane_b32 v{vTS}, s{sTS}, 17"]
        a(f"s_lshl_b32 s{sT0}, s2, 3")
        a(f"s_add_u32 s{sT0}, s{sT0}, s{sWV}")
        a(f"s_lshl_b32 s{sT0}, s{sT0}, 8")
        a(f"s_add_u32 s{sT0}, s{sT0}, {WS_DIAG}")
        a(f"v_lshlrev_b32 v4, 2, v{vLANE}")
        a(f"buffer_store_dword v{vTS}, v4, {srd(sWS)}, s{sT0} offen")
        if cfg.dbgout >= 0:
            a(f"s_lshl_b32 s{sT0}, s2, 3")
            a(f"s_add_u32 s{sT0}, s{sT0}, s{sWV}")
            a(f"s_cmp_lg_u32 s{sT0}, {cfg.dbgout}")
            a("s_cbranch_scc1 L_end")
            a(f"v_readlane_b32 s{sT1}, v{vTS}, 0")
            a(f"v_readlane_b32 s{sT2}, v{vTS}, 16")
            a(f"v_readlane_b32 s{sT3}, v{vTS}, 17")
            a("s_nop 3")
            a(f"s_sub_u32 s{sT2}, s{sT3}, s{sT2}")
            a(f"v_subrev_u32 v5, s{sT1}, v{vTS}")
            a(f"v_writelane_b32 v5, s{sT2}, 14")
            a("s_mov_b64 exec, 0xfffe")
            a(f"buffer_store_dword v5, v4, {srd(sDBG)}, 0 offen")
    a("L_end:")
    a("s_endpgm")
    return o


def g_front(cfg):
    o = ["L_G:"] + ids(cfg)
    a = o.append
    if cfg.diag3:
        o += ts(cfg, 34, True)
    o += rest_srds(cfg)
    a(f"s_mov_b32 s{sH}, s26")
    a(f"s_mov_b32 s{sH + 1}, s27")
    a(f"s_cmp_eq_u32 s{sNT}, 7")
    a(f"s_cselect_b32 s{sH + 2}, 0, {WS_END}")
    a(f"s_mov_b32 s{sH + 3}, 0x20000")
    a(f"s_mul_i32 s{sHO}, s{sT0}, 112")
    a(f"s_lshl3_add_u32 s{sHO}, s{sFS}, s{sHO}")
    a(f"s_lshl_b32 s{sHO}, s{sHO}, 10")
    a(f"s_add_u32 s{sHO}, s{sHO}, {WS_H}")
    if cfg.s2:
        for x in range(8):
            a(f"s_add_u32 s{sHS[x]}, s{sHO}, {1024 * x}")
    a(f"v_and_b32 v8, 31, v{vLANE}")
    a(f"v_lshrrev_b32 v9, 5, v{vLANE}")
    a("v_bfe_u32 v10, v8, 1, 3")
    a("v_xor_b32 v10, v10, v9")
    a("v_lshlrev_b32 v10, 4, v10")
    a("v_lshl_add_u32 v10, v8, 7, v10")
    a(f"v_add_u32 v20, s{sM0}, v10")
    for k in range(1, 4):
        a(f"v_xor_b32 v{20 + k}, {32 * k}, v20")
    a(f"v_mov_b32 v{vONE}, 0x3f803f80")
    for r in range(4):
        a(f"v_mov_b32 v{vT + r}, 0")
    a(f"v_lshlrev_b32 v{vL16}, 4, v{vLANE}")
    a("s_waitcnt lgkmcnt(0)")

    def dots(L):
        d = []
        for r in range(16):
            x = XC + 16 * L + r
            d += [f"v_dot2c_f32_bf16 v{vT + (r & 1)}, v{x}, v{vONE}", f"v_dot2c_f32_bf16 v{vT + 2 + (r & 1)}, v{x}, v{x}"]
        return d
    if cfg.xd >= 7:
        a("s_barrier")
    for L in range(7):
        a(f"s_waitcnt vmcnt({4 * (min(L + cfg.xd, 7) - 1 - L)})")
        if cfg.diag3:
            o += ts(cfg, 26 + L, True)
        for k in range(4):
            a(f"ds_read_b128 {vr(XC + 16 * L + 4 * k, 4)}, v{20 + k} offset:{L * 4096}")
        if L == 0 and cfg.mid_w:
            a("s_barrier")
        if L + cfg.xd < 7:
            o += x_dma(L + cfg.xd)
            if L + cfg.xd == 6:
                a("s_barrier")
                o += ts(cfg, 1, True)
        if L:
            a("s_waitcnt lgkmcnt(4)")
            o += dots(L - 1)
    a(f"v_bfe_u32 v8, v{vLANE}, 4, 1")
    a(f"v_bfe_u32 v10, v{vLANE}, 2, 2")
    a(f"v_and_b32 v11, 3, v{vLANE}")
    a("v_lshlrev_b32 v11, 3, v11")
    a("v_lshl_add_u32 v12, v9, 3, v10")
    a("v_lshlrev_b32 v12, 6, v12")
    a("v_lshl_add_u32 v12, v8, 5, v12")
    a(f"v_add_u32 v{vQR}, v12, v11")
    a("v_lshrrev_b32 v12, 1, v10")
    a("v_lshl_or_b32 v12, v8, 1, v12")
    a("v_lshl_add_u32 v12, v12, 5, v11")
    a("v_lshl_add_u32 v12, v10, 7, v12")
    a("v_lshl_add_u32 v12, v8, 10, v12")
    a("v_lshl_add_u32 v12, v9, 11, v12")
    a("s_waitcnt lgkmcnt(0)")
    a("s_barrier")
    o += ts(cfg, 14, True)
    a(f"v_add_u32 v2, {L_R}, v12")
    for k in range(1, 4):
        a(f"v_xor_b32 v{2 + k}, {32 * k}, v2")
    o += dots(6)
    a("s_nop 2")
    a(f"v_add_f32 v{vMEAN}, v{vT}, v{vT + 1}")
    a(f"v_add_f32 v{vC}, v{vT + 2}, v{vT + 3}")
    a(f"v_mov_b32 v{vT}, v{vMEAN}")
    a(f"v_mov_b32 v{vT + 1}, v{vC}")
    a("s_nop 0")
    a(f"v_permlane32_swap_b32 v{vMEAN}, v{vT}")
    a(f"v_permlane32_swap_b32 v{vC}, v{vT + 1}")
    a(f"v_add_f32 v{vMEAN}, v{vMEAN}, v{vT}")
    a(f"v_add_f32 v{vC}, v{vC}, v{vT + 1}")
    a(f"v_mul_f32 v{vMEAN}, {f2u(1.0 / 448):#x}, v{vMEAN}")
    a(f"v_mul_f32 v{vC}, {f2u(1.0 / 448):#x}, v{vC}")
    a(f"v_fma_f32 v{vC}, -v{vMEAN}, v{vMEAN}, v{vC}")
    a(f"v_max_f32 v{vC}, 0, v{vC}")
    a(f"v_add_f32 v{vC}, {f2u(1e-5):#x}, v{vC}")
    a(f"v_rsq_f32 v{vRSTD}, v{vC}")
    a("s_nop 0")
    a(f"v_mul_f32 v{vK1}, {f2u(-math.log2(math.e)):#x}, v{vRSTD}")
    a(f"s_cmp_eq_u32 s{sNT}, 7")
    a("s_cbranch_scc1 L_G_light")
    a(f"v_add_u32 v{vQR}, {L_WQ}, v{vQR}")
    o += center_all(cfg.pre_c)
    a("s_barrier")
    o += ts(cfg, 2, True)
    return o


def center_all(nreg=112):
    o = [f"v_mov_b32 v6, 0x00003f80", f"v_mov_b32 v7, 0x3f800000", f"v_sub_f32 v{vKQ}, 0, v{vMEAN}"]
    a = o.append
    for r in range(nreg + 2):
        if r < nreg:
            t = vT + 2 * (r % 3)
            a(f"v_dot2_f32_bf16 v{t}, v{XC + r}, v6, v{vKQ}")
            a(f"v_dot2_f32_bf16 v{t + 1}, v{XC + r}, v7, v{vKQ}")
        else:
            a("s_nop 1")
        if r >= 2:
            tp = vT + 2 * ((r - 2) % 3)
            a(f"v_cvt_pk_bf16_f32 v{XC + r - 2}, v{tp}, v{tp + 1}")
    return o


def g_light(cfg):
    o = ["L_G_light:"]
    a = o.append
    a(f"v_add_u32 v{vQR}, {L_R}, v{vQR}")
    a("s_barrier")
    o += ts(cfg, 2, True)
    for n in range(4):
        o += frag_reads(dict(kind='Q', s=n), n, None)
    for r in range(4):
        a(f"v_mov_b32 v{vHQ + r}, v{vONE}")
    lq = Q()
    for n in range(4):
        lq.issue(n), lq.issue(n)
    for n in range(28):
        k = lq.need(lambda t: t == n)
        a(f"s_waitcnt lgkmcnt({k})")
        a(mfma(A0 + 32, FR + 4 * (n & 3), XC + 4 * n, first=(n == 0)))
        a(mfma(A0 + 48, FR + 4 * (n & 3), vHQ, first=(n == 0)))
        if n + 4 < 28:
            o += frag_reads(dict(kind='Q', s=n + 4), n & 3, None)
            lq.issue(n + 4), lq.issue(n + 4)
    a("s_nop 11")
    for r in range(16):
        a(f"v_fma_f32 v{A0 + 32 + r}, -v{vMEAN}, v{A0 + 48 + r}, v{A0 + 32 + r}")
    return o


def g_restart():
    o = []
    for n in range(4):
        o += frag_reads(dict(kind='Q', s=n), n, None)
    return o + ["s_waitcnt lgkmcnt(4)", "s_branch L_qpass"]


def proj_scale(scale_reg_setup):
    AC = A0 + 32
    o = list(scale_reg_setup)
    o.append(f"v_cndmask_b32 v{vKQ2}, v{vKQ}, 0, s[{sUP}:{sUP + 1}]")
    for r in range(16):
        o.append(f"v_mul_f32 v{AC + r}, v{AC + r}, v{vKQ if r < 12 else vKQ2}")
    return o


def sumsq():
    AC = A0 + 32
    o = [f"v_mul_f32 v{vT}, v{AC}, v{AC}", f"v_mul_f32 v{vT + 1}, v{AC + 1}, v{AC + 1}"]
    for r in range(2, 16):
        o.append(f"v_fmac_f32 v{vT + (r & 1)}, v{AC + r}, v{AC + r}")
    o.append(f"v_add_f32 v{vT}, v{vT}, v{vT + 1}")
    o += half_sum(vT, vT + 1)
    return o


def pack16(dst):
    AC = A0 + 32
    return [f"v_cvt_pk_bf16_f32 v{dst + r}, v{AC + 2 * r}, v{AC + 2 * r + 1}" for r in range(8)]


def g_after_pass(cfg):
    o = []
    a = o.append
    P = A4
    o += ts(cfg, 3, True)
    cq = math.log2(math.e) / math.sqrt(28.0)
    a(f"s_lshl_b32 s{sT0}, s{sTT}, 11")
    a(f"s_add_u32 s{sT0}, s{sT0}, {L_QX}")
    a(f"v_add_u32 v6, s{sT0}, v{vL16}")
    a(f"s_lshl_b32 s{sT0}, s{sTT}, 8")
    a(f"v_lshl_add_u32 v7, v{vLANE}, 2, s{sT0}")
    a("s_nop 5")
    sc, pk = proj_scale([]), pack16(P)
    o[-1:] = [f"v_mul_f32 v{vKQ}, {f2u(cq):#x}, v{vRSTD}", sc[0], f"v_mov_b32 v{vT}, {L_CNT}", f"v_mov_b32 v{vT + 1}, 0",
              f"ds_write_b32 v{vT}, v{vT + 1}", "s_nop 1"]
    o += sc[1:9] + pk[:4] + [f"ds_write_b128 v6, {vr(P, 4)}"] + sc[9:] + pk[4:] + [f"ds_write_b128 v6, {vr(P + 4, 4)} offset:1024"]
    a("s_waitcnt lgkmcnt(0)")
    a("s_barrier")
    o += sumsq()
    a(f"ds_write_b32 v7, v{vT} offset:{L_N2}")
    a("s_waitcnt lgkmcnt(0)")
    a("s_barrier")
    o += ts(cfg, 4, True) + ts_move(cfg)
    a(f"s_cmp_eq_u32 s{sNT}, 7")
    a("s_cbranch_scc1 L_fin")
    return o


def kv_epi(cfg):
    o = ["L_kv_epi:"]
    a = o.append
    P = A4
    AC = A0 + 32
    a(f"s_lshl_b32 s{sT1}, s{sI}, 2")
    a(f"s_add_u32 s{sT1}, s{sT1}, s{sTT}")
    a(f"s_lshl_b32 s{sT2}, s{sT1}, 12")
    o += proj_scale([f"v_mov_b32 v{vKQ}, v{vRSTD}"])
    a(f"s_cmp_eq_u32 s{sP}, 1")
    a("s_cbranch_scc1 L_v_epi")
    o += pack16(P)
    a(f"v_cndmask_b32 v{P + 6}, v{P + 6}, v{vONE}, s[{sUP}:{sUP + 1}]")
    o += sumsq()
    a(f"buffer_store_dwordx4 {vr(P, 4)}, v{vL16}, {srd(sWS)}, s{sT2} offen sc1")
    a(f"buffer_store_dwordx4 {vr(P + 4, 4)}, v{vL16}, {srd(sWS)}, s{sT2} offen offset:1024 sc1")
    o += wave_max_to_sgpr(vT, sT3)
    a(f"s_lshl_b32 s{sT1}, s{sT1}, 2")
    a(f"s_add_u32 s{sT1}, s{sT1}, {WS_KMAX}")
    a("v_mov_b32 v6, 0")
    a(f"v_mov_b32 v7, s{sT3}")
    a("s_mov_b64 exec, 1")
    a(f"buffer_store_dword v7, v6, {srd(sWS)}, s{sT1} offen sc1")
    a("s_mov_b64 exec, -1")
    a("s_branch L_kv_pub")
    vpart = ["L_v_epi:"]
    a = vpart.append
    a(f"v_mov_b32 v6, 1.0")
    a(f"v_cndmask_b32 v{AC + 12}, v{AC + 12}, v6, s[{sUP}:{sUP + 1}]")
    vpart += pack16(P)
    a(f"v_and_b32 v6, 31, v{vLANE}")
    a(f"v_lshrrev_b32 v7, 5, v{vLANE}")
    a("v_lshlrev_b32 v6, 6, v6")
    a("v_lshl_add_u32 v6, v7, 3, v6")
    a(f"s_lshl_b32 s{sT0}, s{sTT}, 11")
    a(f"v_add_u32 v6, s{sT0}, v6")
    for u in range(4):
        a(f"ds_write_b64 v6, {vr(P + 2 * u, 2)} offset:{16 * u}")
    a(f"v_bfe_u32 v6, v{vLANE}, 2, 2")
    a("v_lshl_add_u32 v6, v7, 2, v6")
    a("v_lshlrev_b32 v6, 6, v6")
    a(f"v_bfe_u32 v7, v{vLANE}, 4, 1")
    a("v_lshl_add_u32 v6, v7, 5, v6")
    a(f"v_and_b32 v7, 3, v{vLANE}")
    a("v_lshl_add_u32 v6, v7, 3, v6")
    a(f"v_add_u32 v6, s{sT0}, v6")
    a("s_waitcnt lgkmcnt(0)")
    for u in range(4):
        a(f"ds_read_b64_tr_b16 {vr(P + 8 + 2 * u, 2)}, v6 offset:{512 * u}")
    a("s_waitcnt lgkmcnt(0)")
    a(f"buffer_store_dwordx4 {vr(P + 8, 4)}, v{vL16}, {srd(sWS)}, s{sT2} offen offset:2048 sc1")
    a(f"buffer_store_dwordx4 {vr(P + 12, 4)}, v{vL16}, {srd(sWS)}, s{sT2} offen offset:3072 sc1")
    pub = ["L_kv_pub:"]
    a = pub.append
    pub += ts(cfg, 6, True)
    a(f"v_mov_b32 v6, {L_KVC}")
    a("v_mov_b32 v7, 1")
    a("s_mov_b64 exec, 1")
    a("s_waitcnt vmcnt(0)")
    a(f"ds_add_rtn_u32 v{vT}, v6, v7")
    a("v_mov_b32 v6, 0")
    a("s_waitcnt lgkmcnt(0)")
    a(f"v_cmp_eq_u32 vcc, 3, v{vT}")
    a("s_cbranch_vccz L_kv_notlast")
    a(f"v_mov_b32 v{vT}, 1")
    a(f"buffer_atomic_add v{vT}, v6, {srd(sDBG)}, 0 offen sc0")
    a("s_waitcnt vmcnt(0)")
    a(f"v_cmp_eq_u32 vcc, 31, v{vT}")
    a("s_cbranch_vccz L_kv_notlast")
    a(f"buffer_store_dword v7, v6, {srd(sDBG)}, 0 offen offset:128 sc1")
    a("L_kv_notlast:")
    a("s_mov_b64 exec, -1")
    a("s_barrier")
    pub += ts(cfg, 5, True)
    a(f"v_add_u32 v{vQR}, {(L_WQ - L_R) & 0xffffffff:#x}, v{vQR}")
    pub += center_all()
    a("s_barrier")
    pub += g_restart()
    return o, vpart, pub


GH = 128
NH = 11
WOQ = [12, 16, 20, 24, 32, 36, 40, 44, 48, 52, 216, 220, 224, 228, 232, 236]
vW2R = 2
vW2D = 4
vFL = 5


def gemm2(cfg):
    o = []
    a = o.append
    ng1 = cfg.ng1
    if cfg.gprio:
        a("s_setprio 1")
    o += LATE_H
    a(f"s_lshl_b32 s{sT0}, s{sI}, 14")
    a(f"s_lshl_b32 s{sT2}, s{sTT}, 11")
    a(f"s_add_u32 s{sT1}, s{sT0}, s{sT2}")
    a(f"s_lshl_b32 s{sT2}, s{sJ}, 7")
    a(f"s_add_u32 s{sT1}, s{sT1}, s{sT2}")
    a(f"s_add_u32 s{sT1}, s{sT1}, {WS_FLAG}")
    a("v_mov_b32 v6, 0")
    a("v_mov_b32 v7, 1")
    a("s_mov_b64 exec, 1")
    a("s_waitcnt vmcnt(0)")
    a(f"buffer_store_dword v7, v6, {srd(sWS)}, s{sT1} offen sc1")
    a("s_mov_b64 exec, -1")
    o += ts(cfg, 5, True)
    for r, lo, size in ((sW2, 20, 1792 * 896), (sWO, 12, 448 * 896)):
        o += [f"s_mov_b32 s{r}, s{lo}", f"s_mov_b32 s{r + 1}, s{lo + 1}", f"s_mov_b32 s{r + 2}, {size}",
              f"s_mov_b32 s{r + 3}, 0x20000"]
    a(f"v_bfe_u32 v6, v{vLANE}, 2, 1")
    a(f"v_and_b32 v7, 3, v{vLANE}")
    a("v_lshlrev_b32 v7, 7, v7")
    a("v_lshl_add_u32 v7, v6, 11, v7")
    a(f"s_lshl_b32 s{sT1}, s{sMT}, 12")
    a(f"s_add_u32 s{sT0}, s{sT0}, s{sT1}")
    a(f"s_add_u32 s{sT0}, s{sT0}, {WS_FLAG}")
    a(f"s_mul_i32 s{sT1}, s{sTT}, 3")
    a(f"s_and_b32 s{sT2}, s{sTT}, 2")
    a(f"s_add_u32 s{sT1}, s{sT1}, s{sT2}")
    a(f"s_lshl_b32 s{sT1}, s{sT1}, 7")
    a(f"s_add_u32 s{sT1}, s{sT1}, s{sT0}")
    a(f"v_add_u32 v{vFL}, s{sT1}, v7")
    if cfg.nob10:
        a(f"s_lshl_b32 s{sT1}, s{sTT}, 9")
        a(f"s_add_u32 s{sT1}, s{sT1}, s{sT0}")
        a(f"v_add_u32 v28, s{sT1}, v7")
    a(f"v_bfe_u32 v6, v{vLANE}, 4, 1")
    a(f"v_lshrrev_b32 v8, 3, v{vLANE}")
    a("v_and_b32 v9, 2, v8")
    a("v_lshlrev_b32 v9, 1, v9")
    a(f"v_and_b32 v10, 7, v{vLANE}")
    a("v_xor_b32 v9, v9, v10")
    a("v_mul_u32_u24 v8, 896, v8")
    a("v_lshl_add_u32 v8, v9, 4, v8")
    a(f"s_lshl_b32 s{sT1}, s{sNC}, 7")
    a(f"v_add_u32 v{vW2D}, s{sT1}, v8")
    a(f"s_mul_i32 s{sM0}, s{sTT}, {RING}")
    a(f"s_add_u32 s{sM0}, s{sM0}, {L_RING}")
    a(f"v_bfe_u32 v8, v{vLANE}, 2, 2")
    a(f"v_lshrrev_b32 v9, 5, v{vLANE}")
    a("v_lshl_add_u32 v9, v9, 2, v8")
    a("v_lshlrev_b32 v9, 7, v9")
    a("v_lshrrev_b32 v8, 1, v8")
    a("v_lshl_add_u32 v9, v8, 6, v9")
    a("v_lshl_add_u32 v9, v6, 5, v9")
    a(f"v_and_b32 v8, 3, v{vLANE}")
    a("v_lshl_add_u32 v9, v8, 3, v9")
    a(f"v_add_u32 v{vW2R}, s{sM0}, v9")
    a(f"v_xor_b32 v{vW2R + 1}, 64, v{vW2R}")
    a(f"s_mul_i32 s{sT3}, s{sTT}, {28 * 16 * 896}")
    a(f"s_lshl_b32 s{sT0}, s{sI}, 2")
    a(f"s_lshl_b32 s{sT1}, s{sMT}, 1")
    a(f"s_add_u32 s{sT0}, s{sT0}, s{sT1}")
    a(f"s_mul_i32 s{sHO}, s{sT0}, 112")
    a(f"s_mul_i32 s{sT1}, s{sTT}, 28")
    a(f"s_add_u32 s{sHO}, s{sHO}, s{sT1}")
    a(f"s_lshl_b32 s{sHO}, s{sHO}, 10")
    a(f"s_add_u32 s{sHO}, s{sHO}, {WS_H}")
    a(f"s_lshl_b32 s{sKMAX}, s{sT0}, 2")
    a(f"s_add_u32 s{sKMAX}, s{sKMAX}, s{sTT}")
    a(f"s_lshl_b32 s{sKMAX}, s{sKMAX}, 13")
    a(f"s_add_u32 s{sKMAX}, s{sKMAX}, {WS_O}")
    o += rot_table(sRA, 64 * 896, sT3) + rot_table(sRB, 4096, sHO)
    vq, lq = Q(), Q()

    def w2dma(s):
        for b in range(2):
            o.extend([f"s_add_u32 m0, s{sM0}, {(s % 12) * 2048 + b * 1024}",
                      f"s_add_u32 s{sSO}, s{sRA + (s >> 2)}, {(16 * (s & 3) + 8 * b) * 896}",
                      f"buffer_load_dwordx4 v{vW2D}, {srd(sW2)}, s{sSO} offen lds"])
            vq.issue(('w', s))

    sNOT, sG, sODD = 84, 85, 87
    seen = set()

    def h_ready(c):
        L = f"L_ph{c}"
        seen.add(c)
        o.extend([f"s_add_u32 s{sT0}, s{sG}, s{sODD}", f"s_lshr_b32 s{sT0}, s{sT0}, 1", f"s_lshl_b32 s{sT0}, 0x11, s{sT0}",
                  f"s_add_u32 s{sG}, s{sG}, 1", f"s_cmp_eq_u32 s{sG}, 7", f"s_cselect_b32 s{sG}, 0, s{sG}",
                  f"s_and_b32 s{sT1}, s{sNOT}, s{sT0}", f"s_cbranch_scc0 {L}_ok", f"{L}:",
                  f"buffer_load_dword v6, v{vFL}, {srd(sWS)}, 0 offen sc1", "s_waitcnt vmcnt(0)",
                  "s_setprio 1", "v_cmp_eq_u32 vcc, 0, v6", "s_setprio 0", f"s_mov_b32 s{sNOT}, vcc_lo",
                  f"s_and_b32 s{sT1}, s{sNOT}, s{sT0}", f"s_cbranch_scc0 {L}_ok",
                  f"s_sub_u32 s{sCNT}, s{sCNT}, 1", f"s_cselect_b32 s{sCNT}, 0, s{sCNT}", f"s_cbranch_scc1 {L}_ok",
                  f"s_sleep {cfg.sl_h}", f"s_branch {L}", f"{L}_ok:"])

    def hload(s):
        d = GH + 8 * (s % NH)
        if cfg.hchunk and s % 4 == 0 and s // 4 not in seen:
            h_ready(s // 4)
            if s == 0:
                o.extend(ts(cfg, 6, True))
        for b in range(2):
            o.extend([f"s_add_u32 s{sSO}, s{sRB + (s >> 2)}, {(b * 112 + (s & 3)) * 1024}",
                      f"buffer_load_dwordx4 {vr(d + 4 * b, 4)}, v{vL16}, {srd(sWS)}, s{sSO} offen sc1"])
            vq.issue(('h', s))

    def wreads(s, aidx):
        d = FR + 8 * (s & 1) + 4 * aidx
        for t in range(2):
            o.append(f"ds_read_b64_tr_b16 {vr(d + 2 * t, 2)}, v{vW2R + aidx} offset:{(s % 12) * 2048 + 1024 * t}")
            lq.issue((s, aidx))

    def vwait(pred):
        k = vq.need(pred)
        if k is not None:
            o.append(f"s_waitcnt vmcnt({k})")

    def lwait(tag):
        k = lq.need(lambda t: t == tag)
        if k is not None:
            o.append(f"s_waitcnt lgkmcnt({k})")
    nissued = [0]

    def fetch_upto(lim, throttle):
        while nissued[0] < min(lim, 28):
            if throttle and len(vq.q) > cfg.thr - 4:
                keep = cfg.thr - 4
                o.append(f"s_waitcnt vmcnt({keep})")
                vq.q = vq.q[len(vq.q) - keep:]
            w2dma(nissued[0])
            hload(nissued[0])
            nissued[0] += 1
    if not cfg.gprio:
        o += res_load()
    a(f"s_mul_i32 s{sT2}, s{sTT}, {112 * 896}")

    def wo_dma(half, slot):
        for b in range(8):
            o.extend([f"s_add_u32 m0, s{sM0}, {slot * 2048 + b * 1024}",
                      f"s_add_u32 s{sSO}, s{sT2}, {(56 * half + 8 * b) * 896}",
                      f"buffer_load_dwordx4 v{vW2D}, {srd(sWO)}, s{sSO} offen lds"])
            vq.issue(('wo', half))

    def wo_reads(half, slot):
        vwait(lambda t: t == ('wo', half))
        for x in range(4):
            for aidx in range(2):
                for t in range(2):
                    a(f"ds_read_b64_tr_b16 {vr(WOQ[2 * (4 * half + x) + aidx] + 2 * t, 2)}, v{vW2R + aidx} "
                      f"offset:{slot * 2048 + (28 * (x >> 1) + 16 * (x & 1)) * 128 + 1024 * t}")
            if x & 1:
                a("s_waitcnt lgkmcnt(0)")
        lq.q = []
    cond = [f"v_cmp_eq_u32 vcc, 0, v6", "s_nop 0", "s_cmp_lg_u64 vcc, 0"]
    if cfg.hchunk:
        o += [f"s_mov_b32 s{sNOT}, -1", f"s_mov_b32 s{sG}, s{sROT}", f"s_and_b32 s{sODD}, s{sTT}, 1", f"s_mov_b32 s{sCNT}, {1 << 18}"]
        if not cfg.gprio:
            vq.issue('res')
    else:
        o += poll("L_ph", 6, vFL, sWS, cond, sleep=cfg.sl_h)
        vq.q = []
        o += ts(cfg, 6, True)
    D = cfg.gd
    OREG = [GH + 8 * ((28 - NH + x) % NH) for x in range(8)]

    def oload(hh):
        r = []
        for x in (2 * hh, 2 * hh + 1):
            for b in range(2):
                r += [f"s_add_u32 s{sSO}, s{sKMAX}, {b * 16 * 2048 + x * 1024}",
                      f"buffer_load_dwordx4 {vr(OREG[x] + 4 * b, 4)}, v{vL16}, {srd(sWS)}, s{sSO} offen sc1"]
        return r

    oq = oload(0) + oload(1)
    retry = []

    def step(s):
        d = GH + 8 * (s % NH)
        vwait(lambda t: t == ('h', s))
        for aidx in range(2):
            lwait((s, aidx))
            w = FR + 8 * (s & 1) + 4 * aidx
            for b in range(2):
                a(mfma(A0 + 32 * aidx + 16 * b, w, d + 4 * b, first=(s == 0)))
                if cfg.opipe and 4 * (28 - s) - 2 * aidx - b <= cfg.o_pre:
                    o.extend(oq[:2])
                    del oq[:2]
            nxt = s + 2
            if nxt < 28:
                if aidx == 0:
                    vwait(lambda t: t == ('w', nxt))
                wreads(nxt, aidx)
        if s < ng1:
            fetch_upto(min(s + 1 + D + 1, s + 1 + NH), True)
        else:
            fetch_upto(s + 1 + NH, False)
        if cfg.nob10 and s == 7:
            a(f"buffer_load_dword v11, v28, {srd(sWS)}, 0 offen sc1")
            vq.issue('m')
        if cfg.nob10 and s == 9:
            vwait(lambda t: t == 'm')
            mc = ["s_setprio 1", "v_cmp_eq_u32 vcc, 0, v11", "s_setprio 0", f"s_bitcmp1_b32 s{sTT}, 0", f"s_cselect_b32 s{sT1}, 7, 15",
                  f"s_and_b32 s{sT0}, vcc_lo, s{sT1}"]
            o.extend(mc + ["s_cbranch_scc1 L_pm_slow", "L_pm_back:"])
            retry.extend(["L_pm_slow:"] + poll("L_pm", 11, 28, sWS, mc, sleep=cfg.sl_h) + ["s_branch L_pm_back"])
        if s == 0:
            wo_dma(0, 8)
        if s == 2:
            wo_reads(0, 8)
        if s == 4:
            wo_dma(1, 0)
        if s == 6:
            wo_reads(1, 0)
        if cfg.diag5 and s in (ng1, ng1 + 3, ng1 + 7, cfg.o_at):
            o.extend(ts(cfg, {ng1: 24, ng1 + 3: 25, ng1 + 7: 26, cfg.o_at: 18}[s], True))
        if s == 27 and cfg.opipe:
            o.extend(oq)
        elif s == cfg.o_at and not cfg.opipe:
            for hh in range(4):
                o.extend(oload(hh))
    if cfg.gprio == 1:
        a("s_setprio 0")
    fetch_upto(D + 1, True)
    if cfg.gprio == 2:
        a("s_setprio 0")
    vwait(lambda t: t in (('w', 0), ('w', 1)))
    for s in range(2):
        for aidx in range(2):
            wreads(s, aidx)
    def late_setup():
        a(f"v_and_b32 v8, 31, v{vLANE}")
        a(f"v_lshrrev_b32 v9, 5, v{vLANE}")
        a(f"v_mul_u32_u24 v8, {144 if cfg.bfp else 272}, v8")
        a(f"v_lshl_add_u32 v8, v9, {3 if cfg.bfp else 4}, v8")
        a(f"v_add_u32 v8, s{sM0}, v8")
        a(f"v_add_u32 v9, {32 * 144}, v8")
        if cfg.nob10:
            a(f"v_mov_b32 v10, {L_CNT}")
        if cfg.gprio:
            o.extend(res_load())
            vq.issue('res')
    a(f"s_mov_b32 s{sMASK}, 15")
    assert 24 <= cfg.o_at < 28 and ng1 >= 10 and D <= 4 and cfg.o_pre <= 8 and not (cfg.opipe and (cfg.sel_o or cfg.dyn_o))
    for s in range(28):
        if s == ng1:
            fetch_upto(s + NH, True)
            for c in range(7):
                if cfg.hchunk and c not in seen:
                    h_ready(c)
            if cfg.gprio:
                a("s_setprio 1")
            late_setup()
            if cfg.gprio:
                a("s_setprio 0")
            o += ts(cfg, 7, True)
            if cfg.nob10:
                o.extend(lds_wait4("L_g4", ["ds_read_b32 v11, v10"], 2, 11))
                lq.q = []
            else:
                a("s_barrier")
        step(s)
    if ng1 >= 28:
        a("s_barrier")
    a(f"s_mov_b32 s{sCNT}, {1 << 16}")
    o += ts(cfg, 8, True)

    def marker_test(hh):
        regs = [OREG[2 * hh] + r for r in range(8)] + [OREG[2 * hh + 1] + r for r in range(8)]
        t = [f"v_max3_u32 v6, v{regs[0]}, v{regs[1]}, v{regs[2]}", f"v_max3_u32 v7, v{regs[3]}, v{regs[4]}, v{regs[5]}"]
        for r in range(6, 14, 4):
            t += [f"v_max3_u32 v6, v6, v{regs[r]}, v{regs[r + 1]}", f"v_max3_u32 v7, v7, v{regs[r + 2]}, v{regs[r + 3]}"]
        return t + [f"v_max3_u32 v6, v6, v{regs[14]}, v{regs[15]}", "v_max_u32 v6, v6, v7", "v_cmp_eq_u32 vcc, -1, v6"]

    def head_mfmas(hh):
        return [mfma(A0 + 32 * aidx + 16 * b, WOQ[2 * x + aidx], OREG[x] + 4 * b)
                for x in (2 * hh, 2 * hh + 1) for aidx in range(2) for b in range(2)]
    if cfg.dyn_o:
        a("L_o:")
        a("s_waitcnt vmcnt(0)")
        for hh in range(4):
            a(f"s_bitcmp1_b32 s{sMASK}, {hh}")
            a(f"s_cbranch_scc0 L_o{hh}_done")
            o += marker_test(hh)
            a(f"s_cbranch_vccnz L_o{hh}_retry")
            a(f"L_o{hh}_go:")
            o += head_mfmas(hh)
            a(f"s_bitset0_b32 s{sMASK}, {hh}")
            a(f"L_o{hh}_done:")
            retry += [f"L_o{hh}_retry:", f"s_sub_u32 s{sCNT}, s{sCNT}, 1", f"s_cselect_b32 s{sCNT}, 0, s{sCNT}",
                      f"s_cbranch_scc1 L_o{hh}_go"]
            retry += oload(hh) + [f"s_branch L_o{hh}_done"]
        a(f"s_cmp_lg_u32 s{sMASK}, 0")
        a("s_cbranch_scc1 L_o")
    else:
        for hh in range(4):
            test = [f"s_waitcnt vmcnt({(4 if hh < 3 else 0) if cfg.opipe else 4 * (3 - hh)})"] + marker_test(hh)
            if hh == 0 or not cfg.etest:
                a(f"L_o{hh}:")
                o += test
            else:
                retry += [f"L_o{hh}:"] + test + [f"s_cbranch_vccz L_o{hh}_go", f"s_branch L_o{hh}_retry"]
            a(f"s_cbranch_vccnz L_o{hh}_retry")
            a(f"L_o{hh}_go:")
            if cfg.diag5:
                o += ts(cfg, 19 + hh, True) + [f"v_writelane_b32 v{vTSG}, s{sCNT}, {27 + hh}"]
            ld = oload(hh + 2) if cfg.opipe and hh < 2 else []
            for x, m in enumerate(head_mfmas(hh)):
                o += [m] + (ld[2 * x:2 * x + 2] if x < 4 else [])
                if cfg.etest and hh < 3 and x == 5:
                    o += [f"s_waitcnt vmcnt({(4 if hh < 2 else 0) if cfg.opipe else 4 * (2 - hh)})"] + marker_test(hh + 1)
            if cfg.sel_o:
                retry += [f"L_o{hh}_retry:", f"s_mov_b32 s{sMASK}, {(15 << hh) & 15}", f"s_mov_b32 s{sT0}, {(15 << hh) & 15}",
                          "s_branch L_osel"]
                continue
            retry += [f"L_o{hh}_retry:", "s_waitcnt vmcnt(0)", f"s_sub_u32 s{sCNT}, s{sCNT}, 1",
                      f"s_cselect_b32 s{sCNT}, 0, s{sCNT}", f"s_cbranch_scc1 L_o{hh}_go"]
            for h2 in range(hh, min(hh + 2, 4) if cfg.opipe else 4):
                retry += oload(h2)
            retry += [f"s_branch L_o{hh}"]
        if cfg.sel_o:
            retry += ["L_osel:", "s_waitcnt vmcnt(0)", f"s_sub_u32 s{sCNT}, s{sCNT}, 1", f"s_cselect_b32 s{sMASK}, 0, s{sMASK}"]
            for hh in range(4):
                retry += [f"s_bitcmp1_b32 s{sMASK}, {hh}", f"s_cbranch_scc0 L_ot{hh}"] + marker_test(hh)
                retry += [f"s_cbranch_vccnz L_or{hh}", f"s_bitset0_b32 s{sMASK}, {hh}", f"s_branch L_ot{hh}", f"L_or{hh}:"]
                retry += oload(hh) + [f"L_ot{hh}:"]
            for hh in range(3):
                retry += [f"s_bitcmp1_b32 s{sT0}, {hh}", f"s_cbranch_scc0 L_om{hh}", f"s_bitcmp1_b32 s{sMASK}, {hh}",
                          "s_cbranch_scc1 L_osel"] + head_mfmas(hh) + [f"s_bitset0_b32 s{sT0}, {hh}", f"L_om{hh}:"]
            retry += [f"s_bitcmp1_b32 s{sMASK}, 3", "s_cbranch_scc1 L_osel", "s_branch L_o3_go"]
    def pwrite(aidx, b, i4):
        return f"ds_write_b128 v8, {vr(A0 + 32 * aidx + 16 * b + 4 * i4, 4)} offset:{b * 32 * 272 + aidx * 128 + i4 * 32}"
    if cfg.dyn_o:
        o += ts(cfg, 10, True)
        a("s_nop 11")
        o += [pwrite(aidx, b, i4) for aidx in range(2) for b in range(2) for i4 in range(4)]
    else:
        del o[-8:]
        pend, n = [], 0
        for aidx in range(2):
            for b in range(2):
                for x in (6, 7):
                    a(mfma(A0 + 32 * aidx + 16 * b, WOQ[2 * x + aidx], OREG[x] + 4 * b))
                    n += 1
                    if x == 7 and cfg.bfp:
                        T = A0 + 32 * aidx + 16 * b
                        for u in range(2):
                            pend += [(n + 12, f"v_cvt_pk_bf16_f32 v{T + k}, v{T + 2 * k}, v{T + 2 * k + 1}") for k in range(4 * u, 4 * u + 4)]
                            pend += [(n + 12, f"ds_write2_b64 v{8 + b}, {vr(T + 4 * u, 2)}, {vr(T + 4 * u + 2, 2)} "
                                              f"offset0:{8 * aidx + 4 * u} offset1:{8 * aidx + 4 * u + 2}")]
                    elif x == 7:
                        pend += [(n + 12, pwrite(aidx, b, i4)) for i4 in range(4)]
                    for _ in range(5 if cfg.bfp else 2):
                        if pend and pend[0][0] <= n:
                            a(pend.pop(0)[1])
                            n += 1
                        elif (aidx, b, x) != (0, 0, 6) and _ < 2:
                            a("s_nop 1")
                            n += 2
        while pend:
            if pend[0][0] > n:
                a(f"s_nop {pend[0][0] - n - 1}")
                n = pend[0][0]
            a(pend.pop(0)[1])
            n += 1
    a("s_waitcnt lgkmcnt(0)")
    o += ts(cfg, 11, True) + ts_move(cfg)
    a("s_branch L_final")
    return o, retry


def build(cfg):
    BFP[0] = cfg.bfp
    NB[0] = cfg.nb
    KVC[0] = cfg.kvc
    PFMOD[0] = ('', 'nt', 'sc1', 'sc0 sc1')[cfg.pfmod]
    pro = prologue(cfg)
    g0 = g_first(cfg)
    aset = a_setup(cfg)
    lh, ll = loader_heavy(cfg), loader_light(cfg)
    apre = a_pre_attn(cfg)
    at0, atl, atp = attention(cfg)
    apost = a_post(cfg)
    ares = res_load()
    fin = final(cfg)
    fb = fallback(cfg)
    gf = g_front(cfg)
    gs, qp = g_stream2(cfg) if cfg.s2 else g_stream(cfg)
    gap = g_after_pass(cfg)
    gl = g_light(cfg)
    ke, ve, pub = kv_epi(cfg)
    g2, g2r = gemm2(cfg)
    ne = 0
    ne += len(check(pro + aset + lh + apre + at0 + atl + atl + atp + apost + fin, 'A heavy'))
    ne += len(check(pro + aset + ll + apre + fb + atl + atp + apost, 'A light+fallback'))
    ne += len(check(pro + g0 + gf + gs + qp + gap + g2 + fin, 'G heavy'))
    skip, g2s = False, []
    for x in g2:
        if x.startswith("L_ph") and x.endswith(":"):
            skip = not x.endswith("_ok:") and x != "L_ph:"
        if not skip:
            g2s.append(x)
    ne += len(check(pro + g0 + gf + gs + qp + gap + g2s + fin, 'G heavy, no polls'))
    gfl = gf[:gf.index("s_cbranch_scc1 L_G_light") + 1]
    ne += len(check(pro + g0 + gfl + gl + ke + pub + qp + gap, 'G light K'))
    iv = ke.index("s_cbranch_scc1 L_v_epi")
    ne += len(check(pro + g0 + gfl + gl + ke[:iv + 1] + ve + pub + qp + gap, 'G light V'))
    nb = lambda l: sum(1 for x in l if x == "s_barrier")
    print("barriers A heavy", nb(lh + apre + apost + fin), "G heavy", nb(gf + gs + qp + gap + g2 + fin),
          "| A light (until B9)", nb(ll + apre) - (0 if cfg.nob8 else 1), "G light", nb(gfl + gl + ke + pub + qp + gap))
    code = (pro + g0 + ["s_branch L_G", "L_A:"] + aset + [f"s_cmp_eq_u32 s{sNT}, 7", "s_cbranch_scc1 L_A_light"] + lh + ["L_A_join:"] + apre + at0 +
            [".p2align 6", "L_attn_loop:"] + atl + atp + apost + fin)
    tail = (gf + gs + ["L_qpass:"] + qp + gap + g2 + g2r + ["L_A_light:"] + ll + ["s_branch L_A_join"] + gl + ke + ve + pub + fb)
    text = [f"; fused LayerNorm + MQA attention + SwiGLU + residual, generated by gen/gen.py",
            f"; @launch grid=(256,1,1) block=(512,1,1) lds={LDS_BYTES}",
            '.amdgcn_target "amdgcn-amd-amdhsa--gfx950"', ".text", f".globl {NAME}_kernel", ".p2align 8",
            f".type {NAME}_kernel,@function", f"{NAME}_kernel:"]
    text += [("    " + x if not x.endswith(':') else x) for x in code + tail]
    text += ["L_codeend:", "    s_endpgm", '.section .rodata,"a"', ".p2align 6", f".amdhsa_kernel {NAME}_kernel",
             "  .amdhsa_next_free_vgpr 256", "  .amdhsa_next_free_sgpr 102", "  .amdhsa_accum_offset 256",
             "  .amdhsa_group_segment_fixed_size 0", "  .amdhsa_kernarg_size 96", "  .amdhsa_user_sgpr_count 2",
             "  .amdhsa_user_sgpr_kernarg_segment_ptr 1", "  .amdhsa_system_sgpr_workgroup_id_x 1",
             ".end_amdhsa_kernel", ""]
    return "\n".join(text), ne


if __name__ == "__main__":
    cfg = Cfg()
    out = f"cdna_kernels/{NAME}.s"
    for arg in sys.argv[1:]:
        if arg.startswith("-o"):
            out = arg[2:]
        else:
            k, v = arg.split("=")
            setattr(cfg, k, tuple(int(x) for x in v.split(',')) if ',' in v else type(getattr(cfg, k))(int(v)))
    text, ne = build(cfg)
    open(out, "w").write(text)
    print("wrote", out, "findings:", ne)
```

```python
import sys, math, struct
sys.path.insert(0, __file__.rsplit('/', 1)[0])
from asmcheck import check

NAME = "parallel_sum__grouped_kv_mqa__glu_gated_swiglu__prompt"


def f2u(x):
    return struct.unpack('<I', struct.pack('<f', x))[0]


class Cfg:
    diag = False
    diag2 = False
    diag3 = False
    diag4 = False
    diag5 = False
    jitter = False
    amp = (-1, -1, 0, 4)
    probe = 0
    pd = 31
    dbgout = -1
    rt = False
    ng1 = 15
    prefetch_code = True
    rot = True
    bars = (12, 44, 76, 108, 132, 156)
    chain2 = False
    res_at = 9
    fprio = False
    fp0 = 0
    fp1 = 99
    rprio = False
    wo_early = 2
    r0 = 2
    ramp = 1
    ev0 = 97
    ev1 = 95
    nodma = False
    hs1 = 251
    nob8 = True
    w1 = False
    s2 = True
    spill = 10
    lightsafe = False
    nob10 = True
    etest = True
    kvc = 1
    pswap = False
    opipe = True
    o_pre = 4
    bfp = True
    mid_w = 0
    sel_o = False
    gprio = 1
    hchunk = True
    nb = 4
    gd = 4
    sent_at = 1
    ft = -1
    hs0 = 223
    hsd = 2
    dyn_o = False
    nsplit = True
    o_at = 27
    pfmod = 0
    wsoff = 0
    pf_kv = False
    xd = 3
    pre_c = 8
    late_c = False
    outsc = 0
    pf_at = (0, 0, 0, 4, 4, 0, 0)
    sl_kv = 4
    sl_h = 4
    sl_o = 1
    touch = False
    caps = (12, 12, 14, 14, 12, 12, 99)
    early_w = 0
    pf_w2 = True
    thr = 24
    wait2 = True
    bal = True
    defer_h = True
    force_fallback = False


WS_KV = 0
WS_KMAX = 0x40000
WS_FLAG = 0x980000
WS_O = 0x80000
WS_H = 0x280000
WS_END = 0x9c0000
WS_DIAG = 0x1000000

LDS_BYTES_ = 163840
XT = 28672
L_R = 114688
L_WQ = 16384
L_QX = 49152
L_N2 = 57344
L_CNT = 58368
L_RING = 65536
RING = 24576
L_ORED = 0
L_KVC = LDS_BYTES_ - 4
LDS_BYTES = 163840


def slot_u(u, s):
    if u == 0:
        return L_R + 4096 * s if s < 12 else 4096 * (s - 12)
    if s < 12:
        return 4096 * (16 + s)
    if s < 24:
        return L_R + 4096 * (s - 12)
    return 4096 * (s - 24)


sX, sW, sQ, sWS, sW2, sWO, sOUT, sDBG, sH = 28, 32, 36, 40, 44, 48, 52, 56, 60
sPC = 64
sWV, sTT, sI, sJ, sNT, sP, sFS, sMODE = 66, 67, 68, 69, 70, 71, 72, 73
sT0, sT1, sT2, sT3 = 74, 75, 76, 77
sCNT = 78
sKMAX = 79
sMASK = 80
sTMP2 = 82
sEX = 84
sHI = 86
sTS = 88
sSO = 90
sM0 = 91
sHO = 92
sMT, sNC = 81, 82
sOO = 83
sUP = 94
sROT = 93
sRA, sRB = 4, 11


def srd(r):
    return f"s[{r}:{r + 3}]"


def vr(a, n):
    return f"v[{a}:{a + n - 1}]"


def mfma(d, a, b, first=False):
    return f"v_mfma_f32_32x32x16_bf16 {vr(d, 16)}, {vr(a, 4)}, {vr(b, 4)}, " + ("0" if first else vr(d, 16))


class Q:
    def __init__(self):
        self.q = []

    def issue(self, tag):
        self.q.append(tag)

    def need(self, pred):
        last = -1
        for k, t in enumerate(self.q):
            if pred(t):
                last = k
        if last < 0:
            return None
        n = len(self.q) - 1 - last
        self.q = self.q[last + 1:]
        return n


vLANE, vTS, vTSG = 1, 238, 31


JN = [0]
ORETRY = 1 << 22


def probe(cfg, k):
    return [f"s_sleep {cfg.pd}"] if cfg.probe == k else []


def ts(cfg, idx, g=False):
    if cfg.amp[0] >= 0:
        if idx in cfg.amp[:2] and (g == bool(cfg.amp[2]) or idx in (12, 15)):
            return [f"s_memrealtime s[{sTS}:{sTS + 1}]", "s_waitcnt lgkmcnt(0)", f"s_mov_b32 s{99 if idx == cfg.amp[0] else 100}, s{sTS}"]
        return []
    if cfg.jitter and idx < 16 and idx not in (13, 15):
        JN[0] += 1
        L = f"L_jit{JN[0]}"
        return [f"s_memtime s[{sTS}:{sTS + 1}]", "s_waitcnt lgkmcnt(0)", f"s_mul_i32 s{sTS}, s{sTS}, 0x9e3779b1",
                f"s_lshr_b32 s{sTS + 1}, s{sTS}, 29", f"s_cmp_eq_u32 s{sTS + 1}, 0", f"s_cselect_b32 s{sTS + 1}, 22, 27",
                f"s_lshr_b32 s{sTS}, s{sTS}, 1", f"s_lshl_b32 s{sTS}, s{sTS}, 4", f"s_lshr_b32 s{sTS}, s{sTS}, s{sTS + 1}", f"{L}:", "s_sleep 1",
                f"s_sub_u32 s{sTS}, s{sTS}, 1", f"s_cbranch_scc0 {L}"]
    if not cfg.diag:
        return []
    o = [f"s_memtime s[{sTS}:{sTS + 1}]", "s_waitcnt lgkmcnt(0)", f"v_writelane_b32 v{vTSG if g else vTS}, s{sTS}, {idx}"]
    if cfg.rt and idx < 16:
        o += [f"s_memrealtime s[{sTS}:{sTS + 1}]", "s_waitcnt lgkmcnt(0)", f"v_writelane_b32 v{vTSG if g else vTS}, s{sTS}, {40 + idx}"]
    if g and (idx in (6, 7) or 31 <= idx < 40):
        o = ["s_setprio 1"] + o + ["s_setprio 0"]
    return o


def ts_move(cfg):
    return [f"v_mov_b32 v{vTS}, v{vTSG}"] if cfg.diag else []


def poll(label, vdst, voff, srdr, cond, limit=1 << 22, sleep=1):
    return ([f"s_mov_b32 s{sCNT}, {limit}", f"{label}:",
             f"buffer_load_dword v{vdst}, v{voff}, {srd(srdr)}, 0 offen sc1",
             "s_waitcnt vmcnt(0)"] + cond +
            [f"s_cbranch_scc0 {label}_ok",
             f"s_sub_u32 s{sCNT}, s{sCNT}, 1",
             f"s_cselect_b32 s{sCNT}, 0, s{sCNT}",
             f"s_cbranch_scc1 {label}_ok",
             f"s_sleep {sleep}",
             f"s_branch {label}",
             f"{label}_ok:"])


def half_sum(a, t, op="v_add_f32"):
    return [f"v_mov_b32 v{t}, v{a}", "s_nop 1", f"v_permlane32_swap_b32 v{a}, v{t}", f"{op} v{a}, v{a}, v{t}"]


def wave_max_to_sgpr(v, s):
    o = []
    for sh in (1, 2, 4, 8):
        o += ["s_nop 1", f"v_max_f32_dpp v{v}, v{v}, v{v} row_shr:{sh} row_mask:0xf bank_mask:0xf"]
    o += ["s_nop 1", f"v_max_f32_dpp v{v}, v{v}, v{v} row_bcast:15 row_mask:0xa bank_mask:0xf",
          "s_nop 1", f"v_max_f32_dpp v{v}, v{v}, v{v} row_bcast:31 row_mask:0xc bank_mask:0xf",
          "s_nop 1", f"v_readlane_b32 s{s}, v{v}, 63"]
    return o


def x_dma(L):
    o = [f"s_add_u32 m0, s{sM0}, {L * 4096}", f"s_add_u32 s{sT1}, s{sSO}, s{sT2}"]
    o += [f"buffer_load_dwordx4 v{4 + rb}, {srd(sX)}, s{sT1} offen offset:{1024 * rb} lds" for rb in range(4)]
    if L < 6:
        o += [f"s_add_u32 s{sT2}, s{sT2}, 128", f"s_cmp_eq_u32 s{sT2}, 896", f"s_cselect_b32 s{sT2}, 0, s{sT2}"]
    return o


def code_pf(cfg):
    if not cfg.prefetch_code:
        return []
    return [f"s_load_dword s{96 + k}, s[{sPC}:{sPC + 1}], {64 * k}" for k in range(3)]


def prologue(cfg):
    o = []
    a = o.append
    a("s_load_dwordx16 s[4:19], s[0:1], 0")
    a("s_load_dwordx8 s[20:27], s[0:1], 64")
    a("s_cmp_ge_u32 s2, 256")
    a("s_cbranch_scc1 L_end")
    a(f"v_and_b32 v{vLANE}, 63, v0")
    a("v_lshrrev_b32 v2, 6, v0")
    a(f"s_lshr_b32 s{sNT}, s2, 5")
    a(f"v_readfirstlane_b32 s{sWV}, v2")
    a(f"s_bfe_u32 s{sT1}, s2, 0x20003")
    a(f"s_bfe_u32 s{sI}, s2, 0x20001")
    a(f"s_lshl2_add_u32 s{sI}, s{sI}, s{sT1}")
    a(f"s_and_b32 s{sTT}, s{sWV}, 3")
    if cfg.rot:
        a(f"s_lshl1_add_u32 s{sROT}, s{sT1}, s{sNT}")
        a(f"s_cmp_ge_u32 s{sROT}, 7")
        a(f"s_cselect_b32 s{sT2}, 7, 0")
        a(f"s_sub_u32 s{sROT}, s{sROT}, s{sT2}")
    else:
        a(f"s_mov_b32 s{sROT}, 0")
    a(f"v_lshrrev_b32 v2, 3, v{vLANE}")
    a(f"v_and_b32 v5, 7, v{vLANE}")
    a("v_lshrrev_b32 v6, 1, v2")
    a("v_xor_b32 v5, v5, v6")
    a("v_mul_u32_u24 v2, 896, v2")
    a("v_lshl_add_u32 v4, v5, 4, v2")
    a("v_xor_b32 v5, 64, v4")
    a("v_add_u32 v6, 12288, v4")
    a("v_add_u32 v5, 6144, v5")
    a("v_add_u32 v7, 12288, v5")
    a(f"s_lshl2_add_u32 s{sT0}, s{sI}, s{sTT}")
    a(f"s_mul_i32 s{sSO}, s{sT0}, {32 * 896}")
    a(f"s_mul_i32 s{sM0}, s{sTT}, {XT}")
    a(f"s_lshl_b32 s{sT2}, s{sROT}, 7")
    a(f"s_mov_b32 s{sX + 2}, {2048 * 896}")
    a(f"s_mov_b32 s{sX + 3}, 0x20000")
    if cfg.prefetch_code:
        a(f"s_getpc_b64 s[{sPC}:{sPC + 1}]")
        a("L_pc:")
        a(f"s_and_b32 s{sT3}, s2, 0xf8")
        a(f"s_add_u32 s{sT3}, s{sT3}, s{sWV}")
        a(f"s_mul_i32 s{sT3}, s{sT3}, 192")
        a(f"s_min_u32 s{sT3}, s{sT3}, L_codeend-L_pc-192")
        a(f"s_add_u32 s{sPC}, s{sPC}, s{sT3}")
        a(f"s_addc_u32 s{sPC + 1}, s{sPC + 1}, 0")
    if cfg.diag:
        a(f"v_mov_b32 v{vTS}, 0")
        a(f"v_mov_b32 v{vTSG}, 0")
        o += [f"s_memtime s[{sTS}:{sTS + 1}]"]
    a(f"s_cmp_lt_u32 s{sWV}, 4")
    a("s_waitcnt lgkmcnt(0)")
    if cfg.diag:
        a(f"v_writelane_b32 v{vTS}, s{sTS}, 0")
        a(f"v_writelane_b32 v{vTSG}, s{sTS}, 0")
        o += ts(cfg, 13) + ts(cfg, 13, True)
        o += [f"s_memrealtime s[{sTS}:{sTS + 1}]", "s_waitcnt lgkmcnt(0)", f"v_writelane_b32 v{vTS}, s{sTS}, 16", f"v_writelane_b32 v{vTSG}, s{sTS}, 16"]
    if cfg.amp[0] >= 0:
        o += ["s_mov_b32 s99, 0", "s_mov_b32 s100, 0"] + ts(cfg, 13, bool(cfg.amp[2]))
    a(f"s_mov_b32 s{sX}, s4")
    a(f"s_mov_b32 s{sX + 1}, s5")
    a("s_cbranch_scc1 L_A")
    return o


def g_first(cfg):
    o = []
    for L in range(cfg.xd):
        o += x_dma(L)
    return o + code_pf(cfg)


def ids(cfg):
    o = [f"s_add_u32 s26, s26, {cfg.wsoff << 20}", "s_addc_u32 s27, s27, 0"] if cfg.wsoff else []
    o += [f"s_andn2_b32 s{sP}, 1, s2" if cfg.pswap else f"s_and_b32 s{sP}, s2, 1", f"s_lshl3_add_u32 s{sJ}, s{sP}, s{sNT}", f"s_sub_u32 s{sFS}, s{sJ}, s{sP}",
          f"s_mov_b32 s{sHI}, 0xffff0000", f"s_mov_b32 s{sUP}, 0", f"s_mov_b32 s{sUP + 1}, -1"]
    if cfg.nsplit:
        o += [f"s_lshr_b32 s{sNC}, s{sNT}, 1", f"s_lshl2_add_u32 s{sNC}, s{sP}, s{sNC}", f"s_and_b32 s{sMT}, s{sNT}, 1",
              f"s_cmp_eq_u32 s{sNT}, 6", f"s_cselect_b32 s{sNC}, 3, s{sNC}", f"s_cselect_b32 s{sMT}, s{sP}, s{sMT}"]
    else:
        o += [f"s_mov_b32 s{sNC}, s{sNT}", f"s_mov_b32 s{sMT}, s{sP}"]
    return o


def rot_table(dst, stride, add=None):
    o = [f"s_mul_i32 s{dst}, s{sROT}, {stride}"]
    for c in range(1, 7):
        o += [f"s_add_u32 s{dst + c}, s{dst + c - 1}, {stride}", f"s_cmp_eq_u32 s{dst + c}, {7 * stride}",
              f"s_cselect_b32 s{dst + c}, 0, s{dst + c}"]
    if add is not None:
        o += [f"s_add_u32 s{dst + c}, s{dst + c}, s{add}" for c in range(7)]
    return o


def rest_srds(cfg):
    def mk(r, lo, size):
        return [f"s_mov_b32 s{r}, s{lo}", f"s_mov_b32 s{r + 1}, s{lo + 1}", f"s_mov_b32 s{r + 2}, {size}",
                f"s_mov_b32 s{r + 3}, 0x20000"]
    o = []
    o += mk(sWS, 26, WS_END if not cfg.diag else WS_DIAG + (1 << 20))
    o += mk(sOUT, 22, 2048 * 896)
    o += mk(sDBG, 24, 256)
    return o


A0, A4 = 64, 32
XC = 128
FR = 240
vWR = 2
vMEAN, vC, vK1, vRSTD, vKQ, vKQ2 = 8, 9, 10, 11, 12, 13
vT = 14
vHQ = 20
vQR, vL16, vONE = 28, 29, 30


def stream():
    st = []
    for s in range(28):
        for q in range(4):
            st.append(dict(acc=A0 + 16 * q, s=s, kind='W', u=0, q=q))
    for half, base in ((0, A4), (1, A0)):
        for s in range(28):
            for q in range(2):
                st.append(dict(acc=base + 16 * q, s=s, kind='W', u=1, q=2 * half + q))
    for s in range(28):
        st.append(dict(acc=A0 + 32, s=s, kind='Q'))
    return st


BARRIERS = [12, 44, 76, 108, 132, 156]


def center_reg(r, t):
    return [f"v_lshlrev_b32 v{t}, 16, v{r}", f"v_and_b32 v{t + 1}, s{sHI}, v{r}",
            f"v_sub_f32 v{t}, v{t}, v{vMEAN}", f"v_sub_f32 v{t + 1}, v{t + 1}, v{vMEAN}",
            f"v_cvt_pk_bf16_f32 v{r}, v{t}, v{t + 1}"]


def h_store(quad, ks_off):
    r = sT0 if ks_off >= 6 else sT1
    return [f"s_add_u32 s{r}, s{sHO}, {ks_off * 1024}",
            f"buffer_store_dwordx4 {vr(quad, 4)}, v{vL16}, {srd(sH)}, s{r} offen sc1"]


def silu_tile(acc, quad, ks_off, store=True):
    def stage(r):
        t = vT + (r % 3)
        return [[f"v_mul_f32 v{t}, v{acc + r}, v{vK1}"],
                [f"v_exp_f32 v{t}, v{t}"],
                [f"v_mul_f32 v{acc + r}, v{acc + r}, v{acc + 8 + r}"],
                [f"v_fma_f32 v{t}, v{t}, v{vC}, v{vC}"],
                [f"v_rcp_f32 v{t}, v{t}"],
                [f"v_mul_f32 v{acc + r}, v{acc + r}, v{t}"]]
    o = []
    prev_last = None
    for r in range(8):
        sg = stage(r)
        o += sg[0]
        if prev_last:
            o += prev_last
            if r % 2 == 0:
                o.append(f"v_cvt_pk_bf16_f32 v{quad + r // 2 - 1}, v{acc + r - 2}, v{acc + r - 1}")
        o += sg[1] + sg[2] + sg[3] + sg[4]
        prev_last = sg[5]
    o += [h_store(quad, ks_off)[0] if store else "s_nop 0"] + prev_last
    o.append(f"v_cvt_pk_bf16_f32 v{quad + 3}, v{acc + 6}, v{acc + 7}")
    if store:
        o.append(h_store(quad, ks_off)[1])
    return o


def frag_reads(e, buf, wbase):
    o = []
    d = FR + 4 * buf
    if e['kind'] == 'Q':
        off = e['s'] * 1024
        return [f"ds_read_b64_tr_b16 {vr(d, 2)}, v{vQR} offset:{off}",
                f"ds_read_b64_tr_b16 {vr(d + 2, 2)}, v{vQR} offset:{off + 256}"]
    q = e['q']
    sl = slot_u(e['u'], e['s'])
    if not (wbase[q] <= sl and sl + 512 - wbase[q] <= 65535):
        nb = 0 if sl < 65536 else (65536 if sl < L_R else L_R)
        delta = nb - wbase[q]
        o.append(f"v_add_u32 v{vWR + q}, {delta & 0xffffffff:#x}, v{vWR + q}")
        wbase[q] = nb
    off = sl - wbase[q]
    o += [f"ds_read_b64_tr_b16 {vr(d, 2)}, v{vWR + q} offset:{off}",
          f"ds_read_b64_tr_b16 {vr(d + 2, 2)}, v{vWR + q} offset:{off + 512}"]
    return o


def g_stream(cfg):
    st = stream()
    N = len(st)
    wbase = [L_R] * 4
    lq = Q()
    pre = []
    for n in range(4):
        pre += frag_reads(st[n], n, wbase)
        lq.issue(n), lq.issue(n)
    fill = {}

    def spread(ops, g0, g1):
        k = g1 - g0 + 1
        for x, op in enumerate(ops):
            fill.setdefault(g0 + x * k // len(ops), []).append(op)
    todo = list(range(cfg.pre_c, 112))
    g0 = 0 if not cfg.late_c else max(0, cfg.pre_c - 5)
    for x, r in enumerate(todo):
        g = g0 + x if cfg.late_c else x * 107 // max(len(todo), 1)
        assert g <= 4 * (r // 4) - 2, (r, g)
        fill.setdefault(g, []).extend(center_reg(XC + r, vT + 2 * (x & 1)))
    tiles = [(A0 + 16 * q, q) for q in range(4)] + [(A4 + 16 * q, 4 + q) for q in range(2)]
    cut = 3 if cfg.bal else 4
    e0, e1 = [], []
    late = []
    for x, (ac, ks) in enumerate(tiles):
        quad = vHQ + 4 * (x & 1)
        if cfg.defer_h:
            quad = vHQ + 4 * x if x < 2 else ac + 8
            late += h_store(quad, ks)
        (e0 if x < cut else e1).extend(silu_tile(ac, quad, ks, store=not cfg.defer_h))
    spread(e0, 114, 166)
    spread(e1, 168 if cfg.bal else 172, 222)
    e2 = []
    for q in range(2):
        e2 += silu_tile(A0 + 16 * q, A0 + 16 * q + 8 if cfg.defer_h else vHQ + 4 * (q & 1), 6 + q)
    spread(e2, 227, 251)
    ready = {}
    for g in sorted(fill):
        for op in fill[g]:
            for x in range(len(late) // 2):
                q4 = int(late[2 * x + 1].split('[')[1].split(':')[0])
                if op.startswith(f"v_cvt_pk_bf16_f32 v{q4 + 3},") and g < 224:
                    ready[x] = g + 1
    g = cfg.hs0
    for x in ([2, 0, 1, 3, 4, 5] if late else []):
        g = max(g, ready[x])
        if x == 2:
            g = min(g, 223)
        fill.setdefault(g, []).extend(late[2 * x:2 * x + 2])
        g += cfg.hsd
    body, qp = pre, []
    cur = body
    for n, e in enumerate(st):
        if n == 224:
            cur = qp
        if cfg.wait2 and n % 2 == 0:
            k = lq.need(lambda t: t in (n, n + 1))
        else:
            k = lq.need(lambda t: t == n)
        if k is not None:
            cur.append(f"s_waitcnt lgkmcnt({k})")
        cur.append(mfma(e['acc'], FR + 4 * (n & 3), XC + 4 * e['s'], first=(e['s'] == 0)))
        if n in BARRIERS:
            bi = BARRIERS.index(n)
            cur += (ts(cfg, 18 + 2 * bi, True) if cfg.diag2 else []) + ["s_barrier"] + (ts(cfg, 19 + 2 * bi, True) if cfg.diag2 else [])
        if n in (111, 167) and cfg.diag2:
            cur += ts(cfg, 32 if n == 111 else 33, True)
        if n + 4 < N:
            cur += frag_reads(st[n + 4], n & 3, wbase)
            lq.issue(n + 4), lq.issue(n + 4)
        cur += fill.get(n, [])
        if n == 223:
            cur += (ts(cfg, 30, True) if cfg.diag2 else []) + ["s_barrier"] + (ts(cfg, 31, True) if cfg.diag2 else [])
    return body, qp


sHS = [6, 7, 14, 15, 16, 17, 18, 19]


HQUAD = [vHQ, vHQ + 4, A0 + 48, A0 + 56, A4 + 8, A4 + 24, A0 + 8, A0 + 24]


def h_store2(x):
    return f"buffer_store_dwordx4 {vr(HQUAD[x], 4)}, v{vL16}, {srd(sH)}, s{sHS[x]} offen sc1"


def cost(op):
    return 8 if op.startswith(("v_exp", "v_rcp")) else 4


LATE_H = []


def g_stream2(cfg):
    st = stream()
    N = len(st)
    wbase = [L_R] * 4
    reads = {n: frag_reads(st[n], n & 3, wbase) for n in range(N)}
    fill, slot0 = {}, {}
    for n in range(5, N):
        if reads[n][0].startswith("v_add"):
            fill.setdefault(n - 5, []).append(reads[n].pop(0))

    def place(ops, g0, g1, spill=False, even=0.0):
        used = lambda g: sum(cost(x) for x in fill.get(g, []))
        rest = {g: fill.pop(g, []) for g in range(g0, g1 + 1)}
        for budget in range(16, 64, 4):
            for g in rest:
                fill[g] = []
            g, ok, left = g0, True, []
            tot, acc_ = sum(cost(y[2]) for y in ops), 0
            for x, (e, l, t) in enumerate(ops):
                want = g0 + int(acc_ * (g1 - g0 + 1) * even / tot)
                acc_ += cost(t)
                g = max(g, e, min(want, l))
                while g <= g1 and used(g) + cost(t) + sum(cost(y) for y in rest[g]) > budget:
                    g += 1
                if g > g1 and spill and len(ops) - x <= spill:
                    left = [y[2] for y in ops[x:]]
                    break
                if g > min(l, g1):
                    ok = False
                    break
                fill[g].append(t)
            if ok:
                for g in rest:
                    fill[g] += rest[g]
                return budget, left
        raise AssertionError
    ops = []
    for x, r in enumerate(range(cfg.pre_c, 112)):
        ops += [(0, 4 * (r // 4) - 2, t) for t in center_reg(XC + r, vT + 2 * (x & 1))]
    b0, _ = place(ops, 0, 106, even=cfg.ev0 / 100)
    tiles = [(A0, 112, 166), (A0 + 16, 113, 167), (A0 + 32, 114, 221), (A0 + 48, 115, 221), (A4, 171, 226), (A4 + 16, 172, 226)]
    ops = []
    for x in (0, 1, 3, 2, 4, 5):
        ac, e, l = tiles[x]
        ops += [(e, l, t) for t in silu_tile(ac, HQUAD[x], x, store=False) if t != "s_nop 0"]
    quads = HQUAD
    b1, _ = place(ops, 112, 226, even=cfg.ev1 / 100)
    ops = []
    for x in range(2):
        ops += [(227 + x, 999, t) for t in silu_tile(A0 + 16 * x, quads[6 + x], 6 + x, store=False) if t != "s_nop 0"]
    b2, left = place(ops, 227, 251, spill=cfg.spill)
    print("vector budget per gap:", b0, b1, b2, "left over", len(left))
    ready = {}
    for g in sorted(fill):
        for op in fill[g]:
            for x, q4 in enumerate(quads):
                if op.startswith(f"v_cvt_pk_bf16_f32 v{q4 + 3},") and (g >= 227) == (x >= 6) and g >= 112:
                    ready[x] = g + 1
    g = cfg.hs0
    del LATE_H[:]
    for x in [0, 1, 3, 2, 4, 5, 6, 7]:
        g = max(g, ready.get(x, 999))
        g += g & 1
        while g in BARRIERS:
            g += 2
        if g > cfg.hs1:
            LATE_H.append(h_store2(x))
            continue
        slot0[g] = h_store2(x)
        g += cfg.hsd
    post = []
    lq = Q()
    body, qp = [], []
    cur = body
    for n in range(4):
        cur += reads[n]
        lq.issue(n), lq.issue(n)
    cur.append(f"s_waitcnt lgkmcnt({lq.need(lambda t: t in (0, 1))})")

    def emit(t):
        p = cur[-1]
        if p.startswith(("v_exp", "v_rcp")) and t.startswith("v_") and p.split()[1].rstrip(',') in t.replace(',', ' ').split()[2:]:
            cur.append("s_nop 0")
        cur.append(t)
    for n, e in enumerate(st):
        if n == 224:
            cur = qp
        cur.append(mfma(e['acc'], FR + 4 * (n & 3), XC + 4 * e['s'], first=(e['s'] == 0)))
        if cfg.w1 and n + 1 not in slot0 and n + 1 not in BARRIERS and n != 223:
            k = lq.need(lambda t: t == n + 1)
            if k is not None:
                cur.append(f"s_waitcnt lgkmcnt({k})")
        elif n & 1:
            k = lq.need(lambda t: t in (n + 1, n + 2))
            if k is not None:
                cur.append(f"s_waitcnt lgkmcnt({k})")
        if n in slot0:
            cur.append(slot0[n])
        if n == 223 and cfg.nob8 and cfg.diag2:
            cur += ts(cfg, 31, True)
        if n in BARRIERS or (n == 223 and not cfg.nob8):
            bi = BARRIERS.index(n) if n in BARRIERS else 6
            cur += (ts(cfg, 18 + 2 * bi, True) if cfg.diag2 else []) + ["s_barrier"] + (ts(cfg, 19 + 2 * bi, True) if cfg.diag2 else [])
        if n in (111, 167) and cfg.diag2:
            cur += ts(cfg, 32 if n == 111 else 33, True)
        if n + 4 < N:
            cur += reads[n + 4]
            lq.issue(n + 4), lq.issue(n + 4)
        for t in fill.get(n, []):
            emit(t)
    for t in left + post:
        emit(t)
    return body, qp


sPFW, sPFO = 18, 19


PFMOD = ['']


def pf_setup(cfg):
    o = [f"s_lshr_b32 s{sT0}, s2, 1", f"s_and_b32 s{sT0}, s{sT0}, 0x7c", f"s_add_u32 s{sT0}, s{sT0}, s{sWV}",
         f"s_mul_i32 s{sPFW}, s{sT0}, {14 * 896}", f"v_lshlrev_b32 v9, 7, v{vLANE}"]
    if cfg.nsplit:
        o += [f"s_mul_i32 s{sPFO}, s{sT0}, 7", f"s_lshr_b32 s{sPFO}, s{sPFO}, 1", f"s_mul_i32 s{sPFO}, s{sPFO}, 896",
              f"v_lshrrev_b32 v14, 2, v{vLANE}", "v_mul_u32_u24 v14, 896, v14", f"v_and_b32 v15, 3, v{vLANE}",
              "v_lshl_add_u32 v14, v15, 7, v14", f"s_mul_i32 s{sT0}, s{sP}, 384", f"v_add_u32 v14, s{sT0}, v14"]
    else:
        o += [f"s_mul_i32 s{sPFO}, s{sT0}, {3584 - 448}", f"s_and_b32 s{sPFO}, s{sPFO}, 0xffffff80"]
    return o


def pf_w2(cfg, part, n=1):
    o = []
    nw = max(0, min(part + n, 7) - part)
    per, va = (8, 14) if cfg.nsplit else (14, 9)
    if nw:
        mask = (1 << (per * nw)) - 1
        assert per * nw <= 64
        o += [f"s_mov_b32 exec_lo, {mask & 0xffffffff:#x}", f"s_mov_b32 exec_hi, {mask >> 32:#x}",
              f"s_add_u32 s{sT1}, s{sPFW}, {2 * 896 * part}",
              f"buffer_load_dword v{228 + part}, v{va}, {srd(sW2)}, s{sT1} offen {PFMOD[0]}"]
    if part <= 7 < part + n:
        o += [f"s_mov_b64 exec, {0xffff if cfg.nsplit else 0x3ffffff:#x}",
              f"buffer_load_dword v235, v{va}, {srd(sWO)}, s{sPFO} offen {PFMOD[0]}"]
    if o:
        o.append("s_mov_b64 exec, -1")
    return o


def first_touch():
    o = []
    for wv, r, nl, stride, add in ((0, sW2, 25, 6272, 0), (1, sWO, 14, 1568, 0), (2, sQ, 14, 1568, 0), (3, sW2, 25, 6272, 3072)):
        o += [f"s_cmp_lg_u32 s{sWV}, {wv}", f"s_cbranch_scc1 L_ft{wv}_@",
              f"s_mul_i32 s{sT1}, s2, {stride}", f"s_and_b32 s{sT1}, s{sT1}, 0xffffff80",
              f"s_mov_b64 exec, {(1 << nl) - 1:#x}",
              f"buffer_load_dword v{244 + wv}, v9, {srd(r)}, s{sT1} offen offset:{add}", "s_mov_b64 exec, -1", f"L_ft{wv}_@:"]
    return o


def loader_heavy(cfg):
    st = stream()
    first_read, last_use = {}, {}
    for n, e in enumerate(st):
        key = (e['u'], e['s']) if e['kind'] == 'W' else ('Q', e['s'])
        first_read.setdefault(key, n - 4)
        last_use[key] = n
    fills = [(0, s) for s in range(28)] + [(1, s) for s in range(28)] + [('Q', m) for m in range(7)]

    def target(f):
        return slot_u(*f) if f[0] != 'Q' else L_WQ + 4096 * f[1]
    prev_owner = {}
    for s in range(28):
        prev_owner[slot_u(0, s)] = (0, s)
    o = []
    vq = Q()
    issued = set()

    def issue(f):
        if f[0] == 'Q':
            m = f[1]
            o.extend([f"s_add_u32 m0, s{sT2}, {L_WQ + 4096 * m}", "s_nop 0",
                      f"buffer_load_dwordx4 v3, {srd(sQ)}, s{sRB + m} offen lds"])
        else:
            u, s = f
            o.extend([f"s_add_u32 m0, s{sM0}, {slot_u(u, s)}", f"s_add_u32 s{sSO}, s{sRA + (s >> 2)}, {(s & 3) * 16 * 3584 + u * 128}",
                      f"buffer_load_dwordx4 v2, {srd(sW)}, s{sSO} offen lds"])
        vq.issue(f)
        issued.add(f)

    def needed_before(nb):
        out = []
        for f in fills:
            keys = [f] if f[0] != 'Q' else [('Q', 4 * f[1] + x) for x in range(4)]
            if min(first_read[k] for k in keys) < nb:
                out.append(f)
        return out

    def wait_for(fs):
        for f in fs:
            assert f in issued, f
        k = vq.need(lambda t: t in fs)
        if k is not None:
            o.append(f"s_waitcnt vmcnt({k})")
    o += rot_table(sRA, 64 * 3584)
    for s in range(cfg.early_w):
        issue((0, s))
    o += code_pf(cfg)
    o += rot_table(sRB, 64 * 896, sT3) + a_init_regs() + pf_setup(cfg)
    if cfg.mid_w:
        o.append("s_barrier")
        for s in range(cfg.early_w, cfg.early_w + cfg.mid_w):
            issue((0, s))
    o.append("s_barrier")
    for s in range(cfg.early_w + cfg.mid_w, 12):
        issue((0, s))
    pts = BARRIERS + [10 ** 6 if cfg.nob8 else 223]
    o.append("s_barrier")
    o += probe(cfg, 4)
    wait_for(needed_before(pts[0]))
    o.append("s_barrier")
    done_upto = -1
    flags = set()
    for bi in range(len(pts)):
        cnt = 0
        for f in fills:
            if f in issued:
                continue
            t = target(f)
            own = prev_owner.get(t)
            if (own == f or own is None or last_use[own] <= done_upto) and cnt < cfg.caps[bi]:
                issue(f)
                cnt += 1
            else:
                break
        if cfg.ft == bi:
            o.extend([x.replace('@', 'h') for x in first_touch()])
            vq.issue('ft')
        pf = pf_w2(cfg, sum(cfg.pf_at[:bi]), cfg.pf_at[bi]) if cfg.pf_w2 else []
        o.extend(pf)
        for x in pf:
            if x.startswith("buffer_load"):
                vq.issue('pf')
        nxt = pts[bi + 1] if bi + 1 < len(pts) else 10 ** 9
        if cfg.sent_at == bi and not cfg.chain2:
            o.extend(o_sentinel())
            vq.issue('s'), vq.issue('s')
        if cfg.res_at == bi and not cfg.chain2:
            o.extend(res_load())
            vq.issue('r')
        if cfg.diag4:
            o.extend(ts(cfg, 18 + 2 * bi))
        wait_for(needed_before(nxt))
        if cfg.diag4:
            o.extend(ts(cfg, 19 + 2 * bi))
        if bi == len(pts) - 1:
            break
        o.append("s_barrier")
        done_upto = pts[bi]
    assert len(issued) == len(fills)
    o += probe(cfg, 9)
    if cfg.nodma:
        k = [x for x, t in enumerate(o) if t == "s_barrier"][2 + (1 if cfg.mid_w else 0)]
        o = o[:k] + [t for t in o[k:] if not t.startswith("buffer_load")]
    if cfg.diag4:
        o += ts(cfg, 32) + ["s_waitcnt vmcnt(3)"] + ts(cfg, 33) + ["s_waitcnt vmcnt(1)"] + ts(cfg, 34) + ["s_waitcnt vmcnt(0)"] + ts(cfg, 35)
    return o


def a_setup(cfg):
    o = []
    a = o.append
    o += ids(cfg)
    if cfg.touch:
        for wv, items in enumerate((((26, 0), (26, 0x200000), (26, 0x400000)), ((26, 0x600000), (26, 0x800000), (22, 0)),
                                    ((20, 0), (12, 0), (6, 0)), ((24, 0), (16, 0), (18, 0)))):
            a(f"s_cmp_lg_u32 s{sWV}, {wv}")
            a(f"s_cbranch_scc1 L_touch{wv}")
            for k, (p, off) in enumerate(items):
                if off:
                    a(f"s_mov_b32 s{sT0}, {off}")
                    a(f"s_load_dword s{100 + (k & 1)}, s[{p}:{p + 1}], s{sT0}")
                else:
                    a(f"s_load_dword s{100 + (k & 1)}, s[{p}:{p + 1}], 0")
            a(f"L_touch{wv}:")
    a(f"s_bitcmp1_b32 s{sWV}, 0")
    a(f"s_cselect_b32 s{sW}, s18, s16")
    a(f"s_cselect_b32 s{sW + 1}, s19, s17")
    a(f"s_mov_b32 s{sW + 2}, {448 * 3584}")
    a(f"s_mov_b32 s{sW + 3}, 0x20000")
    a(f"s_mov_b32 s{sQ}, s6")
    a(f"s_mov_b32 s{sQ + 1}, s7")
    a(f"s_mov_b32 s{sQ + 2}, {448 * 896}")
    a(f"s_mov_b32 s{sQ + 3}, 0x20000")
    o += rest_srds(cfg)
    for r, lo, size in ((sW2, 20, 1792 * 896), (sWO, 12, 448 * 896)):
        o += [f"s_mov_b32 s{r}, s{lo}", f"s_mov_b32 s{r + 1}, s{lo + 1}", f"s_mov_b32 s{r + 2}, {size}",
              f"s_mov_b32 s{r + 3}, 0x20000"]
    a(f"v_lshrrev_b32 v4, 3, v{vLANE}")
    a(f"s_lshr_b32 s{sT0}, s{sWV}, 1")
    a(f"s_and_b32 s{sT1}, s{sWV}, 1")
    a(f"s_lshl_b32 s{sM0}, s{sWV}, 10")
    a("v_and_b32 v5, 2, v4")
    a(f"s_lshl_b32 s{sT1}, s{sT1}, 2")
    a(f"v_or_b32 v5, s{sT1}, v5")
    a(f"v_and_b32 v6, 7, v{vLANE}")
    a("v_xor_b32 v5, v5, v6")
    a(f"s_mul_i32 s{sT0}, s{sT0}, {8 * 3584}")
    a(f"s_lshl_b32 s{sT1}, s{sFS}, 8")
    a(f"s_add_u32 s{sT0}, s{sT0}, s{sT1}")
    a("v_mul_u32_u24 v4, 3584, v4")
    a("v_lshl_add_u32 v2, v5, 4, v4")
    a(f"v_add_u32 v2, s{sT0}, v2")
    a(f"v_lshrrev_b32 v4, 2, v{vLANE}")
    a(f"v_and_b32 v5, 3, v{vLANE}")
    a("v_lshlrev_b32 v5, 4, v5")
    a("v_mad_u32_u24 v7, v4, 56, v5")
    a("v_mul_u32_u24 v4, 896, v4")
    a(f"s_mul_i32 s{sT0}, s{sJ}, 56")
    a(f"v_add3_u32 v3, v4, v5, s{sT0}")
    a(f"s_lshl_b32 s{sT2}, s{sWV}, 10")
    a(f"s_mul_i32 s{sT3}, s{sWV}, {16 * 896}")
    return o


AS0, AS1, AP, AO, AQ, AK, AV = 16, 32, 48, 64, 128, 160, 192
NB = [2]
KVC = [0]
SIG = [False]
vA16, vKVO = 8, 9


def a_init_regs():
    o = [f"v_mov_b32 v{r}, 0" for r in list(range(AO, AO + 64)) + list(range(AP, AP + 8)) + [AS1 + 14, AS1 + 15] +
         list(range(AV + 8 * (NB[0] - 1), AV + 8 * NB[0]))]
    o.append(f"v_lshlrev_b32 v{vA16}, 4, v{vLANE}")
    o.append("v_mov_b32 v56, 0")
    return o


vOW = 224


def o_sentinel():
    o = []
    a = o.append
    a(f"s_lshl_b32 s{sT0}, s{sI}, 2")
    a(f"s_add_u32 s{sT0}, s{sT0}, s{sWV}")
    a(f"s_lshl_b32 s{sOO}, s{sT0}, 4")
    a(f"s_add_u32 s{sOO}, s{sOO}, s{sJ}")
    a(f"s_lshl_b32 s{sOO}, s{sOO}, 11")
    a(f"s_add_u32 s{sOO}, s{sOO}, {WS_O}")
    for r in range(4):
        a(f"v_mov_b32 v{240 + r}, -1")
    for u in range(2):
        a(f"buffer_store_dwordx4 {vr(240, 4)}, v{vA16}, {srd(sWS)}, s{sOO} offen offset:{1024 * u} sc1")
    return o


def loader_light(cfg):
    o = []
    a = o.append
    a(f"s_cmp_eq_u32 s{sP}, 0")
    a(f"s_cselect_b32 s{sW}, s8, s10")
    a(f"s_cselect_b32 s{sW + 1}, s9, s11")
    a(f"s_mov_b32 s{sW + 2}, {448 * 56}")
    a(f"s_mul_i32 s{sT1}, s{sWV}, 896")
    o += rot_table(sRA, 64 * 56, sT1)
    for m in range(7):
        a(f"s_add_u32 m0, s{sT2}, {L_R + 4096 * m}")
        a("s_nop 0")
        a(f"buffer_load_dwordx4 v7, {srd(sW)}, s{sRA + m} offen lds")
    o += code_pf(cfg)
    o += rot_table(sRB, 64 * 896, sT3) + a_init_regs() + pf_setup(cfg)
    if cfg.mid_w:
        a("s_barrier")
    a("s_barrier")
    a(f"s_cmp_lg_u32 s{sWV}, 0")
    a("s_cbranch_scc1 L_noclr")
    a(f"s_lshl_b32 s{sT0}, s{sI}, 14")
    a(f"s_lshl_b32 s{sT1}, s{sP}, 13")
    a(f"s_add_u32 s{sT0}, s{sT0}, s{sT1}")
    a(f"s_add_u32 s{sT0}, s{sT0}, {WS_FLAG}")
    a(f"v_lshlrev_b32 v4, 7, v{vLANE}")
    a(f"buffer_store_dword v{AP}, v4, {srd(sWS)}, s{sT0} offen sc1")
    a(f"v_mov_b32 v4, {L_KVC}")
    a(f"ds_write_b32 v4, v{AP}")
    a("L_noclr:")
    o += o_sentinel()
    a("s_barrier")
    a("s_waitcnt vmcnt(0) lgkmcnt(0)")
    a("s_barrier")
    a("s_barrier")
    for m in range(7):
        a(f"s_add_u32 m0, s{sT2}, {L_WQ + 4096 * m}")
        a("s_nop 0")
        a(f"buffer_load_dwordx4 v3, {srd(sQ)}, s{sRB + m} offen lds")
    if cfg.ft >= 0:
        o += [x.replace('@', 'l') for x in first_touch()] + ["s_waitcnt vmcnt(0)"]
    if cfg.pf_w2:
        o += pf_w2(cfg, 0, 4)
    a(f"s_waitcnt vmcnt({1 if cfg.pf_w2 else 0})")
    if cfg.pf_w2:
        o += pf_w2(cfg, 4, 4)
    a("s_barrier")
    return o


def kv_load(kind, buf, rel):
    base = (AK if kind == 'K' else AV) + 8 * buf
    off = 0 if kind == 'K' else 2048
    return [f"buffer_load_dwordx4 {vr(base + 4 * u, 4)}, v{vA16}, {srd(sWS)}, s{rel} offen offset:{off + 1024 * u} sc1"
            for u in range(2)]


THRESH = 80.0 * 80.0 / 1.02


def a_pre_attn(cfg):
    o = []
    a = o.append
    o += ts(cfg, 1) + probe(cfg, 5)
    a("v_mov_b32 v4, 128")
    o += poll("L_pkv", 5, 4, sDBG, ["v_cmp_eq_u32 vcc, 0, v5", "s_nop 0", "s_cmp_lg_u64 vcc, 0"], sleep=cfg.sl_kv)
    o += ts(cfg, 2)
    a(f"v_lshlrev_b32 v4, 2, v{vLANE}")
    a(f"s_mov_b32 s{sT0}, {WS_KMAX}")
    a(f"buffer_load_dword v5, v4, {srd(sWS)}, s{sT0} offen sc1")
    a(f"s_lshl_b32 s{sSO}, s{sWV}, 16")
    if cfg.kvc:
        for kt in range(NB[0] - 1):
            o += kv_load('K', kt, sSO) + kv_load('V', kt, sSO) + [f"s_add_u32 s{sSO}, s{sSO}, 4096"]
        nkv = 4 * NB[0] - 4
    else:
        o += kv_load('K', 0, sSO)
        for kt in range(NB[0] - 1):
            o += kv_load('V', kt, sSO) + [f"s_add_u32 s{sSO}, s{sSO}, 4096"] + kv_load('K', kt + 1, sSO)
        nkv = 4 * NB[0] - 2
    npf = 0
    if cfg.chain2:
        a(f"s_cmp_eq_u32 s{sNT}, 7")
        a("s_cbranch_scc1 L_A_nosent")
        o += o_sentinel() + res_load()
        a("L_A_nosent:")
    if cfg.pf_kv:
        a(f"s_lshr_b32 s{sT0}, s2, 1")
        a(f"s_and_b32 s{sT0}, s{sT0}, 0x7c")
        a(f"s_add_u32 s{sT0}, s{sT0}, s{sWV}")
        a(f"s_lshl_b32 s{sT0}, s{sT0}, 11")
        a("s_mov_b64 exec, 0xffff")
        a(f"buffer_load_dword v236, v9, {srd(sWS)}, s{sT0} offen sc1")
        a("s_mov_b64 exec, -1")
        npf = 1
    for sg in range(4):
        a(f"s_add_u32 s{sT0}, s{sWV}, {1 + sg}")
        a(f"s_and_b32 s{sT0}, s{sT0}, 3")
        a(f"s_lshl_b32 s{sT0}, s{sT0}, 11")
        a(f"s_add_u32 s{sT0}, s{sT0}, {L_QX}")
        a(f"v_add_u32 v{10 + sg}, s{sT0}, v{vA16}")
    for sg in range(4):
        a(f"s_add_u32 s{sT0}, s{sWV}, {1 + sg}")
        a(f"s_and_b32 s{sT0}, s{sT0}, 3")
        a(f"s_mul_i32 s{sT0}, s{sT0}, 12288")
        a(f"v_add_u32 v{vOW + sg}, s{sT0}, v{vA16}")
    a(f"v_lshrrev_b32 v6, 5, v{vLANE}")
    a(f"v_and_b32 v7, 31, v{vLANE}")
    a("v_lshlrev_b32 v7, 2, v7")
    a("v_lshl_add_u32 v6, v6, 8, v7")
    if cfg.chain2:
        a(f"s_cmp_eq_u32 s{sNT}, 7")
        a("s_cbranch_scc1 L_A_w1")
        a(f"s_waitcnt vmcnt({nkv + npf + 3}) lgkmcnt(0)")
        a("s_branch L_A_w2")
        a("L_A_w1:")
    a(f"s_waitcnt vmcnt({nkv + npf}) lgkmcnt(0)")
    if cfg.chain2:
        a("L_A_w2:")
    o += wave_max_to_sgpr(5, sKMAX)
    if cfg.chain2:
        a("s_waitcnt vmcnt(1)")
    o += ts(cfg, 3)
    if not cfg.nob8:
        a(f"s_cmp_eq_u32 s{sNT}, 7")
        a("s_cbranch_scc1 L_A_b9")
        a("s_barrier")
        a("L_A_b9:")
    a("s_barrier")
    o += ts(cfg, 4)
    nb = NB[0]
    for sg in range(4):
        a(f"ds_read_b128 {vr(AQ + 8 * sg, 4)}, v{10 + sg}")
        a(f"ds_read_b128 {vr(AQ + 8 * sg + 4, 4)}, v{10 + sg} offset:1024")
    a(f"s_waitcnt vmcnt({(4 * nb - 8 if cfg.kvc else 4 * nb - 4) + npf}) lgkmcnt(6)")
    o += [mfma(AS0, AK, AQ, first=True), mfma(AS0, AK + 4, AQ + 4)]
    a("s_barrier")
    a(f"ds_read_b32 v4, v6 offset:{L_N2}")
    a(f"ds_read_b32 v5, v6 offset:{L_N2 + 512}")
    a(f"s_mov_b32 s{sCNT}, {16 // nb - 1}")
    a(f"v_mov_b32 v10, {L_CNT}")
    a("v_mov_b32 v11, 1")
    a("s_waitcnt lgkmcnt(0)")
    a("v_max_f32 v4, v4, v5")
    a(f"v_mul_f32 v4, s{sKMAX}, v4")
    a(f"v_cmp_nge_f32 vcc, {f2u(-1.0 if cfg.force_fallback else THRESH):#x}, v4")
    a("s_nop 1")
    a("s_cbranch_vccnz L_fallback")
    return o


def fallback(cfg):
    o = ["L_fallback:", "s_waitcnt vmcnt(0)"]
    a = o.append
    M = 228
    KB = 240
    for sg in range(4):
        a(f"v_mov_b32 v{M + sg}, 0xff800000")
    a(f"s_mov_b32 s{sT0}, 0")
    a("L_fb_loop:")
    for u in range(2):
        a(f"buffer_load_dwordx4 {vr(KB + 4 * u, 4)}, v{vA16}, {srd(sWS)}, s{sT0} offen offset:{1024 * u} sc1")
    a("s_waitcnt vmcnt(0)")
    for sg in range(4):
        a(mfma(AS0, KB, AQ + 8 * sg, first=True))
        a(mfma(AS0, KB + 4, AQ + 8 * sg + 4))
        a("s_nop 11")
        for r in range(0, 16, 2):
            a(f"v_max3_f32 v{M + sg}, v{M + sg}, v{AS0 + r}, v{AS0 + r + 1}")
    a(f"s_add_u32 s{sT0}, s{sT0}, 4096")
    a(f"s_cmp_lt_u32 s{sT0}, {64 * 4096}")
    a("s_cbranch_scc1 L_fb_loop")
    for sg in range(4):
        o += half_sum(M + sg, 4, "v_max_f32")
        a(f"v_cvt_pk_bf16_f32 v4, -v{M + sg}, -v{M + sg}")
        a("v_lshlrev_b32 v4, 16, v4")
        a(f"v_sub_f32 v4, -v{M + sg}, v4")
        a(f"v_cvt_pk_bf16_f32 v4, -v{M + sg}, v4")
        a(f"v_cndmask_b32 v{AQ + 8 * sg + 6}, v{AQ + 8 * sg + 6}, v4, s[{sUP}:{sUP + 1}]")
    a("s_nop 1")
    o += [mfma(AS0, AK, AQ, first=True), mfma(AS0, AK + 4, AQ + 4), "s_nop 11"]
    a("s_branch L_attn_loop")
    return o


def o_writes(sg):
    return [f"ds_write_b128 v{vOW + sg}, {vr(AO + 16 * sg + 4 * u, 4)} offset:{L_ORED + sg * 4096 + u * 1024}" for u in range(4)]


def attn_block(n, last=False, peel=None):
    nb = NB[0]
    end = 4 * nb - 1
    X, Y = (AS0, AS1) if n % 2 == 0 else (AS1, AS0)
    q, qn, qp = n & 3, (n + 1) & 3, (n - 1) & 3
    kb = AK + 8 * (((n + 1) >> 2) % nb)
    vb = AV + 8 * (((n - 1) >> 2) % nb)
    E = lambda i: f"v_exp_f32 v{X + i}, v{X + i}"
    C = lambda i: f"v_cvt_pk_bf16_f32 v{AP + i}, v{X + 2 * i}, v{X + 2 * i + 1}"
    Cp7 = f"v_cvt_pk_bf16_f32 v{AP + 7}, v{Y + 14}, v{Y + 15}"
    QK0, QK1 = mfma(Y, kb, AQ + 8 * qn, first=True), mfma(Y, kb + 4, AQ + 8 * qn + 4)
    PV0, PV1 = mfma(AO + 16 * qp, vb, AP), mfma(AO + 16 * qp, vb + 4, AP + 4)
    if last:
        return [Cp7, PV0, "s_nop 0", PV1]
    if peel and n == end:
        sig = ["s_mov_b64 exec, 1", "ds_add_u32 v10, v11", "s_mov_b64 exec, -1"] if SIG[0] else []
        return ([Cp7, E(0), E(1), PV0, E(2), E(3), E(4), PV1] + o_writes(1) +
                [E(5), E(6), C(0), E(7), E(8), C(1), E(9), E(10), C(2)] + o_writes(2) + sig +
                [E(11), E(12), C(3), E(13), C(4), E(14), C(5), E(15), C(6)])

    def wait(tag, steady):
        if not peel:
            return [f"s_waitcnt vmcnt({steady})"]
        k = peel.need(lambda t: t == tag)
        return [] if k is None else [f"s_waitcnt vmcnt({k})"]
    o = [Cp7]
    kvc = KVC[0]
    if q == 3 and not kvc:
        o += wait(('K', (n >> 2) + 1), 4 * nb - 6)
    s0 = [f"s_add_u32 s{sSO}, s{sSO}, 4096"] if kvc and q == 1 and not peel else []
    s1 = []
    if n == end and not peel:
        s0, s1 = [f"s_sub_u32 s{sCNT}, s{sCNT}, 1"], [f"s_cmp_lg_u32 s{sCNT}, 0"]
    o += [QK0] + s0 + [E(0), E(1), E(2), QK1] + s1
    o += [E(3), E(4), E(5)]
    if q == 1 and not kvc:
        o += wait(('V', n >> 2), 4 * nb - 4)
    o += [PV0, E(6), E(7), E(8), PV1]
    if q == 2 and kvc == 1 and not (peel and (n >> 2) + 1 >= nb):
        o += wait(('V', (n >> 2) + 1), 4 * nb - 8)
    if kvc:
        if q == 0 and kvc == 2 and (n >> 2) + 1 < nb + (0 if peel else 1):
            o += wait(('V', (n >> 2) + 1), 4 * nb - 12)
        if q == 0 and not (peel and n):
            b = ((n >> 2) - 1) % nb
            o += kv_load('K', b, sSO) + kv_load('V', b, sSO)
            if peel:
                for _ in range(4):
                    peel.issue(('V', nb - 1))
    else:
        if q == 0 and not (peel and n):
            o += kv_load('V', ((n >> 2) - 1) % nb, sSO)
            if peel:
                peel.issue(('V', nb - 1)), peel.issue(('V', nb - 1))
        if q == 3 and not peel:
            o += [f"s_add_u32 s{sSO}, s{sSO}, 4096"] + kv_load('K', (n >> 2) % nb, sSO)
    tail = [E(9), C(0), E(10), C(1), E(11), C(2), E(12), C(3), E(13), C(4), E(14), C(5), E(15), C(6)]
    if peel and n == end - 1:
        tail = o_writes(0) + tail
    return o + tail


def attention(cfg):
    nb = NB[0]
    o = []
    loop = []
    for n in range(4 * nb):
        loop += attn_block(n)
    assert cfg.kvc
    loop += ["s_cbranch_scc1 L_attn_loop"]
    pq = Q()
    for kt in range(nb - 1):
        for t in ([('V', kt)] * 4 if cfg.kvc else (('V', kt), ('V', kt), ('K', kt + 1), ('K', kt + 1))):
            pq.issue(t)
    post = []
    for n in range(4 * nb):
        post += attn_block(n, peel=pq)
    post += attn_block(4 * nb, last=True)
    return o, loop, post


def lds_wait4(label, first, sleep, d=4):
    return ([f"s_mov_b32 s{sCNT}, {1 << (23 if sleep else 25)}"] + first + [f"{label}:", "s_waitcnt lgkmcnt(0)"] + (["s_setprio 1"] if sleep else []) +
            [f"v_readfirstlane_b32 s{sT0}, v{d}", "s_setprio 0" if sleep else "s_nop 0", f"s_cmp_ge_u32 s{sT0}, 4", f"s_cbranch_scc1 {label}_ok", f"s_sub_u32 s{sCNT}, s{sCNT}, 1",
            f"s_cbranch_scc1 {label}_ok"] + ([f"s_sleep {sleep}"] if sleep else []) +
            [f"ds_read_b32 v{d}, v10", f"s_branch {label}", f"{label}_ok:"])


def a_post(cfg):
    o = []
    a = o.append
    if cfg.nob10:
        o += ts(cfg, 5)
        o += lds_wait4("L_w4", ["ds_read_b32 v4, v10"], 0)
    else:
        a("s_waitcnt lgkmcnt(0)")
        o += ts(cfg, 5)
        a("s_barrier")
    o += ts(cfg, 6) + probe(cfg, 3)
    R = 128
    for x in range(12):
        a(f"ds_read_b128 {vr(R + 4 * x, 4)}, v{vOW + 3} offset:{L_ORED + x * 1024}")
    O = AO + 48
    order = [3, 0, 1, 2]
    lq = Q()
    o = o[:len(o) - 12]
    a = o.append
    for u in order:
        for sg in range(3):
            a(f"ds_read_b128 {vr(R + 16 * sg + 4 * u, 4)}, v{vOW + 3} offset:{L_ORED + (4 * sg + u) * 1024}")
            lq.issue((sg, u))
    for u in order:
        a(f"s_waitcnt lgkmcnt({lq.need(lambda t: t == (1, u))})")
        for r in range(4):
            a(f"v_add_f32 v{R + 4 * u + r}, v{R + 4 * u + r}, v{R + 16 + 4 * u + r}")
        a(f"s_waitcnt lgkmcnt({lq.need(lambda t: t == (2, u))})")
        for r in range(4):
            a(f"v_add_f32 v{O + 4 * u + r}, v{O + 4 * u + r}, v{R + 32 + 4 * u + r}")
        for r in range(4):
            a(f"v_add_f32 v{O + 4 * u + r}, v{O + 4 * u + r}, v{R + 4 * u + r}")
        if u == 3:
            a(f"v_mov_b32 v4, v{O + 12}")
            a(f"v_mov_b32 v5, v{O + 12}")
            a("s_nop 1")
            a("v_permlane32_swap_b32 v4, v5")
            a("v_rcp_f32 v5, v5")
            a("s_nop 0")
            a(f"v_cndmask_b32 v4, v5, 0, s[{sUP}:{sUP + 1}]")
        for r in range(4):
            a(f"v_mul_f32 v{O + 4 * u + r}, v{O + 4 * u + r}, v{5 if u < 3 else 4}")
        for r in range(2):
            a(f"v_cvt_pk_bf16_f32 v{AP + 2 * u + r}, v{O + 4 * u + 2 * r}, v{O + 4 * u + 2 * r + 1}")
        if u in (1, 2):
            b = u - 1
            a(f"buffer_store_dwordx4 {vr(AP + 4 * b, 4)}, v{vA16}, {srd(sWS)}, s{sOO} offen offset:{1024 * b} sc1")
    o += ts(cfg, 7)
    a(f"s_cmp_eq_u32 s{sNT}, 7")
    a("s_cbranch_scc1 L_fin")
    if cfg.res_at == 9:
        o += res_load()
    return o


vXRES = 60


BFP = [False]


def res_load():
    o = []
    a = o.append
    a(f"v_lshrrev_b32 v57, 3, v{vLANE}")
    a(f"v_and_b32 v58, 7, v{vLANE}")
    a("v_mul_u32_u24 v56, 896, v57")
    a("v_lshl_add_u32 v56, v58, 4, v56")
    a(f"s_lshl_b32 s{sT0}, s{sI}, 7")
    a(f"s_lshl_b32 s{sT1}, s{sMT}, 6")
    a(f"s_add_u32 s{sT0}, s{sT0}, s{sT1}")
    a(f"s_lshl_b32 s{sT1}, s{sWV}, 3")
    a(f"s_add_u32 s{sT0}, s{sT0}, s{sT1}")
    a(f"s_mul_i32 s{sT0}, s{sT0}, 896")
    a(f"s_lshl_b32 s{sT2}, s{sNC}, 7")
    a(f"s_add_u32 s{sT0}, s{sT0}, s{sT2}")
    a(f"v_add_u32 v56, s{sT0}, v56")
    a(f"buffer_load_dwordx4 {vr(vXRES, 4)}, v56, {srd(sX)}, 0 offen")
    a(f"v_add_u32 v57, s{sT1}, v57")
    a(f"v_mul_u32_u24 v57, {144 if BFP[0] else 272}, v57")
    a(f"v_lshl_add_u32 v57, v58, {4 if BFP[0] else 5}, v57")
    a(f"v_add_u32 v57, {L_RING}, v57")
    a(f"v_add_u32 v58, {2 * RING}, v57")
    return o


def final(cfg):
    o = ["L_final:", "s_barrier"]
    a = o.append
    o += ts(cfg, 12)
    R = 64
    if cfg.bfp:
        for kq in range(4):
            a(f"ds_read_b128 {vr(R + 4 * kq, 4)}, v{57 + (kq >> 1)} offset:{(kq & 1) * RING}")
        a("v_mov_b32 v6, 0x00003f80")
        a("v_mov_b32 v7, 0x3f800000")
    else:
        for kq in range(4):
            for u in range(2):
                a(f"ds_read_b128 {vr(R + 8 * kq + 4 * u, 4)}, v{57 + (kq >> 1)} offset:{(kq & 1) * RING + 16 * u}")
    a("s_waitcnt vmcnt(0)")
    for r in range(4):
        a(f"v_lshlrev_b32 v{8 + 2 * r}, 16, v{vXRES + r}")
        a(f"v_and_b32 v{9 + 2 * r}, s{sHI}, v{vXRES + r}")
    for kq in range(4):
        if cfg.bfp:
            a(f"s_waitcnt lgkmcnt({3 - kq})")
            for r in range(8):
                a(f"v_dot2c_f32_bf16 v{8 + r}, v{R + 4 * kq + r // 2}, v{6 + (r & 1)}")
        else:
            a(f"s_waitcnt lgkmcnt({6 - 2 * kq})")
            for r in range(8):
                a(f"v_add_f32 v{8 + r}, v{8 + r}, v{R + 8 * kq + r}")
    for r in range(4):
        a(f"v_cvt_pk_bf16_f32 v{vXRES + r}, v{8 + 2 * r}, v{9 + 2 * r}")
    a(f"buffer_store_dwordx4 {vr(vXRES, 4)}, v56, {srd(sOUT)}, 0 offen {('', 'sc1', 'sc0 sc1', 'nt')[cfg.outsc]}")
    if cfg.amp[0] >= 0:
        o += ts(cfg, 15)
        a(f"s_cmp_{'lt' if cfg.amp[2] else 'ge'}_u32 s{sWV}, 4")
        a("s_cbranch_scc1 L_fin")
        a("s_sub_u32 s99, s100, s99")
        a(f"s_mul_i32 s99, s99, {cfg.amp[3]}")
        a(f"s_memrealtime s[{sTS}:{sTS + 1}]")
        a("s_waitcnt lgkmcnt(0)")
        a(f"s_add_u32 s99, s99, s{sTS}")
        a("L_amp:")
        a(f"s_memrealtime s[{sTS}:{sTS + 1}]")
        a("s_waitcnt lgkmcnt(0)")
        a(f"s_sub_u32 s100, s{sTS}, s99")
        a("s_cmp_lt_i32 s100, 0")
        a("s_cbranch_scc1 L_amp")
    a("L_fin:")
    if cfg.diag:
        o += ts(cfg, 15)
        o += [f"s_memrealtime s[{sTS}:{sTS + 1}]", "s_waitcnt lgkmcnt(0)", f"v_writelane_b32 v{vTS}, s{sTS}, 17"]
        a(f"s_lshl_b32 s{sT0}, s2, 3")
        a(f"s_add_u32 s{sT0}, s{sT0}, s{sWV}")
        a(f"s_lshl_b32 s{sT0}, s{sT0}, 8")
        a(f"s_add_u32 s{sT0}, s{sT0}, {WS_DIAG}")
        a(f"v_lshlrev_b32 v4, 2, v{vLANE}")
        a(f"buffer_store_dword v{vTS}, v4, {srd(sWS)}, s{sT0} offen")
        if cfg.dbgout >= 0:
            a(f"s_lshl_b32 s{sT0}, s2, 3")
            a(f"s_add_u32 s{sT0}, s{sT0}, s{sWV}")
            a(f"s_cmp_lg_u32 s{sT0}, {cfg.dbgout}")
            a("s_cbranch_scc1 L_end")
            a(f"v_readlane_b32 s{sT1}, v{vTS}, 0")
            a(f"v_readlane_b32 s{sT2}, v{vTS}, 16")
            a(f"v_readlane_b32 s{sT3}, v{vTS}, 17")
            a("s_nop 3")
            a(f"s_sub_u32 s{sT2}, s{sT3}, s{sT2}")
            a(f"v_subrev_u32 v5, s{sT1}, v{vTS}")
            a(f"v_writelane_b32 v5, s{sT2}, 14")
            a("s_mov_b64 exec, 0xfffe")
            a(f"buffer_store_dword v5, v4, {srd(sDBG)}, 0 offen")
    a("L_end:")
    a("s_endpgm")
    return o


def g_front(cfg):
    o = ["L_G:"] + ids(cfg)
    a = o.append
    if cfg.diag3:
        o += ts(cfg, 34, True)
    o += rest_srds(cfg)
    a(f"s_mov_b32 s{sH}, s26")
    a(f"s_mov_b32 s{sH + 1}, s27")
    a(f"s_cmp_eq_u32 s{sNT}, 7")
    a(f"s_cselect_b32 s{sH + 2}, 0, {WS_END}")
    a(f"s_mov_b32 s{sH + 3}, 0x20000")
    a(f"s_mul_i32 s{sHO}, s{sT0}, 112")
    a(f"s_lshl3_add_u32 s{sHO}, s{sFS}, s{sHO}")
    a(f"s_lshl_b32 s{sHO}, s{sHO}, 10")
    a(f"s_add_u32 s{sHO}, s{sHO}, {WS_H}")
    if cfg.s2:
        for x in range(8):
            a(f"s_add_u32 s{sHS[x]}, s{sHO}, {1024 * x}")
    a(f"v_and_b32 v8, 31, v{vLANE}")
    a(f"v_lshrrev_b32 v9, 5, v{vLANE}")
    a("v_bfe_u32 v10, v8, 1, 3")
    a("v_xor_b32 v10, v10, v9")
    a("v_lshlrev_b32 v10, 4, v10")
    a("v_lshl_add_u32 v10, v8, 7, v10")
    a(f"v_add_u32 v20, s{sM0}, v10")
    for k in range(1, 4):
        a(f"v_xor_b32 v{20 + k}, {32 * k}, v20")
    a(f"v_mov_b32 v{vONE}, 0x3f803f80")
    for r in range(4):
        a(f"v_mov_b32 v{vT + r}, 0")
    a(f"v_lshlrev_b32 v{vL16}, 4, v{vLANE}")
    a("s_waitcnt lgkmcnt(0)")

    def dots(L):
        d = []
        for r in range(16):
            x = XC + 16 * L + r
            d += [f"v_dot2c_f32_bf16 v{vT + (r & 1)}, v{x}, v{vONE}", f"v_dot2c_f32_bf16 v{vT + 2 + (r & 1)}, v{x}, v{x}"]
        return d
    if cfg.xd >= 7:
        a("s_barrier")
    for L in range(7):
        a(f"s_waitcnt vmcnt({4 * (min(L + cfg.xd, 7) - 1 - L)})")
        if cfg.diag3:
            o += ts(cfg, 26 + L, True)
        for k in range(4):
            a(f"ds_read_b128 {vr(XC + 16 * L + 4 * k, 4)}, v{20 + k} offset:{L * 4096}")
        if L == 0 and cfg.mid_w:
            a("s_barrier")
        if L + cfg.xd < 7:
            o += x_dma(L + cfg.xd)
            if L + cfg.xd == 6:
                a("s_barrier")
                o += ts(cfg, 1, True)
        if L:
            a("s_waitcnt lgkmcnt(4)")
            o += dots(L - 1)
    a(f"v_bfe_u32 v8, v{vLANE}, 4, 1")
    a(f"v_bfe_u32 v10, v{vLANE}, 2, 2")
    a(f"v_and_b32 v11, 3, v{vLANE}")
    a("v_lshlrev_b32 v11, 3, v11")
    a("v_lshl_add_u32 v12, v9, 3, v10")
    a("v_lshlrev_b32 v12, 6, v12")
    a("v_lshl_add_u32 v12, v8, 5, v12")
    a(f"v_add_u32 v{vQR}, v12, v11")
    a("v_lshrrev_b32 v12, 1, v10")
    a("v_lshl_or_b32 v12, v8, 1, v12")
    a("v_lshl_add_u32 v12, v12, 5, v11")
    a("v_lshl_add_u32 v12, v10, 7, v12")
    a("v_lshl_add_u32 v12, v8, 10, v12")
    a("v_lshl_add_u32 v12, v9, 11, v12")
    a("s_waitcnt lgkmcnt(0)")
    a("s_barrier")
    o += ts(cfg, 14, True)
    a(f"v_add_u32 v2, {L_R}, v12")
    for k in range(1, 4):
        a(f"v_xor_b32 v{2 + k}, {32 * k}, v2")
    o += dots(6)
    a("s_nop 2")
    a(f"v_add_f32 v{vMEAN}, v{vT}, v{vT + 1}")
    a(f"v_add_f32 v{vC}, v{vT + 2}, v{vT + 3}")
    a(f"v_mov_b32 v{vT}, v{vMEAN}")
    a(f"v_mov_b32 v{vT + 1}, v{vC}")
    a("s_nop 0")
    a(f"v_permlane32_swap_b32 v{vMEAN}, v{vT}")
    a(f"v_permlane32_swap_b32 v{vC}, v{vT + 1}")
    a(f"v_add_f32 v{vMEAN}, v{vMEAN}, v{vT}")
    a(f"v_add_f32 v{vC}, v{vC}, v{vT + 1}")
    a(f"v_mul_f32 v{vMEAN}, {f2u(1.0 / 448):#x}, v{vMEAN}")
    a(f"v_mul_f32 v{vC}, {f2u(1.0 / 448):#x}, v{vC}")
    a(f"v_fma_f32 v{vC}, -v{vMEAN}, v{vMEAN}, v{vC}")
    a(f"v_max_f32 v{vC}, 0, v{vC}")
    a(f"v_add_f32 v{vC}, {f2u(1e-5):#x}, v{vC}")
    a(f"v_rsq_f32 v{vRSTD}, v{vC}")
    a("s_nop 0")
    a(f"v_mul_f32 v{vK1}, {f2u(-math.log2(math.e)):#x}, v{vRSTD}")
    a(f"s_cmp_eq_u32 s{sNT}, 7")
    a("s_cbranch_scc1 L_G_light")
    a(f"v_add_u32 v{vQR}, {L_WQ}, v{vQR}")
    o += center_all(cfg.pre_c)
    a("s_barrier")
    o += ts(cfg, 2, True)
    return o


def center_all(nreg=112):
    o = [f"v_mov_b32 v6, 0x00003f80", f"v_mov_b32 v7, 0x3f800000", f"v_sub_f32 v{vKQ}, 0, v{vMEAN}"]
    a = o.append
    for r in range(nreg + 2):
        if r < nreg:
            t = vT + 2 * (r % 3)
            a(f"v_dot2_f32_bf16 v{t}, v{XC + r}, v6, v{vKQ}")
            a(f"v_dot2_f32_bf16 v{t + 1}, v{XC + r}, v7, v{vKQ}")
        else:
            a("s_nop 1")
        if r >= 2:
            tp = vT + 2 * ((r - 2) % 3)
            a(f"v_cvt_pk_bf16_f32 v{XC + r - 2}, v{tp}, v{tp + 1}")
    return o


def g_light(cfg):
    o = ["L_G_light:"]
    a = o.append
    a(f"v_add_u32 v{vQR}, {L_R}, v{vQR}")
    a("s_barrier")
    o += ts(cfg, 2, True)
    for n in range(4):
        o += frag_reads(dict(kind='Q', s=n), n, None)
    for r in range(4):
        a(f"v_mov_b32 v{vHQ + r}, v{vONE}")
    lq = Q()
    for n in range(4):
        lq.issue(n), lq.issue(n)
    for n in range(28):
        k = lq.need(lambda t: t == n)
        a(f"s_waitcnt lgkmcnt({k})")
        a(mfma(A0 + 32, FR + 4 * (n & 3), XC + 4 * n, first=(n == 0)))
        a(mfma(A0 + 48, FR + 4 * (n & 3), vHQ, first=(n == 0)))
        if n + 4 < 28:
            o += frag_reads(dict(kind='Q', s=n + 4), n & 3, None)
            lq.issue(n + 4), lq.issue(n + 4)
    a("s_nop 11")
    for r in range(16):
        a(f"v_fma_f32 v{A0 + 32 + r}, -v{vMEAN}, v{A0 + 48 + r}, v{A0 + 32 + r}")
    return o


def g_restart():
    o = []
    for n in range(4):
        o += frag_reads(dict(kind='Q', s=n), n, None)
    return o + ["s_waitcnt lgkmcnt(4)", "s_branch L_qpass"]


def proj_scale(scale_reg_setup):
    AC = A0 + 32
    o = list(scale_reg_setup)
    o.append(f"v_cndmask_b32 v{vKQ2}, v{vKQ}, 0, s[{sUP}:{sUP + 1}]")
    for r in range(16):
        o.append(f"v_mul_f32 v{AC + r}, v{AC + r}, v{vKQ if r < 12 else vKQ2}")
    return o


def sumsq():
    AC = A0 + 32
    o = [f"v_mul_f32 v{vT}, v{AC}, v{AC}", f"v_mul_f32 v{vT + 1}, v{AC + 1}, v{AC + 1}"]
    for r in range(2, 16):
        o.append(f"v_fmac_f32 v{vT + (r & 1)}, v{AC + r}, v{AC + r}")
    o.append(f"v_add_f32 v{vT}, v{vT}, v{vT + 1}")
    o += half_sum(vT, vT + 1)
    return o


def pack16(dst):
    AC = A0 + 32
    return [f"v_cvt_pk_bf16_f32 v{dst + r}, v{AC + 2 * r}, v{AC + 2 * r + 1}" for r in range(8)]


def g_after_pass(cfg):
    o = []
    a = o.append
    P = A4
    o += ts(cfg, 3, True)
    cq = math.log2(math.e) / math.sqrt(28.0)
    a(f"s_lshl_b32 s{sT0}, s{sTT}, 11")
    a(f"s_add_u32 s{sT0}, s{sT0}, {L_QX}")
    a(f"v_add_u32 v6, s{sT0}, v{vL16}")
    a(f"s_lshl_b32 s{sT0}, s{sTT}, 8")
    a(f"v_lshl_add_u32 v7, v{vLANE}, 2, s{sT0}")
    a("s_nop 5")
    sc, pk = proj_scale([]), pack16(P)
    o[-1:] = [f"v_mul_f32 v{vKQ}, {f2u(cq):#x}, v{vRSTD}", sc[0], f"v_mov_b32 v{vT}, {L_CNT}", f"v_mov_b32 v{vT + 1}, 0",
              f"ds_write_b32 v{vT}, v{vT + 1}", "s_nop 1"]
    o += sc[1:9] + pk[:4] + [f"ds_write_b128 v6, {vr(P, 4)}"] + sc[9:] + pk[4:] + [f"ds_write_b128 v6, {vr(P + 4, 4)} offset:1024"]
    a("s_waitcnt lgkmcnt(0)")
    a("s_barrier")
    o += sumsq()
    a(f"ds_write_b32 v7, v{vT} offset:{L_N2}")
    a("s_waitcnt lgkmcnt(0)")
    a("s_barrier")
    o += ts(cfg, 4, True) + ts_move(cfg)
    a(f"s_cmp_eq_u32 s{sNT}, 7")
    a("s_cbranch_scc1 L_fin")
    return o


def kv_epi(cfg):
    o = ["L_kv_epi:"]
    a = o.append
    P = A4
    AC = A0 + 32
    a(f"s_lshl_b32 s{sT1}, s{sI}, 2")
    a(f"s_add_u32 s{sT1}, s{sT1}, s{sTT}")
    a(f"s_lshl_b32 s{sT2}, s{sT1}, 12")
    o += proj_scale([f"v_mov_b32 v{vKQ}, v{vRSTD}"])
    a(f"s_cmp_eq_u32 s{sP}, 1")
    a("s_cbranch_scc1 L_v_epi")
    o += pack16(P)
    a(f"v_cndmask_b32 v{P + 6}, v{P + 6}, v{vONE}, s[{sUP}:{sUP + 1}]")
    o += sumsq()
    a(f"buffer_store_dwordx4 {vr(P, 4)}, v{vL16}, {srd(sWS)}, s{sT2} offen sc1")
    a(f"buffer_store_dwordx4 {vr(P + 4, 4)}, v{vL16}, {srd(sWS)}, s{sT2} offen offset:1024 sc1")
    o += wave_max_to_sgpr(vT, sT3)
    a(f"s_lshl_b32 s{sT1}, s{sT1}, 2")
    a(f"s_add_u32 s{sT1}, s{sT1}, {WS_KMAX}")
    a("v_mov_b32 v6, 0")
    a(f"v_mov_b32 v7, s{sT3}")
    a("s_mov_b64 exec, 1")
    a(f"buffer_store_dword v7, v6, {srd(sWS)}, s{sT1} offen sc1")
    a("s_mov_b64 exec, -1")
    a("s_branch L_kv_pub")
    vpart = ["L_v_epi:"]
    a = vpart.append
    a(f"v_mov_b32 v6, 1.0")
    a(f"v_cndmask_b32 v{AC + 12}, v{AC + 12}, v6, s[{sUP}:{sUP + 1}]")
    vpart += pack16(P)
    a(f"v_and_b32 v6, 31, v{vLANE}")
    a(f"v_lshrrev_b32 v7, 5, v{vLANE}")
    a("v_lshlrev_b32 v6, 6, v6")
    a("v_lshl_add_u32 v6, v7, 3, v6")
    a(f"s_lshl_b32 s{sT0}, s{sTT}, 11")
    a(f"v_add_u32 v6, s{sT0}, v6")
    for u in range(4):
        a(f"ds_write_b64 v6, {vr(P + 2 * u, 2)} offset:{16 * u}")
    a(f"v_bfe_u32 v6, v{vLANE}, 2, 2")
    a("v_lshl_add_u32 v6, v7, 2, v6")
    a("v_lshlrev_b32 v6, 6, v6")
    a(f"v_bfe_u32 v7, v{vLANE}, 4, 1")
    a("v_lshl_add_u32 v6, v7, 5, v6")
    a(f"v_and_b32 v7, 3, v{vLANE}")
    a("v_lshl_add_u32 v6, v7, 3, v6")
    a(f"v_add_u32 v6, s{sT0}, v6")
    a("s_waitcnt lgkmcnt(0)")
    for u in range(4):
        a(f"ds_read_b64_tr_b16 {vr(P + 8 + 2 * u, 2)}, v6 offset:{512 * u}")
    a("s_waitcnt lgkmcnt(0)")
    a(f"buffer_store_dwordx4 {vr(P + 8, 4)}, v{vL16}, {srd(sWS)}, s{sT2} offen offset:2048 sc1")
    a(f"buffer_store_dwordx4 {vr(P + 12, 4)}, v{vL16}, {srd(sWS)}, s{sT2} offen offset:3072 sc1")
    pub = ["L_kv_pub:"] + probe(cfg, 1)
    a = pub.append
    pub += ts(cfg, 6, True)
    a(f"v_mov_b32 v6, {L_KVC}")
    a("v_mov_b32 v7, 1")
    a("s_mov_b64 exec, 1")
    a("s_waitcnt vmcnt(0)")
    a(f"ds_add_rtn_u32 v{vT}, v6, v7")
    a("v_mov_b32 v6, 0")
    a("s_waitcnt lgkmcnt(0)")
    a(f"v_cmp_eq_u32 vcc, 3, v{vT}")
    a("s_cbranch_vccz L_kv_notlast")
    a(f"v_mov_b32 v{vT}, 1")
    a(f"buffer_atomic_add v{vT}, v6, {srd(sDBG)}, 0 offen sc0")
    a("s_waitcnt vmcnt(0)")
    a(f"v_cmp_eq_u32 vcc, 31, v{vT}")
    a("s_cbranch_vccz L_kv_notlast")
    a(f"buffer_store_dword v7, v6, {srd(sDBG)}, 0 offen offset:128 sc1")
    a("L_kv_notlast:")
    a("s_mov_b64 exec, -1")
    a("s_barrier")
    pub += ts(cfg, 5, True)
    a(f"v_add_u32 v{vQR}, {(L_WQ - L_R) & 0xffffffff:#x}, v{vQR}")
    pub += probe(cfg, 8) + center_all()
    a("s_barrier")
    pub += g_restart()
    return o, vpart, pub


GH = 128
NH = 11
WOQ = [12, 16, 20, 24, 32, 36, 40, 44, 48, 52, 216, 220, 224, 228, 232, 236]
vW2R = 2
vW2D = 4
vFL = 5


def gemm2(cfg):
    o = []
    a = o.append
    ng1 = cfg.ng1
    if cfg.gprio:
        a("s_setprio 1")
    o += LATE_H + probe(cfg, 6)
    a(f"s_lshl_b32 s{sT0}, s{sI}, 14")
    a(f"s_lshl_b32 s{sT2}, s{sTT}, 11")
    a(f"s_add_u32 s{sT1}, s{sT0}, s{sT2}")
    a(f"s_lshl_b32 s{sT2}, s{sJ}, 7")
    a(f"s_add_u32 s{sT1}, s{sT1}, s{sT2}")
    a(f"s_add_u32 s{sT1}, s{sT1}, {WS_FLAG}")
    a("v_mov_b32 v6, 0")
    a("v_mov_b32 v7, 1")
    a("s_mov_b64 exec, 1")
    a("s_waitcnt vmcnt(0)")
    a(f"buffer_store_dword v7, v6, {srd(sWS)}, s{sT1} offen sc1")
    a("s_mov_b64 exec, -1")
    o += ts(cfg, 5, True)
    for r, lo, size in ((sW2, 20, 1792 * 896), (sWO, 12, 448 * 896)):
        o += [f"s_mov_b32 s{r}, s{lo}", f"s_mov_b32 s{r + 1}, s{lo + 1}", f"s_mov_b32 s{r + 2}, {size}",
              f"s_mov_b32 s{r + 3}, 0x20000"]
    a(f"v_bfe_u32 v6, v{vLANE}, 2, 1")
    a(f"v_and_b32 v7, 3, v{vLANE}")
    a("v_lshlrev_b32 v7, 7, v7")
    a("v_lshl_add_u32 v7, v6, 11, v7")
    a(f"s_lshl_b32 s{sT1}, s{sMT}, 12")
    a(f"s_add_u32 s{sT0}, s{sT0}, s{sT1}")
    a(f"s_add_u32 s{sT0}, s{sT0}, {WS_FLAG}")
    a(f"s_mul_i32 s{sT1}, s{sTT}, 3")
    a(f"s_and_b32 s{sT2}, s{sTT}, 2")
    a(f"s_add_u32 s{sT1}, s{sT1}, s{sT2}")
    a(f"s_lshl_b32 s{sT1}, s{sT1}, 7")
    a(f"s_add_u32 s{sT1}, s{sT1}, s{sT0}")
    a(f"v_add_u32 v{vFL}, s{sT1}, v7")
    if cfg.nob10:
        a(f"s_lshl_b32 s{sT1}, s{sTT}, 9")
        a(f"s_add_u32 s{sT1}, s{sT1}, s{sT0}")
        a(f"v_add_u32 v28, s{sT1}, v7")
    a(f"v_bfe_u32 v6, v{vLANE}, 4, 1")
    a(f"v_lshrrev_b32 v8, 3, v{vLANE}")
    a("v_and_b32 v9, 2, v8")
    a("v_lshlrev_b32 v9, 1, v9")
    a(f"v_and_b32 v10, 7, v{vLANE}")
    a("v_xor_b32 v9, v9, v10")
    a("v_mul_u32_u24 v8, 896, v8")
    a("v_lshl_add_u32 v8, v9, 4, v8")
    a(f"s_lshl_b32 s{sT1}, s{sNC}, 7")
    a(f"v_add_u32 v{vW2D}, s{sT1}, v8")
    a(f"s_mul_i32 s{sM0}, s{sTT}, {RING}")
    a(f"s_add_u32 s{sM0}, s{sM0}, {L_RING}")
    a(f"v_bfe_u32 v8, v{vLANE}, 2, 2")
    a(f"v_lshrrev_b32 v9, 5, v{vLANE}")
    a("v_lshl_add_u32 v9, v9, 2, v8")
    a("v_lshlrev_b32 v9, 7, v9")
    a("v_lshrrev_b32 v8, 1, v8")
    a("v_lshl_add_u32 v9, v8, 6, v9")
    a("v_lshl_add_u32 v9, v6, 5, v9")
    a(f"v_and_b32 v8, 3, v{vLANE}")
    a("v_lshl_add_u32 v9, v8, 3, v9")
    a(f"v_add_u32 v{vW2R}, s{sM0}, v9")
    a(f"v_xor_b32 v{vW2R + 1}, 64, v{vW2R}")
    a(f"s_mul_i32 s{sT3}, s{sTT}, {28 * 16 * 896}")
    a(f"s_lshl_b32 s{sT0}, s{sI}, 2")
    a(f"s_lshl_b32 s{sT1}, s{sMT}, 1")
    a(f"s_add_u32 s{sT0}, s{sT0}, s{sT1}")
    a(f"s_mul_i32 s{sHO}, s{sT0}, 112")
    a(f"s_mul_i32 s{sT1}, s{sTT}, 28")
    a(f"s_add_u32 s{sHO}, s{sHO}, s{sT1}")
    a(f"s_lshl_b32 s{sHO}, s{sHO}, 10")
    a(f"s_add_u32 s{sHO}, s{sHO}, {WS_H}")
    a(f"s_lshl_b32 s{sKMAX}, s{sT0}, 2")
    a(f"s_add_u32 s{sKMAX}, s{sKMAX}, s{sTT}")
    a(f"s_lshl_b32 s{sKMAX}, s{sKMAX}, 13")
    a(f"s_add_u32 s{sKMAX}, s{sKMAX}, {WS_O}")
    o += rot_table(sRA, 64 * 896, sT3) + rot_table(sRB, 4096, sHO)
    vq, lq = Q(), Q()

    def w2dma(s):
        for b in range(2):
            o.extend([f"s_add_u32 m0, s{sM0}, {(s % 12) * 2048 + b * 1024}",
                      f"s_add_u32 s{sSO}, s{sRA + (s >> 2)}, {(16 * (s & 3) + 8 * b) * 896}",
                      f"buffer_load_dwordx4 v{vW2D}, {srd(sW2)}, s{sSO} offen lds"])
            vq.issue(('w', s))

    sNOT, sG, sODD = 84, 85, 87
    seen = set()
    relift = [True]

    def h_ready(c):
        L = f"L_ph{c}"
        seen.add(c)
        o.extend([f"s_add_u32 s{sT0}, s{sG}, s{sODD}", f"s_lshr_b32 s{sT0}, s{sT0}, 1", f"s_lshl_b32 s{sT0}, 0x11, s{sT0}",
                  f"s_add_u32 s{sG}, s{sG}, 1", f"s_cmp_eq_u32 s{sG}, 7", f"s_cselect_b32 s{sG}, 0, s{sG}",
                  f"s_and_b32 s{sT1}, s{sNOT}, s{sT0}", f"s_cbranch_scc0 {L}_ok", f"{L}:",
                  f"buffer_load_dword v6, v{vFL}, {srd(sWS)}, 0 offen sc1", "s_waitcnt vmcnt(0)",
                  "s_setprio 1", "v_cmp_eq_u32 vcc, 0, v6", "s_setprio 0", f"s_mov_b32 s{sNOT}, vcc_lo",
                  f"s_and_b32 s{sT1}, s{sNOT}, s{sT0}", f"s_cbranch_scc0 {L}_ok",
                  f"s_sub_u32 s{sCNT}, s{sCNT}, 1", f"s_cselect_b32 s{sCNT}, 0, s{sCNT}", f"s_cbranch_scc1 {L}_ok",
                  f"s_sleep {cfg.sl_h}", f"s_branch {L}", f"{L}_ok:"])
        if cfg.fprio and cfg.fp0 <= 4 * c < cfg.fp1 and relift[0]:
            a("s_setprio 1")

    def hload(s):
        d = GH + 8 * (s % NH)
        if cfg.hchunk and s % 4 == 0 and s // 4 not in seen:
            h_ready(s // 4)
            if s == 0:
                o.extend(ts(cfg, 6, True))
        for b in range(2):
            o.extend([f"s_add_u32 s{sSO}, s{sRB + (s >> 2)}, {(b * 112 + (s & 3)) * 1024}",
                      f"buffer_load_dwordx4 {vr(d + 4 * b, 4)}, v{vL16}, {srd(sWS)}, s{sSO} offen sc1"])
            vq.issue(('h', s))

    def wreads(s, aidx):
        d = FR + 8 * (s & 1) + 4 * aidx
        for t in range(2):
            o.append(f"ds_read_b64_tr_b16 {vr(d + 2 * t, 2)}, v{vW2R + aidx} offset:{(s % 12) * 2048 + 1024 * t}")
            lq.issue((s, aidx))

    def vwait(pred):
        k = vq.need(pred)
        if k is not None:
            o.append(f"s_waitcnt vmcnt({k})")

    def lwait(tag):
        k = lq.need(lambda t: t == tag)
        if k is not None:
            o.append(f"s_waitcnt lgkmcnt({k})")
    nissued = [0]

    def fetch_upto(lim, throttle):
        hi = cfg.fprio and throttle and cfg.fp0 <= nissued[0] < min(lim, 28) and nissued[0] < cfg.fp1
        if hi:
            a("s_setprio 1")
        fetch_(lim, throttle)
        if hi:
            a("s_setprio 0")

    def fetch_(lim, throttle):
        while nissued[0] < min(lim, 28):
            if throttle and len(vq.q) > cfg.thr - 4:
                keep = cfg.thr - 4
                o.append(f"s_waitcnt vmcnt({keep})")
                vq.q = vq.q[len(vq.q) - keep:]
            w2dma(nissued[0])
            hload(nissued[0])
            nissued[0] += 1
    if not cfg.gprio:
        o += res_load()
    a(f"s_mul_i32 s{sT2}, s{sTT}, {112 * 896}")

    def wo_dma(half, slot):
        if cfg.fprio:
            a("s_setprio 1")
        wo_dma_(half, slot)
        if cfg.fprio:
            a("s_setprio 0")

    def wo_dma_(half, slot):
        for b in range(8):
            o.extend([f"s_add_u32 m0, s{sM0}, {slot * 2048 + b * 1024}",
                      f"s_add_u32 s{sSO}, s{sT2}, {(56 * half + 8 * b) * 896}",
                      f"buffer_load_dwordx4 v{vW2D}, {srd(sWO)}, s{sSO} offen lds"])
            vq.issue(('wo', half))

    def wo_reads(half, slot):
        vwait(lambda t: t == ('wo', half))
        if cfg.fprio:
            a("s_setprio 1")
        for x in range(4):
            for aidx in range(2):
                for t in range(2):
                    a(f"ds_read_b64_tr_b16 {vr(WOQ[2 * (4 * half + x) + aidx] + 2 * t, 2)}, v{vW2R + aidx} "
                      f"offset:{slot * 2048 + (28 * (x >> 1) + 16 * (x & 1)) * 128 + 1024 * t}")
            if x & 1:
                a("s_waitcnt lgkmcnt(0)")
        if cfg.fprio:
            a("s_setprio 0")
        lq.q = []
    cond = [f"v_cmp_eq_u32 vcc, 0, v6", "s_nop 0", "s_cmp_lg_u64 vcc, 0"]
    if cfg.hchunk:
        o += [f"s_mov_b32 s{sNOT}, -1", f"s_mov_b32 s{sG}, s{sROT}", f"s_and_b32 s{sODD}, s{sTT}, 1", f"s_mov_b32 s{sCNT}, {1 << 22}"]
        if not cfg.gprio:
            vq.issue('res')
    else:
        o += poll("L_ph", 6, vFL, sWS, cond, sleep=cfg.sl_h)
        vq.q = []
        o += ts(cfg, 6, True)
    D = cfg.gd
    OREG = [GH + 8 * ((28 - NH + x) % NH) for x in range(8)]

    def oload(hh):
        r = []
        for x in (2 * hh, 2 * hh + 1):
            for b in range(2):
                r += [f"s_add_u32 s{sSO}, s{sKMAX}, {b * 16 * 2048 + x * 1024}",
                      f"buffer_load_dwordx4 {vr(OREG[x] + 4 * b, 4)}, v{vL16}, {srd(sWS)}, s{sSO} offen sc1"]
        return r

    oq = oload(0) + oload(1)
    retry = []

    def step(s):
        d = GH + 8 * (s % NH)
        vwait(lambda t: t == ('h', s))
        for aidx in range(2):
            lwait((s, aidx))
            w = FR + 8 * (s & 1) + 4 * aidx
            for b in range(2):
                a(mfma(A0 + 32 * aidx + 16 * b, w, d + 4 * b, first=(s == 0)))
                if cfg.opipe and 4 * (28 - s) - 2 * aidx - b <= cfg.o_pre:
                    o.extend(oq[:2])
                    del oq[:2]
            nxt = s + 2
            if nxt < 28:
                if aidx == 0:
                    vwait(lambda t: t == ('w', nxt))
                if cfg.rprio and s < ng1:
                    a("s_setprio 1")
                wreads(nxt, aidx)
                if cfg.rprio and s < ng1:
                    a("s_setprio 0")
        if s < ng1:
            r0 = {0: 6, 1: 2}.get(cfg.wo_early, cfg.r0)
            fetch_upto(min(s + 1 + D + 1 + cfg.ramp * max(0, s - r0), s + 1 + NH), True)
        else:
            fetch_upto(s + 1 + NH, False)
        if cfg.nob10 and s == 7:
            a(f"buffer_load_dword v11, v28, {srd(sWS)}, 0 offen sc1")
            vq.issue('m')
        if cfg.nob10 and s == 9:
            vwait(lambda t: t == 'm')
            mc = ["s_setprio 1", "v_cmp_eq_u32 vcc, 0, v11", "s_setprio 0", f"s_bitcmp1_b32 s{sTT}, 0", f"s_cselect_b32 s{sT1}, 7, 15",
                  f"s_and_b32 s{sT0}, vcc_lo, s{sT1}"]
            o.extend(mc + ["s_cbranch_scc1 L_pm_slow", "L_pm_back:"])
            retry.extend(["L_pm_slow:"] + poll("L_pm", 11, 28, sWS, mc, sleep=cfg.sl_h) + ["s_branch L_pm_back"])
        if cfg.wo_early:
            if s == 2 and cfg.wo_early == 1:
                wo_reads(1, 8)
        else:
            if s == 0:
                wo_dma(0, 8)
            if s == 2:
                wo_reads(0, 8)
            if s == 4:
                wo_dma(1, 0)
            if s == 6:
                wo_reads(1, 0)
        if cfg.diag5 and s in (0, 2, 5, 8, 11, 14):
            o.extend(ts(cfg, 31 + (0, 2, 5, 8, 11, 14).index(s), True))
        if cfg.diag5 and s in (ng1, ng1 + 3, ng1 + 7, cfg.o_at):
            o.extend(ts(cfg, {ng1: 24, ng1 + 3: 25, ng1 + 7: 26, cfg.o_at: 18}[s], True))
        if s == 27 and cfg.opipe:
            o.extend(oq)
        elif s == cfg.o_at and not cfg.opipe:
            for hh in range(4):
                o.extend(oload(hh))
    if cfg.gprio == 1:
        a("s_setprio 0")
    o += probe(cfg, 2)
    if cfg.wo_early == 2:
        wo_dma(0, 0)
        wo_dma(1, 4)
        wo_reads(0, 0)
        wo_reads(1, 4)
    elif cfg.wo_early == 3:
        wo_dma(0, 0)
        wo_reads(0, 0)
        wo_dma(1, 0)
        wo_reads(1, 0)
    elif cfg.wo_early:
        wo_dma(0, 8)
    fetch_upto(D + 1, True)
    if cfg.wo_early == 1:
        wo_reads(0, 8)
        wo_dma(1, 8)
    if cfg.gprio == 2:
        a("s_setprio 0")
    vwait(lambda t: t in (('w', 0), ('w', 1)))
    for s in range(2):
        for aidx in range(2):
            wreads(s, aidx)
    def late_setup():
        a(f"v_and_b32 v8, 31, v{vLANE}")
        a(f"v_lshrrev_b32 v9, 5, v{vLANE}")
        a(f"v_mul_u32_u24 v8, {144 if cfg.bfp else 272}, v8")
        a(f"v_lshl_add_u32 v8, v9, {3 if cfg.bfp else 4}, v8")
        a(f"v_add_u32 v8, s{sM0}, v8")
        a(f"v_add_u32 v9, {32 * 144}, v8")
        if cfg.nob10:
            a(f"v_mov_b32 v10, {L_CNT}")
        if cfg.gprio:
            o.extend(res_load())
            vq.issue('res')
    a(f"s_mov_b32 s{sMASK}, 15")
    assert 24 <= cfg.o_at < 28 and ng1 >= 10 and D <= 4 and cfg.o_pre <= 8 and not (cfg.opipe and (cfg.sel_o or cfg.dyn_o))
    for s in range(28):
        if s == ng1:
            fetch_upto(s + NH, True)
            relift[0] = False
            for c in range(7):
                if cfg.hchunk and c not in seen:
                    h_ready(c)
            if cfg.gprio:
                a("s_setprio 1")
            late_setup()
            if cfg.gprio:
                a("s_setprio 0")
            o += ts(cfg, 7, True)
            if cfg.nob10:
                o.extend(lds_wait4("L_g4", ["ds_read_b32 v11, v10"], 2, 11))
                lq.q = []
            else:
                a("s_barrier")
        step(s)
    if ng1 >= 28:
        a("s_barrier")
    a(f"s_mov_b32 s{sCNT}, {ORETRY}")
    o += ts(cfg, 8, True)

    def marker_test(hh):
        regs = [OREG[2 * hh] + r for r in range(8)] + [OREG[2 * hh + 1] + r for r in range(8)]
        t = [f"v_max3_u32 v6, v{regs[0]}, v{regs[1]}, v{regs[2]}", f"v_max3_u32 v7, v{regs[3]}, v{regs[4]}, v{regs[5]}"]
        for r in range(6, 14, 4):
            t += [f"v_max3_u32 v6, v6, v{regs[r]}, v{regs[r + 1]}", f"v_max3_u32 v7, v7, v{regs[r + 2]}, v{regs[r + 3]}"]
        return t + [f"v_max3_u32 v6, v6, v{regs[14]}, v{regs[15]}", "v_max_u32 v6, v6, v7", "v_cmp_eq_u32 vcc, -1, v6"]

    def head_mfmas(hh):
        return [mfma(A0 + 32 * aidx + 16 * b, WOQ[2 * x + aidx], OREG[x] + 4 * b)
                for x in (2 * hh, 2 * hh + 1) for aidx in range(2) for b in range(2)]
    if cfg.dyn_o:
        a("L_o:")
        a("s_waitcnt vmcnt(0)")
        for hh in range(4):
            a(f"s_bitcmp1_b32 s{sMASK}, {hh}")
            a(f"s_cbranch_scc0 L_o{hh}_done")
            o += marker_test(hh)
            a(f"s_cbranch_vccnz L_o{hh}_retry")
            a(f"L_o{hh}_go:")
            o += head_mfmas(hh)
            a(f"s_bitset0_b32 s{sMASK}, {hh}")
            a(f"L_o{hh}_done:")
            retry += [f"L_o{hh}_retry:", f"s_sub_u32 s{sCNT}, s{sCNT}, 1", f"s_cselect_b32 s{sCNT}, 0, s{sCNT}",
                      f"s_cbranch_scc1 L_o{hh}_go"]
            retry += oload(hh) + [f"s_branch L_o{hh}_done"]
        a(f"s_cmp_lg_u32 s{sMASK}, 0")
        a("s_cbranch_scc1 L_o")
    else:
        for hh in range(4):
            test = [f"s_waitcnt vmcnt({(4 if hh < 3 else 0) if cfg.opipe else 4 * (3 - hh)})"] + marker_test(hh)
            if hh == 0 or not cfg.etest:
                a(f"L_o{hh}:")
                o += test
            else:
                retry += [f"L_o{hh}:"] + test + [f"s_cbranch_vccz L_o{hh}_go", f"s_branch L_o{hh}_retry"]
            a(f"s_cbranch_vccnz L_o{hh}_retry")
            a(f"L_o{hh}_go:")
            if cfg.diag5:
                o += ts(cfg, 19 + hh, True) + [f"v_writelane_b32 v{vTSG}, s{sCNT}, {27 + hh}"]
            ld = oload(hh + 2) if cfg.opipe and hh < 2 else []
            for x, m in enumerate(head_mfmas(hh)):
                o += [m] + (ld[2 * x:2 * x + 2] if x < 4 else [])
                if cfg.etest and hh < 3 and x == 5:
                    o += [f"s_waitcnt vmcnt({(4 if hh < 2 else 0) if cfg.opipe else 4 * (2 - hh)})"] + marker_test(hh + 1)
            if cfg.sel_o:
                retry += [f"L_o{hh}_retry:", f"s_mov_b32 s{sMASK}, {(15 << hh) & 15}", f"s_mov_b32 s{sT0}, {(15 << hh) & 15}",
                          "s_branch L_osel"]
                continue
            retry += [f"L_o{hh}_retry:", "s_waitcnt vmcnt(0)", f"s_sub_u32 s{sCNT}, s{sCNT}, 1",
                      f"s_cselect_b32 s{sCNT}, 0, s{sCNT}", f"s_cbranch_scc1 L_o{hh}_go"]
            for h2 in range(hh, min(hh + 2, 4) if cfg.opipe else 4):
                retry += oload(h2)
            retry += [f"s_branch L_o{hh}"]
        if cfg.sel_o:
            retry += ["L_osel:", "s_waitcnt vmcnt(0)", f"s_sub_u32 s{sCNT}, s{sCNT}, 1", f"s_cselect_b32 s{sMASK}, 0, s{sMASK}"]
            for hh in range(4):
                retry += [f"s_bitcmp1_b32 s{sMASK}, {hh}", f"s_cbranch_scc0 L_ot{hh}"] + marker_test(hh)
                retry += [f"s_cbranch_vccnz L_or{hh}", f"s_bitset0_b32 s{sMASK}, {hh}", f"s_branch L_ot{hh}", f"L_or{hh}:"]
                retry += oload(hh) + [f"L_ot{hh}:"]
            for hh in range(3):
                retry += [f"s_bitcmp1_b32 s{sT0}, {hh}", f"s_cbranch_scc0 L_om{hh}", f"s_bitcmp1_b32 s{sMASK}, {hh}",
                          "s_cbranch_scc1 L_osel"] + head_mfmas(hh) + [f"s_bitset0_b32 s{sT0}, {hh}", f"L_om{hh}:"]
            retry += [f"s_bitcmp1_b32 s{sMASK}, 3", "s_cbranch_scc1 L_osel", "s_branch L_o3_go"]
    def pwrite(aidx, b, i4):
        return f"ds_write_b128 v8, {vr(A0 + 32 * aidx + 16 * b + 4 * i4, 4)} offset:{b * 32 * 272 + aidx * 128 + i4 * 32}"
    if cfg.dyn_o:
        o += ts(cfg, 10, True)
        a("s_nop 11")
        o += [pwrite(aidx, b, i4) for aidx in range(2) for b in range(2) for i4 in range(4)]
    else:
        del o[-8:]
        pend, n = [], 0
        for aidx in range(2):
            for b in range(2):
                for x in (6, 7):
                    a(mfma(A0 + 32 * aidx + 16 * b, WOQ[2 * x + aidx], OREG[x] + 4 * b))
                    n += 1
                    if x == 7 and cfg.bfp:
                        T = A0 + 32 * aidx + 16 * b
                        for u in range(2):
                            pend += [(n + 12, f"v_cvt_pk_bf16_f32 v{T + k}, v{T + 2 * k}, v{T + 2 * k + 1}") for k in range(4 * u, 4 * u + 4)]
                            pend += [(n + 12, f"ds_write2_b64 v{8 + b}, {vr(T + 4 * u, 2)}, {vr(T + 4 * u + 2, 2)} "
                                              f"offset0:{8 * aidx + 4 * u} offset1:{8 * aidx + 4 * u + 2}")]
                    elif x == 7:
                        pend += [(n + 12, pwrite(aidx, b, i4)) for i4 in range(4)]
                    for _ in range(5 if cfg.bfp else 2):
                        if pend and pend[0][0] <= n:
                            a(pend.pop(0)[1])
                            n += 1
                        elif (aidx, b, x) != (0, 0, 6) and _ < 2:
                            a("s_nop 1")
                            n += 2
        while pend:
            if pend[0][0] > n:
                a(f"s_nop {pend[0][0] - n - 1}")
                n = pend[0][0]
            a(pend.pop(0)[1])
            n += 1
    a("s_waitcnt lgkmcnt(0)")
    o += ts(cfg, 11, True) + ts_move(cfg)
    a("s_branch L_final")
    return o, retry


HEADER = """
out = x + MQA(LN(x)) @ wo + SwiGLU(LN(x)), one launch, 256 workgroups (one per CU) of 8 waves; written by a generator script.
kernarg: 0 x, 8 wq, 16 wk, 24 wv, 32 wo, 40 (unused), 48 w1, 56 w3, 64 w2, 72 out, 80 debug, 88 ws
Workgroup (i, j): 128 tokens i, head j.  14 of the 16 workgroups of a token block ("heavy") own 128 columns of w1/w3 and one
64x64 output tile; the other two ("light") project K or V for the block instead.
Waves 4-7 (G): x fragments stay in registers; LayerNorm (mean taken out of x, 1/std applied to the fp32 products),
  gate/up/q projections, silu(gate)*up, later h @ w2 and o @ wo with K split over the four waves.
Waves 0-3 (A): stream the weights into LDS, then attention: all 128 query rows per wave, 512 keys per wave,
  S^T = K Q^T, P = 2^S, O^T += V^T P^T with a ones column in V giving the row sums.
Softmax guard: the shift 0 is used only when max|q|^2 * max|k|^2 proves |S| <= 80 (log2 units) for the whole workgroup;
  otherwise the true row maximum over all keys is computed first and subtracted inside the QK product (spare slots 28/29).
Hand-offs between workgroups (all stores and loads sc1, any placement): K/V behind a counter and a done word in d_debug;
  h behind per-producer words in ws that the light workgroups clear before the K/V signal; o by overwriting a marker
  that its producer lays down before its own h / K/V signal.  Every spin is bounded.
"""


def build(cfg):
    BARRIERS[:] = list(cfg.bars)
    BFP[0] = cfg.bfp
    NB[0] = cfg.nb
    KVC[0] = cfg.kvc
    SIG[0] = cfg.nob10
    PFMOD[0] = ('', 'nt', 'sc1', 'sc0 sc1')[cfg.pfmod]
    pro = prologue(cfg)
    g0 = g_first(cfg)
    aset = a_setup(cfg)
    lh, ll = loader_heavy(cfg), loader_light(cfg)
    apre = a_pre_attn(cfg)
    at0, atl, atp = attention(cfg)
    apost = a_post(cfg)
    ares = res_load()
    fin = final(cfg)
    fb = fallback(cfg)
    gf = g_front(cfg)
    gs, qp = g_stream2(cfg) if cfg.s2 else g_stream(cfg)
    gap = g_after_pass(cfg)
    gl = g_light(cfg)
    ke, ve, pub = kv_epi(cfg)
    g2, g2r = gemm2(cfg)
    ne = 0
    ne += len(check(pro + aset + lh + apre + at0 + atl + atl + atp + apost + fin, 'A heavy'))
    ne += len(check(pro + aset + ll + apre + fb + atl + atp + apost, 'A light+fallback'))
    ne += len(check(pro + g0 + gf + gs + qp + gap + g2 + fin, 'G heavy'))
    skip, g2s = False, []
    for x in g2:
        if x.startswith("L_ph") and x.endswith(":"):
            skip = not x.endswith("_ok:") and x != "L_ph:"
        if not skip:
            g2s.append(x)
    ne += len(check(pro + g0 + gf + gs + qp + gap + g2s + fin, 'G heavy, no polls'))
    gfl = gf[:gf.index("s_cbranch_scc1 L_G_light") + 1]
    ne += len(check(pro + g0 + gfl + gl + ke + pub + qp + gap, 'G light K'))
    iv = ke.index("s_cbranch_scc1 L_v_epi")
    ne += len(check(pro + g0 + gfl + gl + ke[:iv + 1] + ve + pub + qp + gap, 'G light V'))
    nb = lambda l: sum(1 for x in l if x == "s_barrier")
    print("barriers A heavy", nb(lh + apre + apost + fin), "G heavy", nb(gf + gs + qp + gap + g2 + fin),
          "| A light (until B9)", nb(ll + apre) - (0 if cfg.nob8 else 1), "G light", nb(gfl + gl + ke + pub + qp + gap))
    code = (pro + g0 + ["s_branch L_G", "L_A:"] + aset + [f"s_cmp_eq_u32 s{sNT}, 7", "s_cbranch_scc1 L_A_light"] + lh + ["L_A_join:"] + apre + at0 +
            [".p2align 6", "L_attn_loop:"] + atl + atp + apost + fin)
    tail = (gf + gs + ["L_qpass:"] + qp + gap + g2 + g2r + ["L_A_light:"] + ll + ["s_branch L_A_join"] + gl + ke + ve + pub + fb)
    text = [f"; @launch grid=(256,1,1) block=(512,1,1) lds={LDS_BYTES}"] + ["; " + x for x in HEADER.strip().split("\n")] + [
            '.amdgcn_target "amdgcn-amd-amdhsa--gfx950"', ".text", f".globl {NAME}_kernel", ".p2align 8",
            f".type {NAME}_kernel,@function", f"{NAME}_kernel:"]
    text += [("    " + x if not x.endswith(':') else x) for x in code + tail]
    text += ["L_codeend:", "    s_endpgm", '.section .rodata,"a"', ".p2align 6", f".amdhsa_kernel {NAME}_kernel",
             "  .amdhsa_next_free_vgpr 256", "  .amdhsa_next_free_sgpr 102", "  .amdhsa_accum_offset 256",
             "  .amdhsa_group_segment_fixed_size 0", "  .amdhsa_kernarg_size 96", "  .amdhsa_user_sgpr_count 2",
             "  .amdhsa_user_sgpr_kernarg_segment_ptr 1", "  .amdhsa_system_sgpr_workgroup_id_x 1",
             ".end_amdhsa_kernel", ""]
    return "\n".join(text), ne


if __name__ == "__main__":
    cfg = Cfg()
    out = f"cdna_kernels/{NAME}.s"
    for arg in sys.argv[1:]:
        if arg.startswith("-o"):
            out = arg[2:]
        else:
            k, v = arg.split("=")
            setattr(cfg, k, tuple(int(x) for x in v.split(',')) if ',' in v else type(getattr(cfg, k))(int(v)))
    text, ne = build(cfg)
    open(out, "w").write(text)
    print("wrote", out, "findings:", ne)
```

```python
import sys, math, struct
sys.path.insert(0, __file__.rsplit('/', 1)[0])
from asmcheck import check

NAME = "parallel_sum__grouped_kv_mqa__glu_gated_swiglu__prompt"


def f2u(x):
    return struct.unpack('<I', struct.pack('<f', x))[0]


class Cfg:
    diag = False
    diag2 = False
    diag3 = False
    diag4 = False
    diag5 = False
    jitter = False
    amp = (-1, -1, 0, 4)
    probe = 0
    pd = 31
    dbgout = -1
    rt = False
    ng1 = 15
    prefetch_code = True
    rot = True
    lq_early = False
    lc_split = True
    bars = (12, 44, 76, 108, 132, 156)
    chain2 = False
    res_at = 9
    fprio = False
    fp0 = 0
    fp1 = 99
    rprio = False
    wo_early = 2
    r0 = 2
    ramp = 1
    ev0 = 97
    ev1 = 95
    nodma = False
    hs1 = 251
    nob8 = True
    w1 = False
    s2 = True
    spill = 10
    lightsafe = False
    nob10 = True
    etest = True
    kvc = 1
    pswap = False
    opipe = True
    o_pre = 4
    bfp = True
    mid_w = 0
    sel_o = False
    gprio = 1
    hchunk = True
    nb = 4
    gd = 4
    sent_at = 1
    ft = -1
    hs0 = 223
    hsd = 2
    dyn_o = False
    nsplit = True
    o_at = 27
    pfmod = 0
    wsoff = 0
    pf_kv = False
    xd = 3
    pre_c = 8
    late_c = False
    outsc = 0
    pf_at = (0, 0, 0, 4, 4, 0, 0)
    sl_kv = 4
    sl_h = 4
    sl_o = 1
    touch = False
    caps = (12, 12, 14, 14, 12, 12, 99)
    early_w = 0
    pf_w2 = True
    thr = 24
    wait2 = True
    bal = True
    defer_h = True
    force_fallback = False


WS_KV = 0
WS_KMAX = 0x40000
WS_FLAG = 0x980000
WS_O = 0x80000
WS_H = 0x280000
WS_END = 0x9c0000
WS_DIAG = 0x1000000

LDS_BYTES_ = 163840
XT = 28672
L_R = 114688
L_WQ = 16384
L_QX = 49152
L_N2 = 57344
L_CNT = 58368
L_RING = 65536
RING = 24576
L_ORED = 0
L_KVC = LDS_BYTES_ - 4
LDS_BYTES = 163840


def slot_u(u, s):
    if u == 0:
        return L_R + 4096 * s if s < 12 else 4096 * (s - 12)
    if s < 12:
        return 4096 * (16 + s)
    if s < 24:
        return L_R + 4096 * (s - 12)
    return 4096 * (s - 24)


sX, sW, sQ, sWS, sW2, sWO, sOUT, sDBG, sH = 28, 32, 36, 40, 44, 48, 52, 56, 60
sPC = 64
sWV, sTT, sI, sJ, sNT, sP, sFS, sMODE = 66, 67, 68, 69, 70, 71, 72, 73
sT0, sT1, sT2, sT3 = 74, 75, 76, 77
sCNT = 78
sKMAX = 79
sMASK = 80
sTMP2 = 82
sEX = 84
sHI = 86
sTS = 88
sSO = 90
sM0 = 91
sHO = 92
sMT, sNC = 81, 82
sOO = 83
sUP = 94
sROT = 93
sRA, sRB = 4, 11


def srd(r):
    return f"s[{r}:{r + 3}]"


def vr(a, n):
    return f"v[{a}:{a + n - 1}]"


def mfma(d, a, b, first=False):
    return f"v_mfma_f32_32x32x16_bf16 {vr(d, 16)}, {vr(a, 4)}, {vr(b, 4)}, " + ("0" if first else vr(d, 16))


class Q:
    def __init__(self):
        self.q = []

    def issue(self, tag):
        self.q.append(tag)

    def need(self, pred):
        last = -1
        for k, t in enumerate(self.q):
            if pred(t):
                last = k
        if last < 0:
            return None
        n = len(self.q) - 1 - last
        self.q = self.q[last + 1:]
        return n


vLANE, vTS, vTSG = 1, 238, 31


JN = [0]
ORETRY = 1 << 22


def probe(cfg, k):
    return [f"s_sleep {cfg.pd}"] if cfg.probe == k else []


def ts(cfg, idx, g=False):
    if cfg.amp[0] >= 0:
        if idx in cfg.amp[:2] and (g == bool(cfg.amp[2]) or idx in (12, 15)):
            return [f"s_memrealtime s[{sTS}:{sTS + 1}]", "s_waitcnt lgkmcnt(0)", f"s_mov_b32 s{99 if idx == cfg.amp[0] else 100}, s{sTS}"]
        return []
    if cfg.jitter and idx < 16 and idx not in (13, 15):
        JN[0] += 1
        L = f"L_jit{JN[0]}"
        return [f"s_memtime s[{sTS}:{sTS + 1}]", "s_waitcnt lgkmcnt(0)", f"s_mul_i32 s{sTS}, s{sTS}, 0x9e3779b1",
                f"s_lshr_b32 s{sTS + 1}, s{sTS}, 29", f"s_cmp_eq_u32 s{sTS + 1}, 0", f"s_cselect_b32 s{sTS + 1}, 22, 27",
                f"s_lshr_b32 s{sTS}, s{sTS}, 1", f"s_lshl_b32 s{sTS}, s{sTS}, 4", f"s_lshr_b32 s{sTS}, s{sTS}, s{sTS + 1}", f"{L}:", "s_sleep 1",
                f"s_sub_u32 s{sTS}, s{sTS}, 1", f"s_cbranch_scc0 {L}"]
    if not cfg.diag:
        return []
    o = [f"s_memtime s[{sTS}:{sTS + 1}]", "s_waitcnt lgkmcnt(0)", f"v_writelane_b32 v{vTSG if g else vTS}, s{sTS}, {idx}"]
    if cfg.rt and idx < 16:
        o += [f"s_memrealtime s[{sTS}:{sTS + 1}]", "s_waitcnt lgkmcnt(0)", f"v_writelane_b32 v{vTSG if g else vTS}, s{sTS}, {40 + idx}"]
    if g and (idx in (6, 7) or 31 <= idx < 40):
        o = ["s_setprio 1"] + o + ["s_setprio 0"]
    return o


def ts_move(cfg):
    return [f"v_mov_b32 v{vTS}, v{vTSG}"] if cfg.diag else []


def poll(label, vdst, voff, srdr, cond, limit=1 << 22, sleep=1):
    return ([f"s_mov_b32 s{sCNT}, {limit}", f"{label}:",
             f"buffer_load_dword v{vdst}, v{voff}, {srd(srdr)}, 0 offen sc1",
             "s_waitcnt vmcnt(0)"] + cond +
            [f"s_cbranch_scc0 {label}_ok",
             f"s_sub_u32 s{sCNT}, s{sCNT}, 1",
             f"s_cselect_b32 s{sCNT}, 0, s{sCNT}",
             f"s_cbranch_scc1 {label}_ok",
             f"s_sleep {sleep}",
             f"s_branch {label}",
             f"{label}_ok:"])


def half_sum(a, t, op="v_add_f32"):
    return [f"v_mov_b32 v{t}, v{a}", "s_nop 1", f"v_permlane32_swap_b32 v{a}, v{t}", f"{op} v{a}, v{a}, v{t}"]


def wave_max_to_sgpr(v, s):
    o = []
    for sh in (1, 2, 4, 8):
        o += ["s_nop 1", f"v_max_f32_dpp v{v}, v{v}, v{v} row_shr:{sh} row_mask:0xf bank_mask:0xf"]
    o += ["s_nop 1", f"v_max_f32_dpp v{v}, v{v}, v{v} row_bcast:15 row_mask:0xa bank_mask:0xf",
          "s_nop 1", f"v_max_f32_dpp v{v}, v{v}, v{v} row_bcast:31 row_mask:0xc bank_mask:0xf",
          "s_nop 1", f"v_readlane_b32 s{s}, v{v}, 63"]
    return o


def x_dma(L):
    o = [f"s_add_u32 m0, s{sM0}, {L * 4096}", f"s_add_u32 s{sT1}, s{sSO}, s{sT2}"]
    o += [f"buffer_load_dwordx4 v{4 + rb}, {srd(sX)}, s{sT1} offen offset:{1024 * rb} lds" for rb in range(4)]
    if L < 6:
        o += [f"s_add_u32 s{sT2}, s{sT2}, 128", f"s_cmp_eq_u32 s{sT2}, 896", f"s_cselect_b32 s{sT2}, 0, s{sT2}"]
    return o


def code_pf(cfg):
    if not cfg.prefetch_code:
        return []
    return [f"s_load_dword s{96 + k}, s[{sPC}:{sPC + 1}], {64 * k}" for k in range(3)]


def prologue(cfg):
    o = []
    a = o.append
    a("s_load_dwordx16 s[4:19], s[0:1], 0")
    a("s_load_dwordx8 s[20:27], s[0:1], 64")
    a("s_cmp_ge_u32 s2, 256")
    a("s_cbranch_scc1 L_end")
    a(f"v_and_b32 v{vLANE}, 63, v0")
    a("v_lshrrev_b32 v2, 6, v0")
    a(f"s_lshr_b32 s{sNT}, s2, 5")
    a(f"v_readfirstlane_b32 s{sWV}, v2")
    a(f"s_bfe_u32 s{sT1}, s2, 0x20003")
    a(f"s_bfe_u32 s{sI}, s2, 0x20001")
    a(f"s_lshl2_add_u32 s{sI}, s{sI}, s{sT1}")
    a(f"s_and_b32 s{sTT}, s{sWV}, 3")
    if cfg.rot:
        a(f"s_lshl1_add_u32 s{sROT}, s{sT1}, s{sNT}")
        a(f"s_cmp_ge_u32 s{sROT}, 7")
        a(f"s_cselect_b32 s{sT2}, 7, 0")
        a(f"s_sub_u32 s{sROT}, s{sROT}, s{sT2}")
    else:
        a(f"s_mov_b32 s{sROT}, 0")
    a(f"v_lshrrev_b32 v2, 3, v{vLANE}")
    a(f"v_and_b32 v5, 7, v{vLANE}")
    a("v_lshrrev_b32 v6, 1, v2")
    a("v_xor_b32 v5, v5, v6")
    a("v_mul_u32_u24 v2, 896, v2")
    a("v_lshl_add_u32 v4, v5, 4, v2")
    a("v_xor_b32 v5, 64, v4")
    a("v_add_u32 v6, 12288, v4")
    a("v_add_u32 v5, 6144, v5")
    a("v_add_u32 v7, 12288, v5")
    a(f"s_lshl2_add_u32 s{sT0}, s{sI}, s{sTT}")
    a(f"s_mul_i32 s{sSO}, s{sT0}, {32 * 896}")
    a(f"s_mul_i32 s{sM0}, s{sTT}, {XT}")
    a(f"s_lshl_b32 s{sT2}, s{sROT}, 7")
    a(f"s_mov_b32 s{sX + 2}, {2048 * 896}")
    a(f"s_mov_b32 s{sX + 3}, 0x20000")
    if cfg.prefetch_code:
        a(f"s_getpc_b64 s[{sPC}:{sPC + 1}]")
        a("L_pc:")
        a(f"s_and_b32 s{sT3}, s2, 0xf8")
        a(f"s_add_u32 s{sT3}, s{sT3}, s{sWV}")
        a(f"s_mul_i32 s{sT3}, s{sT3}, 192")
        a(f"s_min_u32 s{sT3}, s{sT3}, L_codeend-L_pc-192")
        a(f"s_add_u32 s{sPC}, s{sPC}, s{sT3}")
        a(f"s_addc_u32 s{sPC + 1}, s{sPC + 1}, 0")
    if cfg.diag:
        a(f"v_mov_b32 v{vTS}, 0")
        a(f"v_mov_b32 v{vTSG}, 0")
        o += [f"s_memtime s[{sTS}:{sTS + 1}]"]
    a(f"s_cmp_lt_u32 s{sWV}, 4")
    a("s_waitcnt lgkmcnt(0)")
    if cfg.diag:
        a(f"v_writelane_b32 v{vTS}, s{sTS}, 0")
        a(f"v_writelane_b32 v{vTSG}, s{sTS}, 0")
        o += ts(cfg, 13) + ts(cfg, 13, True)
        o += [f"s_memrealtime s[{sTS}:{sTS + 1}]", "s_waitcnt lgkmcnt(0)", f"v_writelane_b32 v{vTS}, s{sTS}, 16", f"v_writelane_b32 v{vTSG}, s{sTS}, 16"]
    if cfg.amp[0] >= 0:
        o += ["s_mov_b32 s99, 0", "s_mov_b32 s100, 0"] + ts(cfg, 13, bool(cfg.amp[2]))
    a(f"s_mov_b32 s{sX}, s4")
    a(f"s_mov_b32 s{sX + 1}, s5")
    a("s_cbranch_scc1 L_A")
    return o


def g_first(cfg):
    o = []
    for L in range(cfg.xd):
        o += x_dma(L)
    return o + code_pf(cfg)


def ids(cfg):
    o = [f"s_add_u32 s26, s26, {cfg.wsoff << 20}", "s_addc_u32 s27, s27, 0"] if cfg.wsoff else []
    o += [f"s_andn2_b32 s{sP}, 1, s2" if cfg.pswap else f"s_and_b32 s{sP}, s2, 1", f"s_lshl3_add_u32 s{sJ}, s{sP}, s{sNT}", f"s_sub_u32 s{sFS}, s{sJ}, s{sP}",
          f"s_mov_b32 s{sHI}, 0xffff0000", f"s_mov_b32 s{sUP}, 0", f"s_mov_b32 s{sUP + 1}, -1"]
    if cfg.nsplit:
        o += [f"s_lshr_b32 s{sNC}, s{sNT}, 1", f"s_lshl2_add_u32 s{sNC}, s{sP}, s{sNC}", f"s_and_b32 s{sMT}, s{sNT}, 1",
              f"s_cmp_eq_u32 s{sNT}, 6", f"s_cselect_b32 s{sNC}, 3, s{sNC}", f"s_cselect_b32 s{sMT}, s{sP}, s{sMT}"]
    else:
        o += [f"s_mov_b32 s{sNC}, s{sNT}", f"s_mov_b32 s{sMT}, s{sP}"]
    return o


def rot_table(dst, stride, add=None):
    o = [f"s_mul_i32 s{dst}, s{sROT}, {stride}"]
    for c in range(1, 7):
        o += [f"s_add_u32 s{dst + c}, s{dst + c - 1}, {stride}", f"s_cmp_eq_u32 s{dst + c}, {7 * stride}",
              f"s_cselect_b32 s{dst + c}, 0, s{dst + c}"]
    if add is not None:
        o += [f"s_add_u32 s{dst + c}, s{dst + c}, s{add}" for c in range(7)]
    return o


def rest_srds(cfg):
    def mk(r, lo, size):
        return [f"s_mov_b32 s{r}, s{lo}", f"s_mov_b32 s{r + 1}, s{lo + 1}", f"s_mov_b32 s{r + 2}, {size}",
                f"s_mov_b32 s{r + 3}, 0x20000"]
    o = []
    o += mk(sWS, 26, WS_END if not cfg.diag else WS_DIAG + (1 << 20))
    o += mk(sOUT, 22, 2048 * 896)
    o += mk(sDBG, 24, 256)
    return o


A0, A4 = 64, 32
XC = 128
FR = 240
vWR = 2
vMEAN, vC, vK1, vRSTD, vKQ, vKQ2 = 8, 9, 10, 11, 12, 13
vT = 14
vHQ = 20
vQR, vL16, vONE = 28, 29, 30


def stream():
    st = []
    for s in range(28):
        for q in range(4):
            st.append(dict(acc=A0 + 16 * q, s=s, kind='W', u=0, q=q))
    for half, base in ((0, A4), (1, A0)):
        for s in range(28):
            for q in range(2):
                st.append(dict(acc=base + 16 * q, s=s, kind='W', u=1, q=2 * half + q))
    for s in range(28):
        st.append(dict(acc=A0 + 32, s=s, kind='Q'))
    return st


BARRIERS = [12, 44, 76, 108, 132, 156]


def center_reg(r, t):
    return [f"v_lshlrev_b32 v{t}, 16, v{r}", f"v_and_b32 v{t + 1}, s{sHI}, v{r}",
            f"v_sub_f32 v{t}, v{t}, v{vMEAN}", f"v_sub_f32 v{t + 1}, v{t + 1}, v{vMEAN}",
            f"v_cvt_pk_bf16_f32 v{r}, v{t}, v{t + 1}"]


def h_store(quad, ks_off):
    r = sT0 if ks_off >= 6 else sT1
    return [f"s_add_u32 s{r}, s{sHO}, {ks_off * 1024}",
            f"buffer_store_dwordx4 {vr(quad, 4)}, v{vL16}, {srd(sH)}, s{r} offen sc1"]


def silu_tile(acc, quad, ks_off, store=True):
    def stage(r):
        t = vT + (r % 3)
        return [[f"v_mul_f32 v{t}, v{acc + r}, v{vK1}"],
                [f"v_exp_f32 v{t}, v{t}"],
                [f"v_mul_f32 v{acc + r}, v{acc + r}, v{acc + 8 + r}"],
                [f"v_fma_f32 v{t}, v{t}, v{vC}, v{vC}"],
                [f"v_rcp_f32 v{t}, v{t}"],
                [f"v_mul_f32 v{acc + r}, v{acc + r}, v{t}"]]
    o = []
    prev_last = None
    for r in range(8):
        sg = stage(r)
        o += sg[0]
        if prev_last:
            o += prev_last
            if r % 2 == 0:
                o.append(f"v_cvt_pk_bf16_f32 v{quad + r // 2 - 1}, v{acc + r - 2}, v{acc + r - 1}")
        o += sg[1] + sg[2] + sg[3] + sg[4]
        prev_last = sg[5]
    o += [h_store(quad, ks_off)[0] if store else "s_nop 0"] + prev_last
    o.append(f"v_cvt_pk_bf16_f32 v{quad + 3}, v{acc + 6}, v{acc + 7}")
    if store:
        o.append(h_store(quad, ks_off)[1])
    return o


def frag_reads(e, buf, wbase):
    o = []
    d = FR + 4 * buf
    if e['kind'] == 'Q':
        off = e['s'] * 1024
        return [f"ds_read_b64_tr_b16 {vr(d, 2)}, v{vQR} offset:{off}",
                f"ds_read_b64_tr_b16 {vr(d + 2, 2)}, v{vQR} offset:{off + 256}"]
    q = e['q']
    sl = slot_u(e['u'], e['s'])
    if not (wbase[q] <= sl and sl + 512 - wbase[q] <= 65535):
        nb = 0 if sl < 65536 else (65536 if sl < L_R else L_R)
        delta = nb - wbase[q]
        o.append(f"v_add_u32 v{vWR + q}, {delta & 0xffffffff:#x}, v{vWR + q}")
        wbase[q] = nb
    off = sl - wbase[q]
    o += [f"ds_read_b64_tr_b16 {vr(d, 2)}, v{vWR + q} offset:{off}",
          f"ds_read_b64_tr_b16 {vr(d + 2, 2)}, v{vWR + q} offset:{off + 512}"]
    return o


def g_stream(cfg):
    st = stream()
    N = len(st)
    wbase = [L_R] * 4
    lq = Q()
    pre = []
    for n in range(4):
        pre += frag_reads(st[n], n, wbase)
        lq.issue(n), lq.issue(n)
    fill = {}

    def spread(ops, g0, g1):
        k = g1 - g0 + 1
        for x, op in enumerate(ops):
            fill.setdefault(g0 + x * k // len(ops), []).append(op)
    todo = list(range(cfg.pre_c, 112))
    g0 = 0 if not cfg.late_c else max(0, cfg.pre_c - 5)
    for x, r in enumerate(todo):
        g = g0 + x if cfg.late_c else x * 107 // max(len(todo), 1)
        assert g <= 4 * (r // 4) - 2, (r, g)
        fill.setdefault(g, []).extend(center_reg(XC + r, vT + 2 * (x & 1)))
    tiles = [(A0 + 16 * q, q) for q in range(4)] + [(A4 + 16 * q, 4 + q) for q in range(2)]
    cut = 3 if cfg.bal else 4
    e0, e1 = [], []
    late = []
    for x, (ac, ks) in enumerate(tiles):
        quad = vHQ + 4 * (x & 1)
        if cfg.defer_h:
            quad = vHQ + 4 * x if x < 2 else ac + 8
            late += h_store(quad, ks)
        (e0 if x < cut else e1).extend(silu_tile(ac, quad, ks, store=not cfg.defer_h))
    spread(e0, 114, 166)
    spread(e1, 168 if cfg.bal else 172, 222)
    e2 = []
    for q in range(2):
        e2 += silu_tile(A0 + 16 * q, A0 + 16 * q + 8 if cfg.defer_h else vHQ + 4 * (q & 1), 6 + q)
    spread(e2, 227, 251)
    ready = {}
    for g in sorted(fill):
        for op in fill[g]:
            for x in range(len(late) // 2):
                q4 = int(late[2 * x + 1].split('[')[1].split(':')[0])
                if op.startswith(f"v_cvt_pk_bf16_f32 v{q4 + 3},") and g < 224:
                    ready[x] = g + 1
    g = cfg.hs0
    for x in ([2, 0, 1, 3, 4, 5] if late else []):
        g = max(g, ready[x])
        if x == 2:
            g = min(g, 223)
        fill.setdefault(g, []).extend(late[2 * x:2 * x + 2])
        g += cfg.hsd
    body, qp = pre, []
    cur = body
    for n, e in enumerate(st):
        if n == 224:
            cur = qp
        if cfg.wait2 and n % 2 == 0:
            k = lq.need(lambda t: t in (n, n + 1))
        else:
            k = lq.need(lambda t: t == n)
        if k is not None:
            cur.append(f"s_waitcnt lgkmcnt({k})")
        cur.append(mfma(e['acc'], FR + 4 * (n & 3), XC + 4 * e['s'], first=(e['s'] == 0)))
        if n in BARRIERS:
            bi = BARRIERS.index(n)
            cur += (ts(cfg, 18 + 2 * bi, True) if cfg.diag2 else []) + ["s_barrier"] + (ts(cfg, 19 + 2 * bi, True) if cfg.diag2 else [])
        if n in (111, 167) and cfg.diag2:
            cur += ts(cfg, 32 if n == 111 else 33, True)
        if n + 4 < N:
            cur += frag_reads(st[n + 4], n & 3, wbase)
            lq.issue(n + 4), lq.issue(n + 4)
        cur += fill.get(n, [])
        if n == 223:
            cur += (ts(cfg, 30, True) if cfg.diag2 else []) + ["s_barrier"] + (ts(cfg, 31, True) if cfg.diag2 else [])
    return body, qp


sHS = [6, 7, 14, 15, 16, 17, 18, 19]


HQUAD = [vHQ, vHQ + 4, A0 + 48, A0 + 56, A4 + 8, A4 + 24, A0 + 8, A0 + 24]


def h_store2(x):
    return f"buffer_store_dwordx4 {vr(HQUAD[x], 4)}, v{vL16}, {srd(sH)}, s{sHS[x]} offen sc1"


def cost(op):
    return 8 if op.startswith(("v_exp", "v_rcp")) else 4


LATE_H = []


def g_stream2(cfg):
    st = stream()
    N = len(st)
    wbase = [L_R] * 4
    reads = {n: frag_reads(st[n], n & 3, wbase) for n in range(N)}
    fill, slot0 = {}, {}
    for n in range(5, N):
        if reads[n][0].startswith("v_add"):
            fill.setdefault(n - 5, []).append(reads[n].pop(0))

    def place(ops, g0, g1, spill=False, even=0.0):
        used = lambda g: sum(cost(x) for x in fill.get(g, []))
        rest = {g: fill.pop(g, []) for g in range(g0, g1 + 1)}
        for budget in range(16, 64, 4):
            for g in rest:
                fill[g] = []
            g, ok, left = g0, True, []
            tot, acc_ = sum(cost(y[2]) for y in ops), 0
            for x, (e, l, t) in enumerate(ops):
                want = g0 + int(acc_ * (g1 - g0 + 1) * even / tot)
                acc_ += cost(t)
                g = max(g, e, min(want, l))
                while g <= g1 and used(g) + cost(t) + sum(cost(y) for y in rest[g]) > budget:
                    g += 1
                if g > g1 and spill and len(ops) - x <= spill:
                    left = [y[2] for y in ops[x:]]
                    break
                if g > min(l, g1):
                    ok = False
                    break
                fill[g].append(t)
            if ok:
                for g in rest:
                    fill[g] += rest[g]
                return budget, left
        raise AssertionError
    ops = []
    for x, r in enumerate(range(cfg.pre_c, 112)):
        ops += [(0, 4 * (r // 4) - 2, t) for t in center_reg(XC + r, vT + 2 * (x & 1))]
    b0, _ = place(ops, 0, 106, even=cfg.ev0 / 100)
    tiles = [(A0, 112, 166), (A0 + 16, 113, 167), (A0 + 32, 114, 221), (A0 + 48, 115, 221), (A4, 171, 226), (A4 + 16, 172, 226)]
    ops = []
    for x in (0, 1, 3, 2, 4, 5):
        ac, e, l = tiles[x]
        ops += [(e, l, t) for t in silu_tile(ac, HQUAD[x], x, store=False) if t != "s_nop 0"]
    quads = HQUAD
    b1, _ = place(ops, 112, 226, even=cfg.ev1 / 100)
    ops = []
    for x in range(2):
        ops += [(227 + x, 999, t) for t in silu_tile(A0 + 16 * x, quads[6 + x], 6 + x, store=False) if t != "s_nop 0"]
    b2, left = place(ops, 227, 251, spill=cfg.spill)
    print("vector budget per gap:", b0, b1, b2, "left over", len(left))
    ready = {}
    for g in sorted(fill):
        for op in fill[g]:
            for x, q4 in enumerate(quads):
                if op.startswith(f"v_cvt_pk_bf16_f32 v{q4 + 3},") and (g >= 227) == (x >= 6) and g >= 112:
                    ready[x] = g + 1
    g = cfg.hs0
    del LATE_H[:]
    for x in [0, 1, 3, 2, 4, 5, 6, 7]:
        g = max(g, ready.get(x, 999))
        g += g & 1
        while g in BARRIERS:
            g += 2
        if g > cfg.hs1:
            LATE_H.append(h_store2(x))
            continue
        slot0[g] = h_store2(x)
        g += cfg.hsd
    post = []
    lq = Q()
    body, qp = [], []
    cur = body
    for n in range(4):
        cur += reads[n]
        lq.issue(n), lq.issue(n)
    cur.append(f"s_waitcnt lgkmcnt({lq.need(lambda t: t in (0, 1))})")

    def emit(t):
        p = cur[-1]
        if p.startswith(("v_exp", "v_rcp")) and t.startswith("v_") and p.split()[1].rstrip(',') in t.replace(',', ' ').split()[2:]:
            cur.append("s_nop 0")
        cur.append(t)
    for n, e in enumerate(st):
        if n == 224:
            cur = qp
        cur.append(mfma(e['acc'], FR + 4 * (n & 3), XC + 4 * e['s'], first=(e['s'] == 0)))
        if cfg.w1 and n + 1 not in slot0 and n + 1 not in BARRIERS and n != 223:
            k = lq.need(lambda t: t == n + 1)
            if k is not None:
                cur.append(f"s_waitcnt lgkmcnt({k})")
        elif n & 1:
            k = lq.need(lambda t: t in (n + 1, n + 2))
            if k is not None:
                cur.append(f"s_waitcnt lgkmcnt({k})")
        if n in slot0:
            cur.append(slot0[n])
        if n == 223 and cfg.nob8 and cfg.diag2:
            cur += ts(cfg, 31, True)
        if n in BARRIERS or (n == 223 and not cfg.nob8):
            bi = BARRIERS.index(n) if n in BARRIERS else 6
            cur += (ts(cfg, 18 + 2 * bi, True) if cfg.diag2 else []) + ["s_barrier"] + (ts(cfg, 19 + 2 * bi, True) if cfg.diag2 else [])
        if n in (111, 167) and cfg.diag2:
            cur += ts(cfg, 32 if n == 111 else 33, True)
        if n + 4 < N:
            cur += reads[n + 4]
            lq.issue(n + 4), lq.issue(n + 4)
        for t in fill.get(n, []):
            emit(t)
    for t in left + post:
        emit(t)
    return body, qp


sPFW, sPFO = 18, 19


PFMOD = ['']


def pf_setup(cfg):
    o = [f"s_lshr_b32 s{sT0}, s2, 1", f"s_and_b32 s{sT0}, s{sT0}, 0x7c", f"s_add_u32 s{sT0}, s{sT0}, s{sWV}",
         f"s_mul_i32 s{sPFW}, s{sT0}, {14 * 896}", f"v_lshlrev_b32 v9, 7, v{vLANE}"]
    if cfg.nsplit:
        o += [f"s_mul_i32 s{sPFO}, s{sT0}, 7", f"s_lshr_b32 s{sPFO}, s{sPFO}, 1", f"s_mul_i32 s{sPFO}, s{sPFO}, 896",
              f"v_lshrrev_b32 v14, 2, v{vLANE}", "v_mul_u32_u24 v14, 896, v14", f"v_and_b32 v15, 3, v{vLANE}",
              "v_lshl_add_u32 v14, v15, 7, v14", f"s_mul_i32 s{sT0}, s{sP}, 384", f"v_add_u32 v14, s{sT0}, v14"]
    else:
        o += [f"s_mul_i32 s{sPFO}, s{sT0}, {3584 - 448}", f"s_and_b32 s{sPFO}, s{sPFO}, 0xffffff80"]
    return o


def pf_w2(cfg, part, n=1):
    o = []
    nw = max(0, min(part + n, 7) - part)
    per, va = (8, 14) if cfg.nsplit else (14, 9)
    if nw:
        mask = (1 << (per * nw)) - 1
        assert per * nw <= 64
        o += [f"s_mov_b32 exec_lo, {mask & 0xffffffff:#x}", f"s_mov_b32 exec_hi, {mask >> 32:#x}",
              f"s_add_u32 s{sT1}, s{sPFW}, {2 * 896 * part}",
              f"buffer_load_dword v{228 + part}, v{va}, {srd(sW2)}, s{sT1} offen {PFMOD[0]}"]
    if part <= 7 < part + n:
        o += [f"s_mov_b64 exec, {0xffff if cfg.nsplit else 0x3ffffff:#x}",
              f"buffer_load_dword v235, v{va}, {srd(sWO)}, s{sPFO} offen {PFMOD[0]}"]
    if o:
        o.append("s_mov_b64 exec, -1")
    return o


def first_touch():
    o = []
    for wv, r, nl, stride, add in ((0, sW2, 25, 6272, 0), (1, sWO, 14, 1568, 0), (2, sQ, 14, 1568, 0), (3, sW2, 25, 6272, 3072)):
        o += [f"s_cmp_lg_u32 s{sWV}, {wv}", f"s_cbranch_scc1 L_ft{wv}_@",
              f"s_mul_i32 s{sT1}, s2, {stride}", f"s_and_b32 s{sT1}, s{sT1}, 0xffffff80",
              f"s_mov_b64 exec, {(1 << nl) - 1:#x}",
              f"buffer_load_dword v{244 + wv}, v9, {srd(r)}, s{sT1} offen offset:{add}", "s_mov_b64 exec, -1", f"L_ft{wv}_@:"]
    return o


def loader_heavy(cfg):
    st = stream()
    first_read, last_use = {}, {}
    for n, e in enumerate(st):
        key = (e['u'], e['s']) if e['kind'] == 'W' else ('Q', e['s'])
        first_read.setdefault(key, n - 4)
        last_use[key] = n
    fills = [(0, s) for s in range(28)] + [(1, s) for s in range(28)] + [('Q', m) for m in range(7)]

    def target(f):
        return slot_u(*f) if f[0] != 'Q' else L_WQ + 4096 * f[1]
    prev_owner = {}
    for s in range(28):
        prev_owner[slot_u(0, s)] = (0, s)
    o = []
    vq = Q()
    issued = set()

    def issue(f):
        if f[0] == 'Q':
            m = f[1]
            o.extend([f"s_add_u32 m0, s{sT2}, {L_WQ + 4096 * m}", "s_nop 0",
                      f"buffer_load_dwordx4 v3, {srd(sQ)}, s{sRB + m} offen lds"])
        else:
            u, s = f
            o.extend([f"s_add_u32 m0, s{sM0}, {slot_u(u, s)}", f"s_add_u32 s{sSO}, s{sRA + (s >> 2)}, {(s & 3) * 16 * 3584 + u * 128}",
                      f"buffer_load_dwordx4 v2, {srd(sW)}, s{sSO} offen lds"])
        vq.issue(f)
        issued.add(f)

    def needed_before(nb):
        out = []
        for f in fills:
            keys = [f] if f[0] != 'Q' else [('Q', 4 * f[1] + x) for x in range(4)]
            if min(first_read[k] for k in keys) < nb:
                out.append(f)
        return out

    def wait_for(fs):
        for f in fs:
            assert f in issued, f
        k = vq.need(lambda t: t in fs)
        if k is not None:
            o.append(f"s_waitcnt vmcnt({k})")
    o += rot_table(sRA, 64 * 3584)
    for s in range(cfg.early_w):
        issue((0, s))
    o += code_pf(cfg)
    o += rot_table(sRB, 64 * 896, sT3) + a_init_regs() + pf_setup(cfg)
    if cfg.mid_w:
        o.append("s_barrier")
        for s in range(cfg.early_w, cfg.early_w + cfg.mid_w):
            issue((0, s))
    o.append("s_barrier")
    for s in range(cfg.early_w + cfg.mid_w, 12):
        issue((0, s))
    pts = BARRIERS + [10 ** 6 if cfg.nob8 else 223]
    o.append("s_barrier")
    o += probe(cfg, 4)
    wait_for(needed_before(pts[0]))
    o.append("s_barrier")
    done_upto = -1
    flags = set()
    for bi in range(len(pts)):
        cnt = 0
        for f in fills:
            if f in issued:
                continue
            t = target(f)
            own = prev_owner.get(t)
            if (own == f or own is None or last_use[own] <= done_upto) and cnt < cfg.caps[bi]:
                issue(f)
                cnt += 1
            else:
                break
        if cfg.ft == bi:
            o.extend([x.replace('@', 'h') for x in first_touch()])
            vq.issue('ft')
        pf = pf_w2(cfg, sum(cfg.pf_at[:bi]), cfg.pf_at[bi]) if cfg.pf_w2 else []
        o.extend(pf)
        for x in pf:
            if x.startswith("buffer_load"):
                vq.issue('pf')
        nxt = pts[bi + 1] if bi + 1 < len(pts) else 10 ** 9
        if cfg.sent_at == bi and not cfg.chain2:
            o.extend(o_sentinel())
        if cfg.res_at == bi and not cfg.chain2:
            o.extend(res_load())
            vq.issue('r')
        if cfg.diag4:
            o.extend(ts(cfg, 18 + 2 * bi))
        wait_for(needed_before(nxt))
        if cfg.diag4:
            o.extend(ts(cfg, 19 + 2 * bi))
        if bi == len(pts) - 1:
            break
        o.append("s_barrier")
        done_upto = pts[bi]
    assert len(issued) == len(fills)
    o += probe(cfg, 9)
    if cfg.nodma:
        k = [x for x, t in enumerate(o) if t == "s_barrier"][2 + (1 if cfg.mid_w else 0)]
        o = o[:k] + [t for t in o[k:] if not t.startswith("buffer_load")]
    if cfg.diag4:
        o += ts(cfg, 32) + ["s_waitcnt vmcnt(3)"] + ts(cfg, 33) + ["s_waitcnt vmcnt(1)"] + ts(cfg, 34) + ["s_waitcnt vmcnt(0)"] + ts(cfg, 35)
    return o


def a_setup(cfg):
    o = []
    a = o.append
    o += ids(cfg)
    if cfg.touch:
        for wv, items in enumerate((((26, 0), (26, 0x200000), (26, 0x400000)), ((26, 0x600000), (26, 0x800000), (22, 0)),
                                    ((20, 0), (12, 0), (6, 0)), ((24, 0), (16, 0), (18, 0)))):
            a(f"s_cmp_lg_u32 s{sWV}, {wv}")
            a(f"s_cbranch_scc1 L_touch{wv}")
            for k, (p, off) in enumerate(items):
                if off:
                    a(f"s_mov_b32 s{sT0}, {off}")
                    a(f"s_load_dword s{100 + (k & 1)}, s[{p}:{p + 1}], s{sT0}")
                else:
                    a(f"s_load_dword s{100 + (k & 1)}, s[{p}:{p + 1}], 0")
            a(f"L_touch{wv}:")
    a(f"s_bitcmp1_b32 s{sWV}, 0")
    a(f"s_cselect_b32 s{sW}, s18, s16")
    a(f"s_cselect_b32 s{sW + 1}, s19, s17")
    a(f"s_mov_b32 s{sW + 2}, {448 * 3584}")
    a(f"s_mov_b32 s{sW + 3}, 0x20000")
    a(f"s_mov_b32 s{sQ}, s6")
    a(f"s_mov_b32 s{sQ + 1}, s7")
    a(f"s_mov_b32 s{sQ + 2}, {448 * 896}")
    a(f"s_mov_b32 s{sQ + 3}, 0x20000")
    o += rest_srds(cfg)
    for r, lo, size in ((sW2, 20, 1792 * 896), (sWO, 12, 448 * 896)):
        o += [f"s_mov_b32 s{r}, s{lo}", f"s_mov_b32 s{r + 1}, s{lo + 1}", f"s_mov_b32 s{r + 2}, {size}",
              f"s_mov_b32 s{r + 3}, 0x20000"]
    a(f"v_lshrrev_b32 v4, 3, v{vLANE}")
    a(f"s_lshr_b32 s{sT0}, s{sWV}, 1")
    a(f"s_and_b32 s{sT1}, s{sWV}, 1")
    a(f"s_lshl_b32 s{sM0}, s{sWV}, 10")
    a("v_and_b32 v5, 2, v4")
    a(f"s_lshl_b32 s{sT1}, s{sT1}, 2")
    a(f"v_or_b32 v5, s{sT1}, v5")
    a(f"v_and_b32 v6, 7, v{vLANE}")
    a("v_xor_b32 v5, v5, v6")
    a(f"s_mul_i32 s{sT0}, s{sT0}, {8 * 3584}")
    a(f"s_lshl_b32 s{sT1}, s{sFS}, 8")
    a(f"s_add_u32 s{sT0}, s{sT0}, s{sT1}")
    a("v_mul_u32_u24 v4, 3584, v4")
    a("v_lshl_add_u32 v2, v5, 4, v4")
    a(f"v_add_u32 v2, s{sT0}, v2")
    a(f"v_lshrrev_b32 v4, 2, v{vLANE}")
    a(f"v_and_b32 v5, 3, v{vLANE}")
    a("v_lshlrev_b32 v5, 4, v5")
    a("v_mad_u32_u24 v7, v4, 56, v5")
    a("v_mul_u32_u24 v4, 896, v4")
    a(f"s_mul_i32 s{sT0}, s{sJ}, 56")
    a(f"v_add3_u32 v3, v4, v5, s{sT0}")
    a(f"s_lshl_b32 s{sT2}, s{sWV}, 10")
    a(f"s_mul_i32 s{sT3}, s{sWV}, {16 * 896}")
    return o


AS0, AS1, AP, AO, AQ, AK, AV = 16, 32, 48, 64, 128, 160, 192
NB = [2]
KVC = [0]
SIG = [False]
vA16, vKVO = 8, 9


def a_init_regs():
    o = [f"v_mov_b32 v{r}, 0" for r in list(range(AO, AO + 64)) + list(range(AP, AP + 8)) + [AS1 + 14, AS1 + 15] +
         list(range(AV + 8 * (NB[0] - 1), AV + 8 * NB[0]))]
    o.append(f"v_lshlrev_b32 v{vA16}, 4, v{vLANE}")
    o.append("v_mov_b32 v56, 0")
    return o


vOW = 224


def o_sentinel():
    o = []
    a = o.append
    a(f"s_lshl_b32 s{sT0}, s{sI}, 2")
    a(f"s_add_u32 s{sT0}, s{sT0}, s{sWV}")
    a(f"s_lshl_b32 s{sOO}, s{sT0}, 4")
    a(f"s_add_u32 s{sOO}, s{sOO}, s{sJ}")
    a(f"s_lshl_b32 s{sOO}, s{sOO}, 11")
    a(f"s_add_u32 s{sOO}, s{sOO}, {WS_O}")
    for r in range(4):
        a(f"v_mov_b32 v{240 + r}, -1")
    for u in range(2):
        a(f"buffer_store_dwordx4 {vr(240, 4)}, v{vA16}, {srd(sWS)}, s{sOO} offen offset:{1024 * u} sc1")
    return o


def loader_light(cfg):
    o = []
    a = o.append
    a(f"s_cmp_eq_u32 s{sP}, 0")
    a(f"s_cselect_b32 s{sW}, s8, s10")
    a(f"s_cselect_b32 s{sW + 1}, s9, s11")
    a(f"s_mov_b32 s{sW + 2}, {448 * 56}")
    a(f"s_mul_i32 s{sT1}, s{sWV}, 896")
    o += rot_table(sRA, 64 * 56, sT1)
    for m in range(7):
        a(f"s_add_u32 m0, s{sT2}, {L_R + 4096 * m}")
        a("s_nop 0")
        a(f"buffer_load_dwordx4 v7, {srd(sW)}, s{sRA + m} offen lds")
    o += code_pf(cfg)
    o += rot_table(sRB, 64 * 896, sT3) + a_init_regs() + pf_setup(cfg)
    if cfg.mid_w:
        a("s_barrier")
    a("s_barrier")
    a(f"s_cmp_lg_u32 s{sWV}, 0")
    a("s_cbranch_scc1 L_noclr")
    a(f"s_lshl_b32 s{sT0}, s{sI}, 14")
    a(f"s_lshl_b32 s{sT1}, s{sP}, 13")
    a(f"s_add_u32 s{sT0}, s{sT0}, s{sT1}")
    a(f"s_add_u32 s{sT0}, s{sT0}, {WS_FLAG}")
    a(f"v_lshlrev_b32 v4, 7, v{vLANE}")
    a(f"buffer_store_dword v{AP}, v4, {srd(sWS)}, s{sT0} offen sc1")
    a(f"v_mov_b32 v4, {L_KVC}")
    a(f"ds_write_b32 v4, v{AP}")
    a("L_noclr:")
    o += o_sentinel()
    a("s_barrier")
    a("s_waitcnt vmcnt(0) lgkmcnt(0)")
    a("s_barrier")
    wq = []
    for m in range(7):
        wq += [f"s_add_u32 m0, s{sT2}, {L_WQ + 4096 * m}", "s_nop 0", f"buffer_load_dwordx4 v3, {srd(sQ)}, s{sRB + m} offen lds"]
    if cfg.lq_early:
        o += wq
    a("s_barrier")
    if not cfg.lq_early:
        o += wq
    if cfg.ft >= 0:
        o += [x.replace('@', 'l') for x in first_touch()] + ["s_waitcnt vmcnt(0)"]
    if cfg.pf_w2:
        o += pf_w2(cfg, 0, 4)
    a(f"s_waitcnt vmcnt({1 if cfg.pf_w2 else 0})")
    if cfg.pf_w2:
        o += pf_w2(cfg, 4, 4)
    a("s_barrier")
    return o


def kv_load(kind, buf, rel):
    base = (AK if kind == 'K' else AV) + 8 * buf
    off = 0 if kind == 'K' else 2048
    return [f"buffer_load_dwordx4 {vr(base + 4 * u, 4)}, v{vA16}, {srd(sWS)}, s{rel} offen offset:{off + 1024 * u} sc1"
            for u in range(2)]


THRESH = 80.0 * 80.0 / 1.02


def a_pre_attn(cfg):
    o = []
    a = o.append
    o += ts(cfg, 1) + probe(cfg, 5)
    a("v_mov_b32 v4, 128")
    o += poll("L_pkv", 5, 4, sDBG, ["v_cmp_eq_u32 vcc, 0, v5", "s_nop 0", "s_cmp_lg_u64 vcc, 0"], sleep=cfg.sl_kv)
    o += ts(cfg, 2)
    a(f"v_lshlrev_b32 v4, 2, v{vLANE}")
    a(f"s_mov_b32 s{sT0}, {WS_KMAX}")
    a(f"buffer_load_dword v5, v4, {srd(sWS)}, s{sT0} offen sc1")
    a(f"s_lshl_b32 s{sSO}, s{sWV}, 16")
    if cfg.kvc:
        for kt in range(NB[0] - 1):
            o += kv_load('K', kt, sSO) + kv_load('V', kt, sSO) + [f"s_add_u32 s{sSO}, s{sSO}, 4096"]
        nkv = 4 * NB[0] - 4
    else:
        o += kv_load('K', 0, sSO)
        for kt in range(NB[0] - 1):
            o += kv_load('V', kt, sSO) + [f"s_add_u32 s{sSO}, s{sSO}, 4096"] + kv_load('K', kt + 1, sSO)
        nkv = 4 * NB[0] - 2
    npf = 0
    if cfg.chain2:
        a(f"s_cmp_eq_u32 s{sNT}, 7")
        a("s_cbranch_scc1 L_A_nosent")
        o += o_sentinel() + res_load()
        a("L_A_nosent:")
    if cfg.pf_kv:
        a(f"s_lshr_b32 s{sT0}, s2, 1")
        a(f"s_and_b32 s{sT0}, s{sT0}, 0x7c")
        a(f"s_add_u32 s{sT0}, s{sT0}, s{sWV}")
        a(f"s_lshl_b32 s{sT0}, s{sT0}, 11")
        a("s_mov_b64 exec, 0xffff")
        a(f"buffer_load_dword v236, v9, {srd(sWS)}, s{sT0} offen sc1")
        a("s_mov_b64 exec, -1")
        npf = 1
    for sg in range(4):
        a(f"s_add_u32 s{sT0}, s{sWV}, {1 + sg}")
        a(f"s_and_b32 s{sT0}, s{sT0}, 3")
        a(f"s_lshl_b32 s{sT0}, s{sT0}, 11")
        a(f"s_add_u32 s{sT0}, s{sT0}, {L_QX}")
        a(f"v_add_u32 v{10 + sg}, s{sT0}, v{vA16}")
    for sg in range(4):
        a(f"s_add_u32 s{sT0}, s{sWV}, {1 + sg}")
        a(f"s_and_b32 s{sT0}, s{sT0}, 3")
        a(f"s_mul_i32 s{sT0}, s{sT0}, 12288")
        a(f"v_add_u32 v{vOW + sg}, s{sT0}, v{vA16}")
    a(f"v_lshrrev_b32 v6, 5, v{vLANE}")
    a(f"v_and_b32 v7, 31, v{vLANE}")
    a("v_lshlrev_b32 v7, 2, v7")
    a("v_lshl_add_u32 v6, v6, 8, v7")
    if cfg.chain2:
        a(f"s_cmp_eq_u32 s{sNT}, 7")
        a("s_cbranch_scc1 L_A_w1")
        a(f"s_waitcnt vmcnt({nkv + npf + 3}) lgkmcnt(0)")
        a("s_branch L_A_w2")
        a("L_A_w1:")
    a(f"s_waitcnt vmcnt({nkv + npf}) lgkmcnt(0)")
    if cfg.chain2:
        a("L_A_w2:")
    o += wave_max_to_sgpr(5, sKMAX)
    if cfg.chain2:
        a("s_waitcnt vmcnt(1)")
    o += ts(cfg, 3)
    if not cfg.nob8:
        a(f"s_cmp_eq_u32 s{sNT}, 7")
        a("s_cbranch_scc1 L_A_b9")
        a("s_barrier")
        a("L_A_b9:")
    a("s_barrier")
    o += ts(cfg, 4)
    nb = NB[0]
    for sg in range(4):
        a(f"ds_read_b128 {vr(AQ + 8 * sg, 4)}, v{10 + sg}")
        a(f"ds_read_b128 {vr(AQ + 8 * sg + 4, 4)}, v{10 + sg} offset:1024")
    a(f"s_waitcnt vmcnt({(4 * nb - 8 if cfg.kvc else 4 * nb - 4) + npf}) lgkmcnt(6)")
    o += [mfma(AS0, AK, AQ, first=True), mfma(AS0, AK + 4, AQ + 4)]
    a("s_barrier")
    a(f"ds_read_b32 v4, v6 offset:{L_N2}")
    a(f"ds_read_b32 v5, v6 offset:{L_N2 + 512}")
    a(f"s_mov_b32 s{sCNT}, {16 // nb - 1}")
    a(f"v_mov_b32 v10, {L_CNT}")
    a("v_mov_b32 v11, 1")
    a("s_waitcnt lgkmcnt(0)")
    a("v_max_f32 v4, v4, v5")
    a(f"v_mul_f32 v4, s{sKMAX}, v4")
    a(f"v_cmp_nge_f32 vcc, {f2u(-1.0 if cfg.force_fallback else THRESH):#x}, v4")
    a("s_nop 1")
    a("s_cbranch_vccnz L_fallback")
    return o


def fallback(cfg):
    o = ["L_fallback:", "s_waitcnt vmcnt(0)"]
    a = o.append
    M = 228
    KB = 240
    for sg in range(4):
        a(f"v_mov_b32 v{M + sg}, 0xff800000")
    a(f"s_mov_b32 s{sT0}, 0")
    a("L_fb_loop:")
    for u in range(2):
        a(f"buffer_load_dwordx4 {vr(KB + 4 * u, 4)}, v{vA16}, {srd(sWS)}, s{sT0} offen offset:{1024 * u} sc1")
    a("s_waitcnt vmcnt(0)")
    for sg in range(4):
        a(mfma(AS0, KB, AQ + 8 * sg, first=True))
        a(mfma(AS0, KB + 4, AQ + 8 * sg + 4))
        a("s_nop 11")
        for r in range(0, 16, 2):
            a(f"v_max3_f32 v{M + sg}, v{M + sg}, v{AS0 + r}, v{AS0 + r + 1}")
    a(f"s_add_u32 s{sT0}, s{sT0}, 4096")
    a(f"s_cmp_lt_u32 s{sT0}, {64 * 4096}")
    a("s_cbranch_scc1 L_fb_loop")
    for sg in range(4):
        o += half_sum(M + sg, 4, "v_max_f32")
        a(f"v_cvt_pk_bf16_f32 v4, -v{M + sg}, -v{M + sg}")
        a("v_lshlrev_b32 v4, 16, v4")
        a(f"v_sub_f32 v4, -v{M + sg}, v4")
        a(f"v_cvt_pk_bf16_f32 v4, -v{M + sg}, v4")
        a(f"v_cndmask_b32 v{AQ + 8 * sg + 6}, v{AQ + 8 * sg + 6}, v4, s[{sUP}:{sUP + 1}]")
    a("s_nop 1")
    o += [mfma(AS0, AK, AQ, first=True), mfma(AS0, AK + 4, AQ + 4), "s_nop 11"]
    a("s_branch L_attn_loop")
    return o


def o_writes(sg):
    return [f"ds_write_b128 v{vOW + sg}, {vr(AO + 16 * sg + 4 * u, 4)} offset:{L_ORED + sg * 4096 + u * 1024}" for u in range(4)]


def attn_block(n, last=False, peel=None):
    nb = NB[0]
    end = 4 * nb - 1
    X, Y = (AS0, AS1) if n % 2 == 0 else (AS1, AS0)
    q, qn, qp = n & 3, (n + 1) & 3, (n - 1) & 3
    kb = AK + 8 * (((n + 1) >> 2) % nb)
    vb = AV + 8 * (((n - 1) >> 2) % nb)
    E = lambda i: f"v_exp_f32 v{X + i}, v{X + i}"
    C = lambda i: f"v_cvt_pk_bf16_f32 v{AP + i}, v{X + 2 * i}, v{X + 2 * i + 1}"
    Cp7 = f"v_cvt_pk_bf16_f32 v{AP + 7}, v{Y + 14}, v{Y + 15}"
    QK0, QK1 = mfma(Y, kb, AQ + 8 * qn, first=True), mfma(Y, kb + 4, AQ + 8 * qn + 4)
    PV0, PV1 = mfma(AO + 16 * qp, vb, AP), mfma(AO + 16 * qp, vb + 4, AP + 4)
    if last:
        return [Cp7, PV0, "s_nop 0", PV1]
    if peel and n == end:
        sig = ["s_mov_b64 exec, 1", "ds_add_u32 v10, v11", "s_mov_b64 exec, -1"] if SIG[0] else []
        return ([Cp7, E(0), E(1), PV0, E(2), E(3), E(4), PV1] + o_writes(1) +
                [E(5), E(6), C(0), E(7), E(8), C(1), E(9), E(10), C(2)] + o_writes(2) + sig +
                [E(11), E(12), C(3), E(13), C(4), E(14), C(5), E(15), C(6)])

    def wait(tag, steady):
        if not peel:
            return [f"s_waitcnt vmcnt({steady})"]
        k = peel.need(lambda t: t == tag)
        return [] if k is None else [f"s_waitcnt vmcnt({k})"]
    o = [Cp7]
    kvc = KVC[0]
    if q == 3 and not kvc:
        o += wait(('K', (n >> 2) + 1), 4 * nb - 6)
    s0 = [f"s_add_u32 s{sSO}, s{sSO}, 4096"] if kvc and q == 1 and not peel else []
    s1 = []
    if n == end and not peel:
        s0, s1 = [f"s_sub_u32 s{sCNT}, s{sCNT}, 1"], [f"s_cmp_lg_u32 s{sCNT}, 0"]
    o += [QK0] + s0 + [E(0), E(1), E(2), QK1] + s1
    o += [E(3), E(4), E(5)]
    if q == 1 and not kvc:
        o += wait(('V', n >> 2), 4 * nb - 4)
    o += [PV0, E(6), E(7), E(8), PV1]
    if q == 2 and kvc == 1 and not (peel and (n >> 2) + 1 >= nb):
        o += wait(('V', (n >> 2) + 1), 4 * nb - 8)
    if kvc:
        if q == 0 and kvc == 2 and (n >> 2) + 1 < nb + (0 if peel else 1):
            o += wait(('V', (n >> 2) + 1), 4 * nb - 12)
        if q == 0 and not (peel and n):
            b = ((n >> 2) - 1) % nb
            o += kv_load('K', b, sSO) + kv_load('V', b, sSO)
            if peel:
                for _ in range(4):
                    peel.issue(('V', nb - 1))
    else:
        if q == 0 and not (peel and n):
            o += kv_load('V', ((n >> 2) - 1) % nb, sSO)
            if peel:
                peel.issue(('V', nb - 1)), peel.issue(('V', nb - 1))
        if q == 3 and not peel:
            o += [f"s_add_u32 s{sSO}, s{sSO}, 4096"] + kv_load('K', (n >> 2) % nb, sSO)
    tail = [E(9), C(0), E(10), C(1), E(11), C(2), E(12), C(3), E(13), C(4), E(14), C(5), E(15), C(6)]
    if peel and n == end - 1:
        tail = o_writes(0) + tail
    return o + tail


def attention(cfg):
    nb = NB[0]
    o = []
    loop = []
    for n in range(4 * nb):
        loop += attn_block(n)
    assert cfg.kvc
    loop += ["s_cbranch_scc1 L_attn_loop"]
    pq = Q()
    for kt in range(nb - 1):
        for t in ([('V', kt)] * 4 if cfg.kvc else (('V', kt), ('V', kt), ('K', kt + 1), ('K', kt + 1))):
            pq.issue(t)
    post = []
    for n in range(4 * nb):
        post += attn_block(n, peel=pq)
    post += attn_block(4 * nb, last=True)
    return o, loop, post


def lds_wait4(label, first, sleep, d=4):
    return ([f"s_mov_b32 s{sCNT}, {1 << (23 if sleep else 25)}"] + first + [f"{label}:", "s_waitcnt lgkmcnt(0)"] + (["s_setprio 1"] if sleep else []) +
            [f"v_readfirstlane_b32 s{sT0}, v{d}", "s_setprio 0" if sleep else "s_nop 0", f"s_cmp_ge_u32 s{sT0}, 4", f"s_cbranch_scc1 {label}_ok", f"s_sub_u32 s{sCNT}, s{sCNT}, 1",
            f"s_cbranch_scc1 {label}_ok"] + ([f"s_sleep {sleep}"] if sleep else []) +
            [f"ds_read_b32 v{d}, v10", f"s_branch {label}", f"{label}_ok:"])


def a_post(cfg):
    o = []
    a = o.append
    if cfg.nob10:
        o += ts(cfg, 5)
        o += lds_wait4("L_w4", ["ds_read_b32 v4, v10"], 0)
    else:
        a("s_waitcnt lgkmcnt(0)")
        o += ts(cfg, 5)
        a("s_barrier")
    o += ts(cfg, 6) + probe(cfg, 3)
    R = 128
    for x in range(12):
        a(f"ds_read_b128 {vr(R + 4 * x, 4)}, v{vOW + 3} offset:{L_ORED + x * 1024}")
    O = AO + 48
    order = [3, 0, 1, 2]
    lq = Q()
    o = o[:len(o) - 12]
    a = o.append
    for u in order:
        for sg in range(3):
            a(f"ds_read_b128 {vr(R + 16 * sg + 4 * u, 4)}, v{vOW + 3} offset:{L_ORED + (4 * sg + u) * 1024}")
            lq.issue((sg, u))
    for u in order:
        a(f"s_waitcnt lgkmcnt({lq.need(lambda t: t == (1, u))})")
        for r in range(4):
            a(f"v_add_f32 v{R + 4 * u + r}, v{R + 4 * u + r}, v{R + 16 + 4 * u + r}")
        a(f"s_waitcnt lgkmcnt({lq.need(lambda t: t == (2, u))})")
        for r in range(4):
            a(f"v_add_f32 v{O + 4 * u + r}, v{O + 4 * u + r}, v{R + 32 + 4 * u + r}")
        for r in range(4):
            a(f"v_add_f32 v{O + 4 * u + r}, v{O + 4 * u + r}, v{R + 4 * u + r}")
        if u == 3:
            a(f"v_mov_b32 v4, v{O + 12}")
            a(f"v_mov_b32 v5, v{O + 12}")
            a("s_nop 1")
            a("v_permlane32_swap_b32 v4, v5")
            a("v_rcp_f32 v5, v5")
            a("s_nop 0")
            a(f"v_cndmask_b32 v4, v5, 0, s[{sUP}:{sUP + 1}]")
        for r in range(4):
            a(f"v_mul_f32 v{O + 4 * u + r}, v{O + 4 * u + r}, v{5 if u < 3 else 4}")
        for r in range(2):
            a(f"v_cvt_pk_bf16_f32 v{AP + 2 * u + r}, v{O + 4 * u + 2 * r}, v{O + 4 * u + 2 * r + 1}")
        if u in (1, 2):
            b = u - 1
            a(f"buffer_store_dwordx4 {vr(AP + 4 * b, 4)}, v{vA16}, {srd(sWS)}, s{sOO} offen offset:{1024 * b} sc1")
    o += ts(cfg, 7)
    a(f"s_cmp_eq_u32 s{sNT}, 7")
    a("s_cbranch_scc1 L_fin")
    if cfg.res_at == 9:
        o += res_load()
    return o


vXRES = 60


BFP = [False]


def res_load():
    o = []
    a = o.append
    a(f"v_lshrrev_b32 v57, 3, v{vLANE}")
    a(f"v_and_b32 v58, 7, v{vLANE}")
    a("v_mul_u32_u24 v56, 896, v57")
    a("v_lshl_add_u32 v56, v58, 4, v56")
    a(f"s_lshl_b32 s{sT0}, s{sI}, 7")
    a(f"s_lshl_b32 s{sT1}, s{sMT}, 6")
    a(f"s_add_u32 s{sT0}, s{sT0}, s{sT1}")
    a(f"s_lshl_b32 s{sT1}, s{sWV}, 3")
    a(f"s_add_u32 s{sT0}, s{sT0}, s{sT1}")
    a(f"s_mul_i32 s{sT0}, s{sT0}, 896")
    a(f"s_lshl_b32 s{sT2}, s{sNC}, 7")
    a(f"s_add_u32 s{sT0}, s{sT0}, s{sT2}")
    a(f"v_add_u32 v56, s{sT0}, v56")
    a(f"buffer_load_dwordx4 {vr(vXRES, 4)}, v56, {srd(sX)}, 0 offen")
    a(f"v_add_u32 v57, s{sT1}, v57")
    a(f"v_mul_u32_u24 v57, {144 if BFP[0] else 272}, v57")
    a(f"v_lshl_add_u32 v57, v58, {4 if BFP[0] else 5}, v57")
    a(f"v_add_u32 v57, {L_RING}, v57")
    a(f"v_add_u32 v58, {2 * RING}, v57")
    return o


def final(cfg):
    o = ["L_final:", "s_barrier"]
    a = o.append
    o += ts(cfg, 12)
    R = 64
    if cfg.bfp:
        for kq in range(4):
            a(f"ds_read_b128 {vr(R + 4 * kq, 4)}, v{57 + (kq >> 1)} offset:{(kq & 1) * RING}")
        a("v_mov_b32 v6, 0x00003f80")
        a("v_mov_b32 v7, 0x3f800000")
    else:
        for kq in range(4):
            for u in range(2):
                a(f"ds_read_b128 {vr(R + 8 * kq + 4 * u, 4)}, v{57 + (kq >> 1)} offset:{(kq & 1) * RING + 16 * u}")
    a("s_waitcnt vmcnt(0)")
    for r in range(4):
        a(f"v_lshlrev_b32 v{8 + 2 * r}, 16, v{vXRES + r}")
        a(f"v_and_b32 v{9 + 2 * r}, s{sHI}, v{vXRES + r}")
    for kq in range(4):
        if cfg.bfp:
            a(f"s_waitcnt lgkmcnt({3 - kq})")
            for r in range(8):
                a(f"v_dot2c_f32_bf16 v{8 + r}, v{R + 4 * kq + r // 2}, v{6 + (r & 1)}")
        else:
            a(f"s_waitcnt lgkmcnt({6 - 2 * kq})")
            for r in range(8):
                a(f"v_add_f32 v{8 + r}, v{8 + r}, v{R + 8 * kq + r}")
    for r in range(4):
        a(f"v_cvt_pk_bf16_f32 v{vXRES + r}, v{8 + 2 * r}, v{9 + 2 * r}")
    a(f"buffer_store_dwordx4 {vr(vXRES, 4)}, v56, {srd(sOUT)}, 0 offen {('', 'sc1', 'sc0 sc1', 'nt')[cfg.outsc]}")
    if cfg.amp[0] >= 0:
        o += ts(cfg, 15)
        a(f"s_cmp_{'lt' if cfg.amp[2] else 'ge'}_u32 s{sWV}, 4")
        a("s_cbranch_scc1 L_fin")
        a("s_sub_u32 s99, s100, s99")
        a(f"s_mul_i32 s99, s99, {cfg.amp[3]}")
        a(f"s_memrealtime s[{sTS}:{sTS + 1}]")
        a("s_waitcnt lgkmcnt(0)")
        a(f"s_add_u32 s99, s99, s{sTS}")
        a("L_amp:")
        a(f"s_memrealtime s[{sTS}:{sTS + 1}]")
        a("s_waitcnt lgkmcnt(0)")
        a(f"s_sub_u32 s100, s{sTS}, s99")
        a("s_cmp_lt_i32 s100, 0")
        a("s_cbranch_scc1 L_amp")
    a("L_fin:")
    if cfg.diag:
        o += ts(cfg, 15)
        o += [f"s_memrealtime s[{sTS}:{sTS + 1}]", "s_waitcnt lgkmcnt(0)", f"v_writelane_b32 v{vTS}, s{sTS}, 17"]
        a(f"s_lshl_b32 s{sT0}, s2, 3")
        a(f"s_add_u32 s{sT0}, s{sT0}, s{sWV}")
        a(f"s_lshl_b32 s{sT0}, s{sT0}, 8")
        a(f"s_add_u32 s{sT0}, s{sT0}, {WS_DIAG}")
        a(f"v_lshlrev_b32 v4, 2, v{vLANE}")
        a(f"buffer_store_dword v{vTS}, v4, {srd(sWS)}, s{sT0} offen")
        if cfg.dbgout >= 0:
            a(f"s_lshl_b32 s{sT0}, s2, 3")
            a(f"s_add_u32 s{sT0}, s{sT0}, s{sWV}")
            a(f"s_cmp_lg_u32 s{sT0}, {cfg.dbgout}")
            a("s_cbranch_scc1 L_end")
            a(f"v_readlane_b32 s{sT1}, v{vTS}, 0")
            a(f"v_readlane_b32 s{sT2}, v{vTS}, 16")
            a(f"v_readlane_b32 s{sT3}, v{vTS}, 17")
            a("s_nop 3")
            a(f"s_sub_u32 s{sT2}, s{sT3}, s{sT2}")
            a(f"v_subrev_u32 v5, s{sT1}, v{vTS}")
            a(f"v_writelane_b32 v5, s{sT2}, 14")
            a("s_mov_b64 exec, 0xfffe")
            a(f"buffer_store_dword v5, v4, {srd(sDBG)}, 0 offen")
    a("L_end:")
    a("s_endpgm")
    return o


def g_front(cfg):
    o = ["L_G:"] + ids(cfg)
    a = o.append
    if cfg.diag3:
        o += ts(cfg, 34, True)
    o += rest_srds(cfg)
    a(f"s_mov_b32 s{sH}, s26")
    a(f"s_mov_b32 s{sH + 1}, s27")
    a(f"s_cmp_eq_u32 s{sNT}, 7")
    a(f"s_cselect_b32 s{sH + 2}, 0, {WS_END}")
    a(f"s_mov_b32 s{sH + 3}, 0x20000")
    a(f"s_mul_i32 s{sHO}, s{sT0}, 112")
    a(f"s_lshl3_add_u32 s{sHO}, s{sFS}, s{sHO}")
    a(f"s_lshl_b32 s{sHO}, s{sHO}, 10")
    a(f"s_add_u32 s{sHO}, s{sHO}, {WS_H}")
    if cfg.s2:
        for x in range(8):
            a(f"s_add_u32 s{sHS[x]}, s{sHO}, {1024 * x}")
    a(f"v_and_b32 v8, 31, v{vLANE}")
    a(f"v_lshrrev_b32 v9, 5, v{vLANE}")
    a("v_bfe_u32 v10, v8, 1, 3")
    a("v_xor_b32 v10, v10, v9")
    a("v_lshlrev_b32 v10, 4, v10")
    a("v_lshl_add_u32 v10, v8, 7, v10")
    a(f"v_add_u32 v20, s{sM0}, v10")
    for k in range(1, 4):
        a(f"v_xor_b32 v{20 + k}, {32 * k}, v20")
    a(f"v_mov_b32 v{vONE}, 0x3f803f80")
    for r in range(4):
        a(f"v_mov_b32 v{vT + r}, 0")
    a(f"v_lshlrev_b32 v{vL16}, 4, v{vLANE}")
    a("s_waitcnt lgkmcnt(0)")

    def dots(L):
        d = []
        for r in range(16):
            x = XC + 16 * L + r
            d += [f"v_dot2c_f32_bf16 v{vT + (r & 1)}, v{x}, v{vONE}", f"v_dot2c_f32_bf16 v{vT + 2 + (r & 1)}, v{x}, v{x}"]
        return d
    if cfg.xd >= 7:
        a("s_barrier")
    for L in range(7):
        a(f"s_waitcnt vmcnt({4 * (min(L + cfg.xd, 7) - 1 - L)})")
        if cfg.diag3:
            o += ts(cfg, 26 + L, True)
        for k in range(4):
            a(f"ds_read_b128 {vr(XC + 16 * L + 4 * k, 4)}, v{20 + k} offset:{L * 4096}")
        if L == 0 and cfg.mid_w:
            a("s_barrier")
        if L + cfg.xd < 7:
            o += x_dma(L + cfg.xd)
            if L + cfg.xd == 6:
                a("s_barrier")
                o += ts(cfg, 1, True)
        if L:
            a("s_waitcnt lgkmcnt(4)")
            o += dots(L - 1)
    a(f"v_bfe_u32 v8, v{vLANE}, 4, 1")
    a(f"v_bfe_u32 v10, v{vLANE}, 2, 2")
    a(f"v_and_b32 v11, 3, v{vLANE}")
    a("v_lshlrev_b32 v11, 3, v11")
    a("v_lshl_add_u32 v12, v9, 3, v10")
    a("v_lshlrev_b32 v12, 6, v12")
    a("v_lshl_add_u32 v12, v8, 5, v12")
    a(f"v_add_u32 v{vQR}, v12, v11")
    a("v_lshrrev_b32 v12, 1, v10")
    a("v_lshl_or_b32 v12, v8, 1, v12")
    a("v_lshl_add_u32 v12, v12, 5, v11")
    a("v_lshl_add_u32 v12, v10, 7, v12")
    a("v_lshl_add_u32 v12, v8, 10, v12")
    a("v_lshl_add_u32 v12, v9, 11, v12")
    a("s_waitcnt lgkmcnt(0)")
    a("s_barrier")
    o += ts(cfg, 14, True)
    a(f"v_add_u32 v2, {L_R}, v12")
    for k in range(1, 4):
        a(f"v_xor_b32 v{2 + k}, {32 * k}, v2")
    o += dots(6)
    a("s_nop 2")
    a(f"v_add_f32 v{vMEAN}, v{vT}, v{vT + 1}")
    a(f"v_add_f32 v{vC}, v{vT + 2}, v{vT + 3}")
    a(f"v_mov_b32 v{vT}, v{vMEAN}")
    a(f"v_mov_b32 v{vT + 1}, v{vC}")
    a("s_nop 0")
    a(f"v_permlane32_swap_b32 v{vMEAN}, v{vT}")
    a(f"v_permlane32_swap_b32 v{vC}, v{vT + 1}")
    a(f"v_add_f32 v{vMEAN}, v{vMEAN}, v{vT}")
    a(f"v_add_f32 v{vC}, v{vC}, v{vT + 1}")
    a(f"v_mul_f32 v{vMEAN}, {f2u(1.0 / 448):#x}, v{vMEAN}")
    a(f"v_mul_f32 v{vC}, {f2u(1.0 / 448):#x}, v{vC}")
    a(f"v_fma_f32 v{vC}, -v{vMEAN}, v{vMEAN}, v{vC}")
    a(f"v_max_f32 v{vC}, 0, v{vC}")
    a(f"v_add_f32 v{vC}, {f2u(1e-5):#x}, v{vC}")
    a(f"v_rsq_f32 v{vRSTD}, v{vC}")
    a("s_nop 0")
    a(f"v_mul_f32 v{vK1}, {f2u(-math.log2(math.e)):#x}, v{vRSTD}")
    a(f"s_cmp_eq_u32 s{sNT}, 7")
    a("s_cbranch_scc1 L_G_light")
    a(f"v_add_u32 v{vQR}, {L_WQ}, v{vQR}")
    o += center_all(cfg.pre_c)
    a("s_barrier")
    o += ts(cfg, 2, True)
    return o


def center_all(nreg=112):
    o = [f"v_mov_b32 v6, 0x00003f80", f"v_mov_b32 v7, 0x3f800000", f"v_sub_f32 v{vKQ}, 0, v{vMEAN}"]
    a = o.append
    for r in range(nreg + 2):
        if r < nreg:
            t = vT + 2 * (r % 3)
            a(f"v_dot2_f32_bf16 v{t}, v{XC + r}, v6, v{vKQ}")
            a(f"v_dot2_f32_bf16 v{t + 1}, v{XC + r}, v7, v{vKQ}")
        else:
            a("s_nop 1")
        if r >= 2:
            tp = vT + 2 * ((r - 2) % 3)
            a(f"v_cvt_pk_bf16_f32 v{XC + r - 2}, v{tp}, v{tp + 1}")
    return o


def g_light(cfg):
    o = ["L_G_light:"]
    a = o.append
    a(f"v_add_u32 v{vQR}, {L_R}, v{vQR}")
    a("s_barrier")
    o += ts(cfg, 2, True)
    for n in range(4):
        o += frag_reads(dict(kind='Q', s=n), n, None)
    for r in range(4):
        a(f"v_mov_b32 v{vHQ + r}, v{vONE}")
    lq = Q()
    for n in range(4):
        lq.issue(n), lq.issue(n)
    for n in range(28):
        k = lq.need(lambda t: t == n)
        a(f"s_waitcnt lgkmcnt({k})")
        a(mfma(A0 + 32, FR + 4 * (n & 3), XC + 4 * n, first=(n == 0)))
        a(mfma(A0 + 48, FR + 4 * (n & 3), vHQ, first=(n == 0)))
        if n + 4 < 28:
            o += frag_reads(dict(kind='Q', s=n + 4), n & 3, None)
            lq.issue(n + 4), lq.issue(n + 4)
    a("s_nop 11")
    for r in range(16):
        a(f"v_fma_f32 v{A0 + 32 + r}, -v{vMEAN}, v{A0 + 48 + r}, v{A0 + 32 + r}")
    return o


def g_restart():
    o = []
    for n in range(4):
        o += frag_reads(dict(kind='Q', s=n), n, None)
    return o + ["s_waitcnt lgkmcnt(4)", "s_branch L_qpass"]


def proj_scale(scale_reg_setup):
    AC = A0 + 32
    o = list(scale_reg_setup)
    o.append(f"v_cndmask_b32 v{vKQ2}, v{vKQ}, 0, s[{sUP}:{sUP + 1}]")
    for r in range(16):
        o.append(f"v_mul_f32 v{AC + r}, v{AC + r}, v{vKQ if r < 12 else vKQ2}")
    return o


def sumsq():
    AC = A0 + 32
    o = [f"v_mul_f32 v{vT}, v{AC}, v{AC}", f"v_mul_f32 v{vT + 1}, v{AC + 1}, v{AC + 1}"]
    for r in range(2, 16):
        o.append(f"v_fmac_f32 v{vT + (r & 1)}, v{AC + r}, v{AC + r}")
    o.append(f"v_add_f32 v{vT}, v{vT}, v{vT + 1}")
    o += half_sum(vT, vT + 1)
    return o


def pack16(dst):
    AC = A0 + 32
    return [f"v_cvt_pk_bf16_f32 v{dst + r}, v{AC + 2 * r}, v{AC + 2 * r + 1}" for r in range(8)]


def g_after_pass(cfg):
    o = []
    a = o.append
    P = A4
    o += ts(cfg, 3, True)
    cq = math.log2(math.e) / math.sqrt(28.0)
    a(f"s_lshl_b32 s{sT0}, s{sTT}, 11")
    a(f"s_add_u32 s{sT0}, s{sT0}, {L_QX}")
    a(f"v_add_u32 v6, s{sT0}, v{vL16}")
    a(f"s_lshl_b32 s{sT0}, s{sTT}, 8")
    a(f"v_lshl_add_u32 v7, v{vLANE}, 2, s{sT0}")
    a("s_nop 5")
    sc, pk = proj_scale([]), pack16(P)
    o[-1:] = [f"v_mul_f32 v{vKQ}, {f2u(cq):#x}, v{vRSTD}", sc[0], f"v_mov_b32 v{vT}, {L_CNT}", f"v_mov_b32 v{vT + 1}, 0",
              f"ds_write_b32 v{vT}, v{vT + 1}", "s_nop 1"]
    o += sc[1:9] + pk[:4] + [f"ds_write_b128 v6, {vr(P, 4)}"] + sc[9:] + pk[4:] + [f"ds_write_b128 v6, {vr(P + 4, 4)} offset:1024"]
    a("s_waitcnt lgkmcnt(0)")
    a("s_barrier")
    o += sumsq()
    a(f"ds_write_b32 v7, v{vT} offset:{L_N2}")
    a("s_waitcnt lgkmcnt(0)")
    a("s_barrier")
    o += ts(cfg, 4, True) + ts_move(cfg)
    a(f"s_cmp_eq_u32 s{sNT}, 7")
    a("s_cbranch_scc1 L_fin")
    return o


def kv_epi(cfg):
    o = ["L_kv_epi:"]
    a = o.append
    P = A4
    AC = A0 + 32
    a(f"s_lshl_b32 s{sT1}, s{sI}, 2")
    a(f"s_add_u32 s{sT1}, s{sT1}, s{sTT}")
    a(f"s_lshl_b32 s{sT2}, s{sT1}, 12")
    o += proj_scale([f"v_mov_b32 v{vKQ}, v{vRSTD}"])
    a(f"s_cmp_eq_u32 s{sP}, 1")
    a("s_cbranch_scc1 L_v_epi")
    o += pack16(P)
    a(f"v_cndmask_b32 v{P + 6}, v{P + 6}, v{vONE}, s[{sUP}:{sUP + 1}]")
    o += sumsq()
    a(f"buffer_store_dwordx4 {vr(P, 4)}, v{vL16}, {srd(sWS)}, s{sT2} offen sc1")
    a(f"buffer_store_dwordx4 {vr(P + 4, 4)}, v{vL16}, {srd(sWS)}, s{sT2} offen offset:1024 sc1")
    o += wave_max_to_sgpr(vT, sT3)
    a(f"s_lshl_b32 s{sT1}, s{sT1}, 2")
    a(f"s_add_u32 s{sT1}, s{sT1}, {WS_KMAX}")
    a("v_mov_b32 v6, 0")
    a(f"v_mov_b32 v7, s{sT3}")
    a("s_mov_b64 exec, 1")
    a(f"buffer_store_dword v7, v6, {srd(sWS)}, s{sT1} offen sc1")
    a("s_mov_b64 exec, -1")
    a("s_branch L_kv_pub")
    vpart = ["L_v_epi:"]
    a = vpart.append
    a(f"v_mov_b32 v6, 1.0")
    a(f"v_cndmask_b32 v{AC + 12}, v{AC + 12}, v6, s[{sUP}:{sUP + 1}]")
    vpart += pack16(P)
    a(f"v_and_b32 v6, 31, v{vLANE}")
    a(f"v_lshrrev_b32 v7, 5, v{vLANE}")
    a("v_lshlrev_b32 v6, 6, v6")
    a("v_lshl_add_u32 v6, v7, 3, v6")
    a(f"s_lshl_b32 s{sT0}, s{sTT}, 11")
    a(f"v_add_u32 v6, s{sT0}, v6")
    for u in range(4):
        a(f"ds_write_b64 v6, {vr(P + 2 * u, 2)} offset:{16 * u}")
    a(f"v_bfe_u32 v6, v{vLANE}, 2, 2")
    a("v_lshl_add_u32 v6, v7, 2, v6")
    a("v_lshlrev_b32 v6, 6, v6")
    a(f"v_bfe_u32 v7, v{vLANE}, 4, 1")
    a("v_lshl_add_u32 v6, v7, 5, v6")
    a(f"v_and_b32 v7, 3, v{vLANE}")
    a("v_lshl_add_u32 v6, v7, 3, v6")
    a(f"v_add_u32 v6, s{sT0}, v6")
    a("s_waitcnt lgkmcnt(0)")
    for u in range(4):
        a(f"ds_read_b64_tr_b16 {vr(P + 8 + 2 * u, 2)}, v6 offset:{512 * u}")
    a("s_waitcnt lgkmcnt(0)")
    a(f"buffer_store_dwordx4 {vr(P + 8, 4)}, v{vL16}, {srd(sWS)}, s{sT2} offen offset:2048 sc1")
    a(f"buffer_store_dwordx4 {vr(P + 12, 4)}, v{vL16}, {srd(sWS)}, s{sT2} offen offset:3072 sc1")
    pub = ["L_kv_pub:"] + probe(cfg, 1)
    a = pub.append
    pub += ts(cfg, 6, True)
    ca = center_all()
    half = 3 + 3 * 50 - 2
    if cfg.lc_split:
        pub += ca[:half]
    a(f"v_mov_b32 v24, {L_KVC}")
    a("v_mov_b32 v25, 1")
    a("s_mov_b64 exec, 1")
    a("s_waitcnt vmcnt(0)")
    a("ds_add_rtn_u32 v26, v24, v25")
    a("v_mov_b32 v24, 0")
    a("s_waitcnt lgkmcnt(0)")
    a("v_cmp_eq_u32 vcc, 3, v26")
    a("s_cbranch_vccz L_kv_notlast")
    a("v_mov_b32 v26, 1")
    a(f"buffer_atomic_add v26, v24, {srd(sDBG)}, 0 offen sc0")
    a("s_waitcnt vmcnt(0)")
    a("v_cmp_eq_u32 vcc, 31, v26")
    a("s_cbranch_vccz L_kv_notlast")
    a(f"buffer_store_dword v25, v24, {srd(sDBG)}, 0 offen offset:128 sc1")
    a("L_kv_notlast:")
    a("s_mov_b64 exec, -1")
    a("s_barrier")
    pub += ts(cfg, 5, True)
    a(f"v_add_u32 v{vQR}, {(L_WQ - L_R) & 0xffffffff:#x}, v{vQR}")
    pub += probe(cfg, 8) + (ca[half:] if cfg.lc_split else ca)
    a("s_barrier")
    pub += g_restart()
    return o, vpart, pub


GH = 128
NH = 11
WOQ = [12, 16, 20, 24, 32, 36, 40, 44, 48, 52, 216, 220, 224, 228, 232, 236]
vW2R = 2
vW2D = 4
vFL = 5


def gemm2(cfg):
    o = []
    a = o.append
    ng1 = cfg.ng1
    if cfg.gprio:
        a("s_setprio 1")
    o += LATE_H + probe(cfg, 6)
    a(f"s_lshl_b32 s{sT0}, s{sI}, 14")
    a(f"s_lshl_b32 s{sT2}, s{sTT}, 11")
    a(f"s_add_u32 s{sT1}, s{sT0}, s{sT2}")
    a(f"s_lshl_b32 s{sT2}, s{sJ}, 7")
    a(f"s_add_u32 s{sT1}, s{sT1}, s{sT2}")
    a(f"s_add_u32 s{sT1}, s{sT1}, {WS_FLAG}")
    a("v_mov_b32 v6, 0")
    a("v_mov_b32 v7, 1")
    a("s_mov_b64 exec, 1")
    a("s_waitcnt vmcnt(0)")
    a(f"buffer_store_dword v7, v6, {srd(sWS)}, s{sT1} offen sc1")
    a("s_mov_b64 exec, -1")
    o += ts(cfg, 5, True)
    for r, lo, size in ((sW2, 20, 1792 * 896), (sWO, 12, 448 * 896)):
        o += [f"s_mov_b32 s{r}, s{lo}", f"s_mov_b32 s{r + 1}, s{lo + 1}", f"s_mov_b32 s{r + 2}, {size}",
              f"s_mov_b32 s{r + 3}, 0x20000"]
    a(f"v_bfe_u32 v6, v{vLANE}, 2, 1")
    a(f"v_and_b32 v7, 3, v{vLANE}")
    a("v_lshlrev_b32 v7, 7, v7")
    a("v_lshl_add_u32 v7, v6, 11, v7")
    a(f"s_lshl_b32 s{sT1}, s{sMT}, 12")
    a(f"s_add_u32 s{sT0}, s{sT0}, s{sT1}")
    a(f"s_add_u32 s{sT0}, s{sT0}, {WS_FLAG}")
    a(f"s_mul_i32 s{sT1}, s{sTT}, 3")
    a(f"s_and_b32 s{sT2}, s{sTT}, 2")
    a(f"s_add_u32 s{sT1}, s{sT1}, s{sT2}")
    a(f"s_lshl_b32 s{sT1}, s{sT1}, 7")
    a(f"s_add_u32 s{sT1}, s{sT1}, s{sT0}")
    a(f"v_add_u32 v{vFL}, s{sT1}, v7")
    if cfg.nob10:
        a(f"s_lshl_b32 s{sT1}, s{sTT}, 9")
        a(f"s_add_u32 s{sT1}, s{sT1}, s{sT0}")
        a(f"v_add_u32 v28, s{sT1}, v7")
    a(f"v_bfe_u32 v6, v{vLANE}, 4, 1")
    a(f"v_lshrrev_b32 v8, 3, v{vLANE}")
    a("v_and_b32 v9, 2, v8")
    a("v_lshlrev_b32 v9, 1, v9")
    a(f"v_and_b32 v10, 7, v{vLANE}")
    a("v_xor_b32 v9, v9, v10")
    a("v_mul_u32_u24 v8, 896, v8")
    a("v_lshl_add_u32 v8, v9, 4, v8")
    a(f"s_lshl_b32 s{sT1}, s{sNC}, 7")
    a(f"v_add_u32 v{vW2D}, s{sT1}, v8")
    a(f"s_mul_i32 s{sM0}, s{sTT}, {RING}")
    a(f"s_add_u32 s{sM0}, s{sM0}, {L_RING}")
    a(f"v_bfe_u32 v8, v{vLANE}, 2, 2")
    a(f"v_lshrrev_b32 v9, 5, v{vLANE}")
    a("v_lshl_add_u32 v9, v9, 2, v8")
    a("v_lshlrev_b32 v9, 7, v9")
    a("v_lshrrev_b32 v8, 1, v8")
    a("v_lshl_add_u32 v9, v8, 6, v9")
    a("v_lshl_add_u32 v9, v6, 5, v9")
    a(f"v_and_b32 v8, 3, v{vLANE}")
    a("v_lshl_add_u32 v9, v8, 3, v9")
    a(f"v_add_u32 v{vW2R}, s{sM0}, v9")
    a(f"v_xor_b32 v{vW2R + 1}, 64, v{vW2R}")
    a(f"s_mul_i32 s{sT3}, s{sTT}, {28 * 16 * 896}")
    a(f"s_lshl_b32 s{sT0}, s{sI}, 2")
    a(f"s_lshl_b32 s{sT1}, s{sMT}, 1")
    a(f"s_add_u32 s{sT0}, s{sT0}, s{sT1}")
    a(f"s_mul_i32 s{sHO}, s{sT0}, 112")
    a(f"s_mul_i32 s{sT1}, s{sTT}, 28")
    a(f"s_add_u32 s{sHO}, s{sHO}, s{sT1}")
    a(f"s_lshl_b32 s{sHO}, s{sHO}, 10")
    a(f"s_add_u32 s{sHO}, s{sHO}, {WS_H}")
    a(f"s_lshl_b32 s{sKMAX}, s{sT0}, 2")
    a(f"s_add_u32 s{sKMAX}, s{sKMAX}, s{sTT}")
    a(f"s_lshl_b32 s{sKMAX}, s{sKMAX}, 13")
    a(f"s_add_u32 s{sKMAX}, s{sKMAX}, {WS_O}")
    o += rot_table(sRA, 64 * 896, sT3) + rot_table(sRB, 4096, sHO)
    vq, lq = Q(), Q()

    def w2dma(s):
        for b in range(2):
            o.extend([f"s_add_u32 m0, s{sM0}, {(s % 12) * 2048 + b * 1024}",
                      f"s_add_u32 s{sSO}, s{sRA + (s >> 2)}, {(16 * (s & 3) + 8 * b) * 896}",
                      f"buffer_load_dwordx4 v{vW2D}, {srd(sW2)}, s{sSO} offen lds"])
            vq.issue(('w', s))

    sNOT, sG, sODD = 84, 85, 87
    seen = set()
    relift = [True]

    def h_ready(c):
        L = f"L_ph{c}"
        seen.add(c)
        o.extend([f"s_add_u32 s{sT0}, s{sG}, s{sODD}", f"s_lshr_b32 s{sT0}, s{sT0}, 1", f"s_lshl_b32 s{sT0}, 0x11, s{sT0}",
                  f"s_add_u32 s{sG}, s{sG}, 1", f"s_cmp_eq_u32 s{sG}, 7", f"s_cselect_b32 s{sG}, 0, s{sG}",
                  f"s_and_b32 s{sT1}, s{sNOT}, s{sT0}", f"s_cbranch_scc0 {L}_ok", f"{L}:",
                  f"buffer_load_dword v6, v{vFL}, {srd(sWS)}, 0 offen sc1", "s_waitcnt vmcnt(0)",
                  "s_setprio 1", "v_cmp_eq_u32 vcc, 0, v6", "s_setprio 0", f"s_mov_b32 s{sNOT}, vcc_lo",
                  f"s_and_b32 s{sT1}, s{sNOT}, s{sT0}", f"s_cbranch_scc0 {L}_ok",
                  f"s_sub_u32 s{sCNT}, s{sCNT}, 1", f"s_cselect_b32 s{sCNT}, 0, s{sCNT}", f"s_cbranch_scc1 {L}_ok",
                  f"s_sleep {cfg.sl_h}", f"s_branch {L}", f"{L}_ok:"])
        if cfg.fprio and cfg.fp0 <= 4 * c < cfg.fp1 and relift[0]:
            a("s_setprio 1")

    def hload(s):
        d = GH + 8 * (s % NH)
        if cfg.hchunk and s % 4 == 0 and s // 4 not in seen:
            h_ready(s // 4)
            if s == 0:
                o.extend(ts(cfg, 6, True))
        for b in range(2):
            o.extend([f"s_add_u32 s{sSO}, s{sRB + (s >> 2)}, {(b * 112 + (s & 3)) * 1024}",
                      f"buffer_load_dwordx4 {vr(d + 4 * b, 4)}, v{vL16}, {srd(sWS)}, s{sSO} offen sc1"])
            vq.issue(('h', s))

    def wreads(s, aidx):
        d = FR + 8 * (s & 1) + 4 * aidx
        for t in range(2):
            o.append(f"ds_read_b64_tr_b16 {vr(d + 2 * t, 2)}, v{vW2R + aidx} offset:{(s % 12) * 2048 + 1024 * t}")
            lq.issue((s, aidx))

    def vwait(pred):
        k = vq.need(pred)
        if k is not None:
            o.append(f"s_waitcnt vmcnt({k})")

    def lwait(tag):
        k = lq.need(lambda t: t == tag)
        if k is not None:
            o.append(f"s_waitcnt lgkmcnt({k})")
    nissued = [0]

    def fetch_upto(lim, throttle):
        hi = cfg.fprio and throttle and cfg.fp0 <= nissued[0] < min(lim, 28) and nissued[0] < cfg.fp1
        if hi:
            a("s_setprio 1")
        fetch_(lim, throttle)
        if hi:
            a("s_setprio 0")

    def fetch_(lim, throttle):
        while nissued[0] < min(lim, 28):
            if throttle and len(vq.q) > cfg.thr - 4:
                keep = cfg.thr - 4
                o.append(f"s_waitcnt vmcnt({keep})")
                vq.q = vq.q[len(vq.q) - keep:]
            w2dma(nissued[0])
            hload(nissued[0])
            nissued[0] += 1
    if not cfg.gprio:
        o += res_load()
    a(f"s_mul_i32 s{sT2}, s{sTT}, {112 * 896}")

    def wo_dma(half, slot):
        if cfg.fprio:
            a("s_setprio 1")
        wo_dma_(half, slot)
        if cfg.fprio:
            a("s_setprio 0")

    def wo_dma_(half, slot):
        for b in range(8):
            o.extend([f"s_add_u32 m0, s{sM0}, {slot * 2048 + b * 1024}",
                      f"s_add_u32 s{sSO}, s{sT2}, {(56 * half + 8 * b) * 896}",
                      f"buffer_load_dwordx4 v{vW2D}, {srd(sWO)}, s{sSO} offen lds"])
            vq.issue(('wo', half))

    def wo_reads(half, slot):
        vwait(lambda t: t == ('wo', half))
        if cfg.fprio:
            a("s_setprio 1")
        for x in range(4):
            for aidx in range(2):
                for t in range(2):
                    a(f"ds_read_b64_tr_b16 {vr(WOQ[2 * (4 * half + x) + aidx] + 2 * t, 2)}, v{vW2R + aidx} "
                      f"offset:{slot * 2048 + (28 * (x >> 1) + 16 * (x & 1)) * 128 + 1024 * t}")
            if x & 1:
                a("s_waitcnt lgkmcnt(0)")
        if cfg.fprio:
            a("s_setprio 0")
        lq.q = []
    cond = [f"v_cmp_eq_u32 vcc, 0, v6", "s_nop 0", "s_cmp_lg_u64 vcc, 0"]
    if cfg.hchunk:
        o += [f"s_mov_b32 s{sNOT}, -1", f"s_mov_b32 s{sG}, s{sROT}", f"s_and_b32 s{sODD}, s{sTT}, 1", f"s_mov_b32 s{sCNT}, {1 << 22}"]
        if not cfg.gprio:
            vq.issue('res')
    else:
        o += poll("L_ph", 6, vFL, sWS, cond, sleep=cfg.sl_h)
        vq.q = []
        o += ts(cfg, 6, True)
    D = cfg.gd
    OREG = [GH + 8 * ((28 - NH + x) % NH) for x in range(8)]

    def oload(hh):
        r = []
        for x in (2 * hh, 2 * hh + 1):
            for b in range(2):
                r += [f"s_add_u32 s{sSO}, s{sKMAX}, {b * 16 * 2048 + x * 1024}",
                      f"buffer_load_dwordx4 {vr(OREG[x] + 4 * b, 4)}, v{vL16}, {srd(sWS)}, s{sSO} offen sc1"]
        return r

    oq = oload(0) + oload(1)
    retry = []

    def step(s):
        d = GH + 8 * (s % NH)
        vwait(lambda t: t == ('h', s))
        for aidx in range(2):
            lwait((s, aidx))
            w = FR + 8 * (s & 1) + 4 * aidx
            for b in range(2):
                a(mfma(A0 + 32 * aidx + 16 * b, w, d + 4 * b, first=(s == 0)))
                if cfg.opipe and 4 * (28 - s) - 2 * aidx - b <= cfg.o_pre:
                    o.extend(oq[:2])
                    del oq[:2]
            nxt = s + 2
            if nxt < 28:
                if aidx == 0:
                    vwait(lambda t: t == ('w', nxt))
                if cfg.rprio and s < ng1:
                    a("s_setprio 1")
                wreads(nxt, aidx)
                if cfg.rprio and s < ng1:
                    a("s_setprio 0")
        if s < ng1:
            r0 = {0: 6, 1: 2}.get(cfg.wo_early, cfg.r0)
            fetch_upto(min(s + 1 + D + 1 + cfg.ramp * max(0, s - r0), s + 1 + NH), True)
        else:
            fetch_upto(s + 1 + NH, False)
        if cfg.nob10 and s == 7:
            a(f"buffer_load_dword v11, v28, {srd(sWS)}, 0 offen sc1")
            vq.issue('m')
        if cfg.nob10 and s == 9:
            vwait(lambda t: t == 'm')
            mc = ["s_setprio 1", "v_cmp_eq_u32 vcc, 0, v11", "s_setprio 0", f"s_bitcmp1_b32 s{sTT}, 0", f"s_cselect_b32 s{sT1}, 7, 15",
                  f"s_and_b32 s{sT0}, vcc_lo, s{sT1}"]
            o.extend(mc + ["s_cbranch_scc1 L_pm_slow", "L_pm_back:"])
            retry.extend(["L_pm_slow:"] + poll("L_pm", 11, 28, sWS, mc, sleep=cfg.sl_h) + ["s_branch L_pm_back"])
        if cfg.wo_early:
            if s == 2 and cfg.wo_early == 1:
                wo_reads(1, 8)
        else:
            if s == 0:
                wo_dma(0, 8)
            if s == 2:
                wo_reads(0, 8)
            if s == 4:
                wo_dma(1, 0)
            if s == 6:
                wo_reads(1, 0)
        if cfg.diag5 and s in (0, 2, 5, 8, 11, 14):
            o.extend(ts(cfg, 31 + (0, 2, 5, 8, 11, 14).index(s), True))
        if cfg.diag5 and s in (ng1, ng1 + 3, ng1 + 7, cfg.o_at):
            o.extend(ts(cfg, {ng1: 24, ng1 + 3: 25, ng1 + 7: 26, cfg.o_at: 18}[s], True))
        if s == 27 and cfg.opipe:
            o.extend(oq)
        elif s == cfg.o_at and not cfg.opipe:
            for hh in range(4):
                o.extend(oload(hh))
    if cfg.gprio == 1:
        a("s_setprio 0")
    o += probe(cfg, 2)
    if cfg.wo_early == 2:
        wo_dma(0, 0)
        wo_dma(1, 4)
        wo_reads(0, 0)
        wo_reads(1, 4)
    elif cfg.wo_early == 3:
        wo_dma(0, 0)
        wo_reads(0, 0)
        wo_dma(1, 0)
        wo_reads(1, 0)
    elif cfg.wo_early:
        wo_dma(0, 8)
    fetch_upto(D + 1, True)
    if cfg.wo_early == 1:
        wo_reads(0, 8)
        wo_dma(1, 8)
    if cfg.gprio == 2:
        a("s_setprio 0")
    vwait(lambda t: t in (('w', 0), ('w', 1)))
    for s in range(2):
        for aidx in range(2):
            wreads(s, aidx)
    def late_setup():
        a(f"v_and_b32 v8, 31, v{vLANE}")
        a(f"v_lshrrev_b32 v9, 5, v{vLANE}")
        a(f"v_mul_u32_u24 v8, {144 if cfg.bfp else 272}, v8")
        a(f"v_lshl_add_u32 v8, v9, {3 if cfg.bfp else 4}, v8")
        a(f"v_add_u32 v8, s{sM0}, v8")
        a(f"v_add_u32 v9, {32 * 144}, v8")
        if cfg.nob10:
            a(f"v_mov_b32 v10, {L_CNT}")
        if cfg.gprio:
            o.extend(res_load())
            vq.issue('res')
    a(f"s_mov_b32 s{sMASK}, 15")
    assert 24 <= cfg.o_at < 28 and ng1 >= 10 and D <= 4 and cfg.o_pre <= 8 and not (cfg.opipe and (cfg.sel_o or cfg.dyn_o))
    for s in range(28):
        if s == ng1:
            fetch_upto(s + NH, True)
            relift[0] = False
            for c in range(7):
                if cfg.hchunk and c not in seen:
                    h_ready(c)
            if cfg.gprio:
                a("s_setprio 1")
            late_setup()
            if cfg.gprio:
                a("s_setprio 0")
            o += ts(cfg, 7, True)
            if cfg.nob10:
                o.extend(lds_wait4("L_g4", ["ds_read_b32 v11, v10"], 2, 11))
                lq.q = []
            else:
                a("s_barrier")
        step(s)
    if ng1 >= 28:
        a("s_barrier")
    a(f"s_mov_b32 s{sCNT}, {ORETRY}")
    o += ts(cfg, 8, True)

    def marker_test(hh):
        regs = [OREG[2 * hh] + r for r in range(8)] + [OREG[2 * hh + 1] + r for r in range(8)]
        t = [f"v_max3_u32 v6, v{regs[0]}, v{regs[1]}, v{regs[2]}", f"v_max3_u32 v7, v{regs[3]}, v{regs[4]}, v{regs[5]}"]
        for r in range(6, 14, 4):
            t += [f"v_max3_u32 v6, v6, v{regs[r]}, v{regs[r + 1]}", f"v_max3_u32 v7, v7, v{regs[r + 2]}, v{regs[r + 3]}"]
        return t + [f"v_max3_u32 v6, v6, v{regs[14]}, v{regs[15]}", "v_max_u32 v6, v6, v7", "v_cmp_eq_u32 vcc, -1, v6"]

    def head_mfmas(hh):
        return [mfma(A0 + 32 * aidx + 16 * b, WOQ[2 * x + aidx], OREG[x] + 4 * b)
                for x in (2 * hh, 2 * hh + 1) for aidx in range(2) for b in range(2)]
    if cfg.dyn_o:
        a("L_o:")
        a("s_waitcnt vmcnt(0)")
        for hh in range(4):
            a(f"s_bitcmp1_b32 s{sMASK}, {hh}")
            a(f"s_cbranch_scc0 L_o{hh}_done")
            o += marker_test(hh)
            a(f"s_cbranch_vccnz L_o{hh}_retry")
            a(f"L_o{hh}_go:")
            o += head_mfmas(hh)
            a(f"s_bitset0_b32 s{sMASK}, {hh}")
            a(f"L_o{hh}_done:")
            retry += [f"L_o{hh}_retry:", f"s_sub_u32 s{sCNT}, s{sCNT}, 1", f"s_cselect_b32 s{sCNT}, 0, s{sCNT}",
                      f"s_cbranch_scc1 L_o{hh}_go"]
            retry += oload(hh) + [f"s_branch L_o{hh}_done"]
        a(f"s_cmp_lg_u32 s{sMASK}, 0")
        a("s_cbranch_scc1 L_o")
    else:
        for hh in range(4):
            test = [f"s_waitcnt vmcnt({(4 if hh < 3 else 0) if cfg.opipe else 4 * (3 - hh)})"] + marker_test(hh)
            if hh == 0 or not cfg.etest:
                a(f"L_o{hh}:")
                o += test
            else:
                retry += [f"L_o{hh}:"] + test + [f"s_cbranch_vccz L_o{hh}_go", f"s_branch L_o{hh}_retry"]
            a(f"s_cbranch_vccnz L_o{hh}_retry")
            a(f"L_o{hh}_go:")
            if cfg.diag5:
                o += ts(cfg, 19 + hh, True) + [f"v_writelane_b32 v{vTSG}, s{sCNT}, {27 + hh}"]
            ld = oload(hh + 2) if cfg.opipe and hh < 2 else []
            for x, m in enumerate(head_mfmas(hh)):
                o += [m] + (ld[2 * x:2 * x + 2] if x < 4 else [])
                if cfg.etest and hh < 3 and x == 5:
                    o += [f"s_waitcnt vmcnt({(4 if hh < 2 else 0) if cfg.opipe else 4 * (2 - hh)})"] + marker_test(hh + 1)
            if cfg.sel_o:
                retry += [f"L_o{hh}_retry:", f"s_mov_b32 s{sMASK}, {(15 << hh) & 15}", f"s_mov_b32 s{sT0}, {(15 << hh) & 15}",
                          "s_branch L_osel"]
                continue
            retry += [f"L_o{hh}_retry:", "s_waitcnt vmcnt(0)", f"s_sub_u32 s{sCNT}, s{sCNT}, 1",
                      f"s_cselect_b32 s{sCNT}, 0, s{sCNT}", f"s_cbranch_scc1 L_o{hh}_go"]
            for h2 in range(hh, min(hh + 2, 4) if cfg.opipe else 4):
                retry += oload(h2)
            retry += [f"s_branch L_o{hh}"]
        if cfg.sel_o:
            retry += ["L_osel:", "s_waitcnt vmcnt(0)", f"s_sub_u32 s{sCNT}, s{sCNT}, 1", f"s_cselect_b32 s{sMASK}, 0, s{sMASK}"]
            for hh in range(4):
                retry += [f"s_bitcmp1_b32 s{sMASK}, {hh}", f"s_cbranch_scc0 L_ot{hh}"] + marker_test(hh)
                retry += [f"s_cbranch_vccnz L_or{hh}", f"s_bitset0_b32 s{sMASK}, {hh}", f"s_branch L_ot{hh}", f"L_or{hh}:"]
                retry += oload(hh) + [f"L_ot{hh}:"]
            for hh in range(3):
                retry += [f"s_bitcmp1_b32 s{sT0}, {hh}", f"s_cbranch_scc0 L_om{hh}", f"s_bitcmp1_b32 s{sMASK}, {hh}",
                          "s_cbranch_scc1 L_osel"] + head_mfmas(hh) + [f"s_bitset0_b32 s{sT0}, {hh}", f"L_om{hh}:"]
            retry += [f"s_bitcmp1_b32 s{sMASK}, 3", "s_cbranch_scc1 L_osel", "s_branch L_o3_go"]
    def pwrite(aidx, b, i4):
        return f"ds_write_b128 v8, {vr(A0 + 32 * aidx + 16 * b + 4 * i4, 4)} offset:{b * 32 * 272 + aidx * 128 + i4 * 32}"
    if cfg.dyn_o:
        o += ts(cfg, 10, True)
        a("s_nop 11")
        o += [pwrite(aidx, b, i4) for aidx in range(2) for b in range(2) for i4 in range(4)]
    else:
        del o[-8:]
        pend, n = [], 0
        for aidx in range(2):
            for b in range(2):
                for x in (6, 7):
                    a(mfma(A0 + 32 * aidx + 16 * b, WOQ[2 * x + aidx], OREG[x] + 4 * b))
                    n += 1
                    if x == 7 and cfg.bfp:
                        T = A0 + 32 * aidx + 16 * b
                        for u in range(2):
                            pend += [(n + 12, f"v_cvt_pk_bf16_f32 v{T + k}, v{T + 2 * k}, v{T + 2 * k + 1}") for k in range(4 * u, 4 * u + 4)]
                            pend += [(n + 12, f"ds_write2_b64 v{8 + b}, {vr(T + 4 * u, 2)}, {vr(T + 4 * u + 2, 2)} "
                                              f"offset0:{8 * aidx + 4 * u} offset1:{8 * aidx + 4 * u + 2}")]
                    elif x == 7:
                        pend += [(n + 12, pwrite(aidx, b, i4)) for i4 in range(4)]
                    for _ in range(5 if cfg.bfp else 2):
                        if pend and pend[0][0] <= n:
                            a(pend.pop(0)[1])
                            n += 1
                        elif (aidx, b, x) != (0, 0, 6) and _ < 2:
                            a("s_nop 1")
                            n += 2
        while pend:
            if pend[0][0] > n:
                a(f"s_nop {pend[0][0] - n - 1}")
                n = pend[0][0]
            a(pend.pop(0)[1])
            n += 1
    a("s_waitcnt lgkmcnt(0)")
    o += ts(cfg, 11, True) + ts_move(cfg)
    a("s_branch L_final")
    return o, retry


HEADER = """
out = x + MQA(LN(x)) @ wo + SwiGLU(LN(x)), one launch, 256 workgroups (one per CU) of 8 waves; written by a generator script.
kernarg: 0 x, 8 wq, 16 wk, 24 wv, 32 wo, 40 (unused), 48 w1, 56 w3, 64 w2, 72 out, 80 debug, 88 ws
Workgroup (i, j): 128 tokens i, head j.  14 of the 16 workgroups of a token block ("heavy") own 128 columns of w1/w3 and one
64x64 output tile; the other two ("light") project K or V for the block instead.
Waves 4-7 (G): x fragments stay in registers; LayerNorm (mean taken out of x, 1/std applied to the fp32 products),
  gate/up/q projections, silu(gate)*up, later h @ w2 and o @ wo with K split over the four waves.
Waves 0-3 (A): stream the weights into LDS, then attention: all 128 query rows per wave, 512 keys per wave,
  S^T = K Q^T, P = 2^S, O^T += V^T P^T with a ones column in V giving the row sums.
Softmax guard: the shift 0 is used only when max|q|^2 * max|k|^2 proves |S| <= 80 (log2 units) for the whole workgroup;
  otherwise the true row maximum over all keys is computed first and subtracted inside the QK product (spare slots 28/29).
Hand-offs between workgroups (all stores and loads sc1, any placement): K/V behind a counter and a done word in d_debug;
  h behind per-producer words in ws that the light workgroups clear before the K/V signal; o by overwriting a marker
  that its producer lays down before its own h / K/V signal.  Every spin is bounded.
"""


def build(cfg):
    BARRIERS[:] = list(cfg.bars)
    BFP[0] = cfg.bfp
    NB[0] = cfg.nb
    KVC[0] = cfg.kvc
    SIG[0] = cfg.nob10
    PFMOD[0] = ('', 'nt', 'sc1', 'sc0 sc1')[cfg.pfmod]
    pro = prologue(cfg)
    g0 = g_first(cfg)
    aset = a_setup(cfg)
    lh, ll = loader_heavy(cfg), loader_light(cfg)
    apre = a_pre_attn(cfg)
    at0, atl, atp = attention(cfg)
    apost = a_post(cfg)
    ares = res_load()
    fin = final(cfg)
    fb = fallback(cfg)
    gf = g_front(cfg)
    gs, qp = g_stream2(cfg) if cfg.s2 else g_stream(cfg)
    gap = g_after_pass(cfg)
    gl = g_light(cfg)
    ke, ve, pub = kv_epi(cfg)
    g2, g2r = gemm2(cfg)
    ne = 0
    ne += len(check(pro + aset + lh + apre + at0 + atl + atl + atp + apost + fin, 'A heavy'))
    ne += len(check(pro + aset + ll + apre + fb + atl + atp + apost, 'A light+fallback'))
    ne += len(check(pro + g0 + gf + gs + qp + gap + g2 + fin, 'G heavy'))
    skip, g2s = False, []
    for x in g2:
        if x.startswith("L_ph") and x.endswith(":"):
            skip = not x.endswith("_ok:") and x != "L_ph:"
        if not skip:
            g2s.append(x)
    ne += len(check(pro + g0 + gf + gs + qp + gap + g2s + fin, 'G heavy, no polls'))
    gfl = gf[:gf.index("s_cbranch_scc1 L_G_light") + 1]
    ne += len(check(pro + g0 + gfl + gl + ke + pub + qp + gap, 'G light K'))
    iv = ke.index("s_cbranch_scc1 L_v_epi")
    ne += len(check(pro + g0 + gfl + gl + ke[:iv + 1] + ve + pub + qp + gap, 'G light V'))
    nb = lambda l: sum(1 for x in l if x == "s_barrier")
    print("barriers A heavy", nb(lh + apre + apost + fin), "G heavy", nb(gf + gs + qp + gap + g2 + fin),
          "| A light (until B9)", nb(ll + apre) - (0 if cfg.nob8 else 1), "G light", nb(gfl + gl + ke + pub + qp + gap))
    code = (pro + g0 + ["s_branch L_G", "L_A:"] + aset + [f"s_cmp_eq_u32 s{sNT}, 7", "s_cbranch_scc1 L_A_light"] + lh + ["L_A_join:"] + apre + at0 +
            [".p2align 6", "L_attn_loop:"] + atl + atp + apost + fin)
    tail = (gf + gs + ["L_qpass:"] + qp + gap + g2 + g2r + ["L_A_light:"] + ll + ["s_branch L_A_join"] + gl + ke + ve + pub + fb)
    text = [f"; @launch grid=(256,1,1) block=(512,1,1) lds={LDS_BYTES}"] + ["; " + x for x in HEADER.strip().split("\n")] + [
            '.amdgcn_target "amdgcn-amd-amdhsa--gfx950"', ".text", f".globl {NAME}_kernel", ".p2align 8",
            f".type {NAME}_kernel,@function", f"{NAME}_kernel:"]
    text += [("    " + x if not x.endswith(':') else x) for x in code + tail]
    text += ["L_codeend:", "    s_endpgm", '.section .rodata,"a"', ".p2align 6", f".amdhsa_kernel {NAME}_kernel",
             "  .amdhsa_next_free_vgpr 256", "  .amdhsa_next_free_sgpr 102", "  .amdhsa_accum_offset 256",
             "  .amdhsa_group_segment_fixed_size 0", "  .amdhsa_kernarg_size 96", "  .amdhsa_user_sgpr_count 2",
             "  .amdhsa_user_sgpr_kernarg_segment_ptr 1", "  .amdhsa_system_sgpr_workgroup_id_x 1",
             ".end_amdhsa_kernel", ""]
    return "\n".join(text), ne


if __name__ == "__main__":
    cfg = Cfg()
    out = f"cdna_kernels/{NAME}.s"
    for arg in sys.argv[1:]:
        if arg.startswith("-o"):
            out = arg[2:]
        else:
            k, v = arg.split("=")
            setattr(cfg, k, tuple(int(x) for x in v.split(',')) if ',' in v else type(getattr(cfg, k))(int(v)))
    text, ne = build(cfg)
    open(out, "w").write(text)
    print("wrote", out, "findings:", ne)
```

```python
import sys, math, struct
sys.path.insert(0, __file__.rsplit('/', 1)[0])
from asmcheck import check

NAME = "parallel_sum__grouped_kv_mqa__glu_gated_swiglu__prompt"


def f2u(x):
    return struct.unpack('<I', struct.pack('<f', x))[0]


class Cfg:
    diag = False
    diag2 = False
    diag3 = False
    diag4 = False
    diag5 = False
    jitter = False
    amp = (-1, -1, 0, 4)
    probe = 0
    pd = 31
    dbgout = -1
    rt = False
    ng1 = 15
    prefetch_code = True
    rot = True
    sent_g = 0
    lq_early = False
    lc_split = True
    bars = (12, 44, 76, 108, 132, 156)
    chain2 = False
    res_at = 9
    fprio = False
    fp0 = 0
    fp1 = 99
    rprio = False
    wo_early = 2
    r0 = 2
    ramp = 1
    ev0 = 97
    ev1 = 95
    nodma = False
    hs1 = 251
    nob8 = True
    w1 = False
    s2 = True
    spill = 10
    lightsafe = False
    nob10 = True
    etest = True
    kvc = 1
    pswap = False
    opipe = True
    o_pre = 0
    bfp = True
    mid_w = 0
    sel_o = False
    gprio = 1
    hchunk = True
    nb = 4
    gd = 4
    sent_at = 6
    ft = -1
    hs0 = 223
    hsd = 2
    dyn_o = False
    nsplit = True
    o_at = 27
    pfmod = 0
    wsoff = 0
    pf_kv = False
    xd = 3
    pre_c = 8
    late_c = False
    outsc = 0
    pf_at = (0, 0, 0, 4, 3, 1, 0)
    sl_kv = 4
    sl_h = 4
    sl_o = 1
    touch = False
    caps = (12, 12, 14, 14, 12, 12, 99)
    early_w = 0
    pf_w2 = True
    thr = 24
    wait2 = True
    bal = True
    defer_h = True
    force_fallback = False


WS_KV = 0
WS_KMAX = 0x40000
WS_FLAG = 0x980000
WS_O = 0x80000
WS_H = 0x280000
WS_END = 0x9c0000
WS_DIAG = 0x1000000

LDS_BYTES_ = 163840
XT = 28672
L_R = 114688
L_WQ = 16384
L_QX = 49152
L_N2 = 57344
L_CNT = 58368
L_RING = 65536
RING = 24576
L_ORED = 0
L_KVC = LDS_BYTES_ - 4
LDS_BYTES = 163840


def slot_u(u, s):
    if u == 0:
        return L_R + 4096 * s if s < 12 else 4096 * (s - 12)
    if s < 12:
        return 4096 * (16 + s)
    if s < 24:
        return L_R + 4096 * (s - 12)
    return 4096 * (s - 24)


sX, sW, sQ, sWS, sW2, sWO, sOUT, sDBG, sH = 28, 32, 36, 40, 44, 48, 52, 56, 60
sPC = 64
sWV, sTT, sI, sJ, sNT, sP, sFS, sMODE = 66, 67, 68, 69, 70, 71, 72, 73
sT0, sT1, sT2, sT3 = 74, 75, 76, 77
sCNT = 78
sKMAX = 79
sMASK = 80
sTMP2 = 82
sEX = 84
sHI = 86
sTS = 88
sSO = 90
sM0 = 91
sHO = 92
sMT, sNC = 81, 82
sOO = 83
sUP = 94
sROT = 93
sRA, sRB = 4, 11


def srd(r):
    return f"s[{r}:{r + 3}]"


def vr(a, n):
    return f"v[{a}:{a + n - 1}]"


def mfma(d, a, b, first=False):
    return f"v_mfma_f32_32x32x16_bf16 {vr(d, 16)}, {vr(a, 4)}, {vr(b, 4)}, " + ("0" if first else vr(d, 16))


class Q:
    def __init__(self):
        self.q = []

    def issue(self, tag):
        self.q.append(tag)

    def need(self, pred):
        last = -1
        for k, t in enumerate(self.q):
            if pred(t):
                last = k
        if last < 0:
            return None
        n = len(self.q) - 1 - last
        self.q = self.q[last + 1:]
        return n


vLANE, vTS, vTSG = 1, 238, 31


JN = [0]
ORETRY = 1 << 22


def probe(cfg, k):
    return [f"s_sleep {cfg.pd}"] if cfg.probe == k else []


def ts(cfg, idx, g=False):
    if cfg.amp[0] >= 0:
        if idx in cfg.amp[:2] and (g == bool(cfg.amp[2]) or idx in (12, 15)):
            return [f"s_memrealtime s[{sTS}:{sTS + 1}]", "s_waitcnt lgkmcnt(0)", f"s_mov_b32 s{99 if idx == cfg.amp[0] else 100}, s{sTS}"]
        return []
    if cfg.jitter and idx < 16 and idx not in (13, 15):
        JN[0] += 1
        L = f"L_jit{JN[0]}"
        return [f"s_memtime s[{sTS}:{sTS + 1}]", "s_waitcnt lgkmcnt(0)", f"s_mul_i32 s{sTS}, s{sTS}, 0x9e3779b1",
                f"s_lshr_b32 s{sTS + 1}, s{sTS}, 29", f"s_cmp_eq_u32 s{sTS + 1}, 0", f"s_cselect_b32 s{sTS + 1}, 22, 27",
                f"s_lshr_b32 s{sTS}, s{sTS}, 1", f"s_lshl_b32 s{sTS}, s{sTS}, 4", f"s_lshr_b32 s{sTS}, s{sTS}, s{sTS + 1}", f"{L}:", "s_sleep 1",
                f"s_sub_u32 s{sTS}, s{sTS}, 1", f"s_cbranch_scc0 {L}"]
    if not cfg.diag:
        return []
    o = [f"s_memtime s[{sTS}:{sTS + 1}]", "s_waitcnt lgkmcnt(0)", f"v_writelane_b32 v{vTSG if g else vTS}, s{sTS}, {idx}"]
    if cfg.rt and idx < 16:
        o += [f"s_memrealtime s[{sTS}:{sTS + 1}]", "s_waitcnt lgkmcnt(0)", f"v_writelane_b32 v{vTSG if g else vTS}, s{sTS}, {40 + idx}"]
    if g and (idx in (6, 7) or 31 <= idx < 40):
        o = ["s_setprio 1"] + o + ["s_setprio 0"]
    return o


def ts_move(cfg):
    return [f"v_mov_b32 v{vTS}, v{vTSG}"] if cfg.diag else []


def poll(label, vdst, voff, srdr, cond, limit=1 << 22, sleep=1):
    return ([f"s_mov_b32 s{sCNT}, {limit}", f"{label}:",
             f"buffer_load_dword v{vdst}, v{voff}, {srd(srdr)}, 0 offen sc1",
             "s_waitcnt vmcnt(0)"] + cond +
            [f"s_cbranch_scc0 {label}_ok",
             f"s_sub_u32 s{sCNT}, s{sCNT}, 1",
             f"s_cselect_b32 s{sCNT}, 0, s{sCNT}",
             f"s_cbranch_scc1 {label}_ok",
             f"s_sleep {sleep}",
             f"s_branch {label}",
             f"{label}_ok:"])


def half_sum(a, t, op="v_add_f32"):
    return [f"v_mov_b32 v{t}, v{a}", "s_nop 1", f"v_permlane32_swap_b32 v{a}, v{t}", f"{op} v{a}, v{a}, v{t}"]


def wave_max_to_sgpr(v, s):
    o = []
    for sh in (1, 2, 4, 8):
        o += ["s_nop 1", f"v_max_f32_dpp v{v}, v{v}, v{v} row_shr:{sh} row_mask:0xf bank_mask:0xf"]
    o += ["s_nop 1", f"v_max_f32_dpp v{v}, v{v}, v{v} row_bcast:15 row_mask:0xa bank_mask:0xf",
          "s_nop 1", f"v_max_f32_dpp v{v}, v{v}, v{v} row_bcast:31 row_mask:0xc bank_mask:0xf",
          "s_nop 1", f"v_readlane_b32 s{s}, v{v}, 63"]
    return o


def x_dma(L):
    o = [f"s_add_u32 m0, s{sM0}, {L * 4096}", f"s_add_u32 s{sT1}, s{sSO}, s{sT2}"]
    o += [f"buffer_load_dwordx4 v{4 + rb}, {srd(sX)}, s{sT1} offen offset:{1024 * rb} lds" for rb in range(4)]
    if L < 6:
        o += [f"s_add_u32 s{sT2}, s{sT2}, 128", f"s_cmp_eq_u32 s{sT2}, 896", f"s_cselect_b32 s{sT2}, 0, s{sT2}"]
    return o


def code_pf(cfg):
    if not cfg.prefetch_code:
        return []
    return [f"s_load_dword s{96 + k}, s[{sPC}:{sPC + 1}], {64 * k}" for k in range(3)]


def prologue(cfg):
    o = []
    a = o.append
    a("s_load_dwordx16 s[4:19], s[0:1], 0")
    a("s_load_dwordx8 s[20:27], s[0:1], 64")
    a("s_cmp_ge_u32 s2, 256")
    a("s_cbranch_scc1 L_end")
    a(f"v_and_b32 v{vLANE}, 63, v0")
    a("v_lshrrev_b32 v2, 6, v0")
    a(f"s_lshr_b32 s{sNT}, s2, 5")
    a(f"v_readfirstlane_b32 s{sWV}, v2")
    a(f"s_bfe_u32 s{sT1}, s2, 0x20003")
    a(f"s_bfe_u32 s{sI}, s2, 0x20001")
    a(f"s_lshl2_add_u32 s{sI}, s{sI}, s{sT1}")
    a(f"s_and_b32 s{sTT}, s{sWV}, 3")
    if cfg.rot:
        a(f"s_lshl1_add_u32 s{sROT}, s{sT1}, s{sNT}")
        a(f"s_cmp_ge_u32 s{sROT}, 7")
        a(f"s_cselect_b32 s{sT2}, 7, 0")
        a(f"s_sub_u32 s{sROT}, s{sROT}, s{sT2}")
    else:
        a(f"s_mov_b32 s{sROT}, 0")
    a(f"v_lshrrev_b32 v2, 3, v{vLANE}")
    a(f"v_and_b32 v5, 7, v{vLANE}")
    a("v_lshrrev_b32 v6, 1, v2")
    a("v_xor_b32 v5, v5, v6")
    a("v_mul_u32_u24 v2, 896, v2")
    a("v_lshl_add_u32 v4, v5, 4, v2")
    a("v_xor_b32 v5, 64, v4")
    a("v_add_u32 v6, 12288, v4")
    a("v_add_u32 v5, 6144, v5")
    a("v_add_u32 v7, 12288, v5")
    a(f"s_lshl2_add_u32 s{sT0}, s{sI}, s{sTT}")
    a(f"s_mul_i32 s{sSO}, s{sT0}, {32 * 896}")
    a(f"s_mul_i32 s{sM0}, s{sTT}, {XT}")
    a(f"s_lshl_b32 s{sT2}, s{sROT}, 7")
    a(f"s_mov_b32 s{sX + 2}, {2048 * 896}")
    a(f"s_mov_b32 s{sX + 3}, 0x20000")
    if cfg.prefetch_code:
        a(f"s_getpc_b64 s[{sPC}:{sPC + 1}]")
        a("L_pc:")
        a(f"s_and_b32 s{sT3}, s2, 0xf8")
        a(f"s_add_u32 s{sT3}, s{sT3}, s{sWV}")
        a(f"s_mul_i32 s{sT3}, s{sT3}, 192")
        a(f"s_min_u32 s{sT3}, s{sT3}, L_codeend-L_pc-192")
        a(f"s_add_u32 s{sPC}, s{sPC}, s{sT3}")
        a(f"s_addc_u32 s{sPC + 1}, s{sPC + 1}, 0")
    if cfg.diag:
        a(f"v_mov_b32 v{vTS}, 0")
        a(f"v_mov_b32 v{vTSG}, 0")
        o += [f"s_memtime s[{sTS}:{sTS + 1}]"]
    a(f"s_cmp_lt_u32 s{sWV}, 4")
    a("s_waitcnt lgkmcnt(0)")
    if cfg.diag:
        a(f"v_writelane_b32 v{vTS}, s{sTS}, 0")
        a(f"v_writelane_b32 v{vTSG}, s{sTS}, 0")
        o += ts(cfg, 13) + ts(cfg, 13, True)
        o += [f"s_memrealtime s[{sTS}:{sTS + 1}]", "s_waitcnt lgkmcnt(0)", f"v_writelane_b32 v{vTS}, s{sTS}, 16", f"v_writelane_b32 v{vTSG}, s{sTS}, 16"]
    if cfg.amp[0] >= 0:
        o += ["s_mov_b32 s99, 0", "s_mov_b32 s100, 0"] + ts(cfg, 13, bool(cfg.amp[2]))
    a(f"s_mov_b32 s{sX}, s4")
    a(f"s_mov_b32 s{sX + 1}, s5")
    a("s_cbranch_scc1 L_A")
    return o


def g_first(cfg):
    o = []
    for L in range(cfg.xd):
        o += x_dma(L)
    return o + code_pf(cfg)


def ids(cfg):
    o = [f"s_add_u32 s26, s26, {cfg.wsoff << 20}", "s_addc_u32 s27, s27, 0"] if cfg.wsoff else []
    o += [f"s_andn2_b32 s{sP}, 1, s2" if cfg.pswap else f"s_and_b32 s{sP}, s2, 1", f"s_lshl3_add_u32 s{sJ}, s{sP}, s{sNT}", f"s_sub_u32 s{sFS}, s{sJ}, s{sP}",
          f"s_mov_b32 s{sHI}, 0xffff0000", f"s_mov_b32 s{sUP}, 0", f"s_mov_b32 s{sUP + 1}, -1"]
    if cfg.nsplit:
        o += [f"s_lshr_b32 s{sNC}, s{sNT}, 1", f"s_lshl2_add_u32 s{sNC}, s{sP}, s{sNC}", f"s_and_b32 s{sMT}, s{sNT}, 1",
              f"s_cmp_eq_u32 s{sNT}, 6", f"s_cselect_b32 s{sNC}, 3, s{sNC}", f"s_cselect_b32 s{sMT}, s{sP}, s{sMT}"]
    else:
        o += [f"s_mov_b32 s{sNC}, s{sNT}", f"s_mov_b32 s{sMT}, s{sP}"]
    return o


def rot_table(dst, stride, add=None):
    o = [f"s_mul_i32 s{dst}, s{sROT}, {stride}"]
    for c in range(1, 7):
        o += [f"s_add_u32 s{dst + c}, s{dst + c - 1}, {stride}", f"s_cmp_eq_u32 s{dst + c}, {7 * stride}",
              f"s_cselect_b32 s{dst + c}, 0, s{dst + c}"]
    if add is not None:
        o += [f"s_add_u32 s{dst + c}, s{dst + c}, s{add}" for c in range(7)]
    return o


def rest_srds(cfg):
    def mk(r, lo, size):
        return [f"s_mov_b32 s{r}, s{lo}", f"s_mov_b32 s{r + 1}, s{lo + 1}", f"s_mov_b32 s{r + 2}, {size}",
                f"s_mov_b32 s{r + 3}, 0x20000"]
    o = []
    o += mk(sWS, 26, WS_END if not cfg.diag else WS_DIAG + (1 << 20))
    o += mk(sOUT, 22, 2048 * 896)
    o += mk(sDBG, 24, 256)
    return o


A0, A4 = 64, 32
XC = 128
FR = 240
vWR = 2
vMEAN, vC, vK1, vRSTD, vKQ, vKQ2 = 8, 9, 10, 11, 12, 13
vT = 14
vHQ = 20
vQR, vL16, vONE = 28, 29, 30


def stream():
    st = []
    for s in range(28):
        for q in range(4):
            st.append(dict(acc=A0 + 16 * q, s=s, kind='W', u=0, q=q))
    for half, base in ((0, A4), (1, A0)):
        for s in range(28):
            for q in range(2):
                st.append(dict(acc=base + 16 * q, s=s, kind='W', u=1, q=2 * half + q))
    for s in range(28):
        st.append(dict(acc=A0 + 32, s=s, kind='Q'))
    return st


BARRIERS = [12, 44, 76, 108, 132, 156]


def center_reg(r, t):
    return [f"v_lshlrev_b32 v{t}, 16, v{r}", f"v_and_b32 v{t + 1}, s{sHI}, v{r}",
            f"v_sub_f32 v{t}, v{t}, v{vMEAN}", f"v_sub_f32 v{t + 1}, v{t + 1}, v{vMEAN}",
            f"v_cvt_pk_bf16_f32 v{r}, v{t}, v{t + 1}"]


def h_store(quad, ks_off):
    r = sT0 if ks_off >= 6 else sT1
    return [f"s_add_u32 s{r}, s{sHO}, {ks_off * 1024}",
            f"buffer_store_dwordx4 {vr(quad, 4)}, v{vL16}, {srd(sH)}, s{r} offen sc1"]


def silu_tile(acc, quad, ks_off, store=True):
    def stage(r):
        t = vT + (r % 3)
        return [[f"v_mul_f32 v{t}, v{acc + r}, v{vK1}"],
                [f"v_exp_f32 v{t}, v{t}"],
                [f"v_mul_f32 v{acc + r}, v{acc + r}, v{acc + 8 + r}"],
                [f"v_fma_f32 v{t}, v{t}, v{vC}, v{vC}"],
                [f"v_rcp_f32 v{t}, v{t}"],
                [f"v_mul_f32 v{acc + r}, v{acc + r}, v{t}"]]
    o = []
    prev_last = None
    for r in range(8):
        sg = stage(r)
        o += sg[0]
        if prev_last:
            o += prev_last
            if r % 2 == 0:
                o.append(f"v_cvt_pk_bf16_f32 v{quad + r // 2 - 1}, v{acc + r - 2}, v{acc + r - 1}")
        o += sg[1] + sg[2] + sg[3] + sg[4]
        prev_last = sg[5]
    o += [h_store(quad, ks_off)[0] if store else "s_nop 0"] + prev_last
    o.append(f"v_cvt_pk_bf16_f32 v{quad + 3}, v{acc + 6}, v{acc + 7}")
    if store:
        o.append(h_store(quad, ks_off)[1])
    return o


def frag_reads(e, buf, wbase):
    o = []
    d = FR + 4 * buf
    if e['kind'] == 'Q':
        off = e['s'] * 1024
        return [f"ds_read_b64_tr_b16 {vr(d, 2)}, v{vQR} offset:{off}",
                f"ds_read_b64_tr_b16 {vr(d + 2, 2)}, v{vQR} offset:{off + 256}"]
    q = e['q']
    sl = slot_u(e['u'], e['s'])
    if not (wbase[q] <= sl and sl + 512 - wbase[q] <= 65535):
        nb = 0 if sl < 65536 else (65536 if sl < L_R else L_R)
        delta = nb - wbase[q]
        o.append(f"v_add_u32 v{vWR + q}, {delta & 0xffffffff:#x}, v{vWR + q}")
        wbase[q] = nb
    off = sl - wbase[q]
    o += [f"ds_read_b64_tr_b16 {vr(d, 2)}, v{vWR + q} offset:{off}",
          f"ds_read_b64_tr_b16 {vr(d + 2, 2)}, v{vWR + q} offset:{off + 512}"]
    return o


def g_stream(cfg):
    st = stream()
    N = len(st)
    wbase = [L_R] * 4
    lq = Q()
    pre = []
    for n in range(4):
        pre += frag_reads(st[n], n, wbase)
        lq.issue(n), lq.issue(n)
    fill = {}

    def spread(ops, g0, g1):
        k = g1 - g0 + 1
        for x, op in enumerate(ops):
            fill.setdefault(g0 + x * k // len(ops), []).append(op)
    todo = list(range(cfg.pre_c, 112))
    g0 = 0 if not cfg.late_c else max(0, cfg.pre_c - 5)
    for x, r in enumerate(todo):
        g = g0 + x if cfg.late_c else x * 107 // max(len(todo), 1)
        assert g <= 4 * (r // 4) - 2, (r, g)
        fill.setdefault(g, []).extend(center_reg(XC + r, vT + 2 * (x & 1)))
    tiles = [(A0 + 16 * q, q) for q in range(4)] + [(A4 + 16 * q, 4 + q) for q in range(2)]
    cut = 3 if cfg.bal else 4
    e0, e1 = [], []
    late = []
    for x, (ac, ks) in enumerate(tiles):
        quad = vHQ + 4 * (x & 1)
        if cfg.defer_h:
            quad = vHQ + 4 * x if x < 2 else ac + 8
            late += h_store(quad, ks)
        (e0 if x < cut else e1).extend(silu_tile(ac, quad, ks, store=not cfg.defer_h))
    spread(e0, 114, 166)
    spread(e1, 168 if cfg.bal else 172, 222)
    e2 = []
    for q in range(2):
        e2 += silu_tile(A0 + 16 * q, A0 + 16 * q + 8 if cfg.defer_h else vHQ + 4 * (q & 1), 6 + q)
    spread(e2, 227, 251)
    ready = {}
    for g in sorted(fill):
        for op in fill[g]:
            for x in range(len(late) // 2):
                q4 = int(late[2 * x + 1].split('[')[1].split(':')[0])
                if op.startswith(f"v_cvt_pk_bf16_f32 v{q4 + 3},") and g < 224:
                    ready[x] = g + 1
    g = cfg.hs0
    for x in ([2, 0, 1, 3, 4, 5] if late else []):
        g = max(g, ready[x])
        if x == 2:
            g = min(g, 223)
        fill.setdefault(g, []).extend(late[2 * x:2 * x + 2])
        g += cfg.hsd
    body, qp = pre, []
    cur = body
    for n, e in enumerate(st):
        if n == 224:
            cur = qp
        if cfg.wait2 and n % 2 == 0:
            k = lq.need(lambda t: t in (n, n + 1))
        else:
            k = lq.need(lambda t: t == n)
        if k is not None:
            cur.append(f"s_waitcnt lgkmcnt({k})")
        cur.append(mfma(e['acc'], FR + 4 * (n & 3), XC + 4 * e['s'], first=(e['s'] == 0)))
        if n in BARRIERS:
            bi = BARRIERS.index(n)
            cur += (ts(cfg, 18 + 2 * bi, True) if cfg.diag2 else []) + ["s_barrier"] + (ts(cfg, 19 + 2 * bi, True) if cfg.diag2 else [])
        if n in (111, 167) and cfg.diag2:
            cur += ts(cfg, 32 if n == 111 else 33, True)
        if n + 4 < N:
            cur += frag_reads(st[n + 4], n & 3, wbase)
            lq.issue(n + 4), lq.issue(n + 4)
        cur += fill.get(n, [])
        if n == 223:
            cur += (ts(cfg, 30, True) if cfg.diag2 else []) + ["s_barrier"] + (ts(cfg, 31, True) if cfg.diag2 else [])
    return body, qp


sHS = [6, 7, 14, 15, 16, 17, 18, 19]


HQUAD = [vHQ, vHQ + 4, A0 + 48, A0 + 56, A4 + 8, A4 + 24, A0 + 8, A0 + 24]


def h_store2(x):
    return f"buffer_store_dwordx4 {vr(HQUAD[x], 4)}, v{vL16}, {srd(sH)}, s{sHS[x]} offen sc1"


def cost(op):
    return 8 if op.startswith(("v_exp", "v_rcp")) else 4


LATE_H = []


def g_stream2(cfg):
    st = stream()
    N = len(st)
    wbase = [L_R] * 4
    reads = {n: frag_reads(st[n], n & 3, wbase) for n in range(N)}
    fill, slot0 = {}, {}
    for n in range(5, N):
        if reads[n][0].startswith("v_add"):
            fill.setdefault(n - 5, []).append(reads[n].pop(0))

    def place(ops, g0, g1, spill=False, even=0.0):
        used = lambda g: sum(cost(x) for x in fill.get(g, []))
        rest = {g: fill.pop(g, []) for g in range(g0, g1 + 1)}
        for budget in range(16, 64, 4):
            for g in rest:
                fill[g] = []
            g, ok, left = g0, True, []
            tot, acc_ = sum(cost(y[2]) for y in ops), 0
            for x, (e, l, t) in enumerate(ops):
                want = g0 + int(acc_ * (g1 - g0 + 1) * even / tot)
                acc_ += cost(t)
                g = max(g, e, min(want, l))
                while g <= g1 and used(g) + cost(t) + sum(cost(y) for y in rest[g]) > budget:
                    g += 1
                if g > g1 and spill and len(ops) - x <= spill:
                    left = [y[2] for y in ops[x:]]
                    break
                if g > min(l, g1):
                    ok = False
                    break
                fill[g].append(t)
            if ok:
                for g in rest:
                    fill[g] += rest[g]
                return budget, left
        raise AssertionError
    ops = []
    for x, r in enumerate(range(cfg.pre_c, 112)):
        ops += [(0, 4 * (r // 4) - 2, t) for t in center_reg(XC + r, vT + 2 * (x & 1))]
    b0, _ = place(ops, 0, 106, even=cfg.ev0 / 100)
    tiles = [(A0, 112, 166), (A0 + 16, 113, 167), (A0 + 32, 114, 221), (A0 + 48, 115, 221), (A4, 171, 226), (A4 + 16, 172, 226)]
    ops = []
    for x in (0, 1, 3, 2, 4, 5):
        ac, e, l = tiles[x]
        ops += [(e, l, t) for t in silu_tile(ac, HQUAD[x], x, store=False) if t != "s_nop 0"]
    quads = HQUAD
    b1, _ = place(ops, 112, 226, even=cfg.ev1 / 100)
    ops = []
    for x in range(2):
        ops += [(227 + x, 999, t) for t in silu_tile(A0 + 16 * x, quads[6 + x], 6 + x, store=False) if t != "s_nop 0"]
    b2, left = place(ops, 227, 251, spill=cfg.spill)
    print("vector budget per gap:", b0, b1, b2, "left over", len(left))
    ready = {}
    for g in sorted(fill):
        for op in fill[g]:
            for x, q4 in enumerate(quads):
                if op.startswith(f"v_cvt_pk_bf16_f32 v{q4 + 3},") and (g >= 227) == (x >= 6) and g >= 112:
                    ready[x] = g + 1
    g = cfg.hs0
    del LATE_H[:]
    for x in [0, 1, 3, 2, 4, 5, 6, 7]:
        g = max(g, ready.get(x, 999))
        g += g & 1
        while g in BARRIERS:
            g += 2
        if g > cfg.hs1:
            LATE_H.append(h_store2(x))
            continue
        slot0[g] = h_store2(x)
        g += cfg.hsd
    post = []
    if cfg.sent_g == 2:
        fill[106] = fill.get(106, []) + [f"v_mov_b32 v{vHQ + r}, -1" for r in range(4)]
        for u in range(2):
            slot0[109 + u] = f"buffer_store_dwordx4 {vr(vHQ, 4)}, v{vL16}, {srd(sWS)}, s{sOO} offen offset:{1024 * u} sc1"
    lq = Q()
    body, qp = [], []
    cur = body
    for n in range(4):
        cur += reads[n]
        lq.issue(n), lq.issue(n)
    cur.append(f"s_waitcnt lgkmcnt({lq.need(lambda t: t in (0, 1))})")

    def emit(t):
        p = cur[-1]
        if p.startswith(("v_exp", "v_rcp")) and t.startswith("v_") and p.split()[1].rstrip(',') in t.replace(',', ' ').split()[2:]:
            cur.append("s_nop 0")
        cur.append(t)
    for n, e in enumerate(st):
        if n == 224:
            cur = qp
        cur.append(mfma(e['acc'], FR + 4 * (n & 3), XC + 4 * e['s'], first=(e['s'] == 0)))
        if cfg.w1 and n + 1 not in slot0 and n + 1 not in BARRIERS and n != 223:
            k = lq.need(lambda t: t == n + 1)
            if k is not None:
                cur.append(f"s_waitcnt lgkmcnt({k})")
        elif n & 1:
            k = lq.need(lambda t: t in (n + 1, n + 2))
            if k is not None:
                cur.append(f"s_waitcnt lgkmcnt({k})")
        if n in slot0:
            cur.append(slot0[n])
        if n == 223 and cfg.nob8 and cfg.diag2:
            cur += ts(cfg, 31, True)
        if n in BARRIERS or (n == 223 and not cfg.nob8):
            bi = BARRIERS.index(n) if n in BARRIERS else 6
            cur += (ts(cfg, 18 + 2 * bi, True) if cfg.diag2 else []) + ["s_barrier"] + (ts(cfg, 19 + 2 * bi, True) if cfg.diag2 else [])
        if n in (111, 167) and cfg.diag2:
            cur += ts(cfg, 32 if n == 111 else 33, True)
        if n + 4 < N:
            cur += reads[n + 4]
            lq.issue(n + 4), lq.issue(n + 4)
        for t in fill.get(n, []):
            emit(t)
    for t in left + post:
        emit(t)
    return body, qp


sPFW, sPFO = 18, 19


PFMOD = ['']


def pf_setup(cfg):
    o = [f"s_lshr_b32 s{sT0}, s2, 1", f"s_and_b32 s{sT0}, s{sT0}, 0x7c", f"s_add_u32 s{sT0}, s{sT0}, s{sWV}",
         f"s_mul_i32 s{sPFW}, s{sT0}, {14 * 896}", f"v_lshlrev_b32 v9, 7, v{vLANE}"]
    if cfg.nsplit:
        o += [f"s_mul_i32 s{sPFO}, s{sT0}, 7", f"s_lshr_b32 s{sPFO}, s{sPFO}, 1", f"s_mul_i32 s{sPFO}, s{sPFO}, 896",
              f"v_lshrrev_b32 v14, 2, v{vLANE}", "v_mul_u32_u24 v14, 896, v14", f"v_and_b32 v15, 3, v{vLANE}",
              "v_lshl_add_u32 v14, v15, 7, v14", f"s_mul_i32 s{sT0}, s{sP}, 384", f"v_add_u32 v14, s{sT0}, v14"]
    else:
        o += [f"s_mul_i32 s{sPFO}, s{sT0}, {3584 - 448}", f"s_and_b32 s{sPFO}, s{sPFO}, 0xffffff80"]
    return o


def pf_w2(cfg, part, n=1):
    o = []
    nw = max(0, min(part + n, 7) - part)
    per, va = (8, 14) if cfg.nsplit else (14, 9)
    if nw:
        mask = (1 << (per * nw)) - 1
        assert per * nw <= 64
        o += [f"s_mov_b32 exec_lo, {mask & 0xffffffff:#x}", f"s_mov_b32 exec_hi, {mask >> 32:#x}",
              f"s_add_u32 s{sT1}, s{sPFW}, {2 * 896 * part}",
              f"buffer_load_dword v{228 + part}, v{va}, {srd(sW2)}, s{sT1} offen {PFMOD[0]}"]
    if part <= 7 < part + n:
        o += [f"s_mov_b64 exec, {0xffff if cfg.nsplit else 0x3ffffff:#x}",
              f"buffer_load_dword v235, v{va}, {srd(sWO)}, s{sPFO} offen {PFMOD[0]}"]
    if o:
        o.append("s_mov_b64 exec, -1")
    return o


def first_touch():
    o = []
    for wv, r, nl, stride, add in ((0, sW2, 25, 6272, 0), (1, sWO, 14, 1568, 0), (2, sQ, 14, 1568, 0), (3, sW2, 25, 6272, 3072)):
        o += [f"s_cmp_lg_u32 s{sWV}, {wv}", f"s_cbranch_scc1 L_ft{wv}_@",
              f"s_mul_i32 s{sT1}, s2, {stride}", f"s_and_b32 s{sT1}, s{sT1}, 0xffffff80",
              f"s_mov_b64 exec, {(1 << nl) - 1:#x}",
              f"buffer_load_dword v{244 + wv}, v9, {srd(r)}, s{sT1} offen offset:{add}", "s_mov_b64 exec, -1", f"L_ft{wv}_@:"]
    return o


def loader_heavy(cfg):
    st = stream()
    first_read, last_use = {}, {}
    for n, e in enumerate(st):
        key = (e['u'], e['s']) if e['kind'] == 'W' else ('Q', e['s'])
        first_read.setdefault(key, n - 4)
        last_use[key] = n
    fills = [(0, s) for s in range(28)] + [(1, s) for s in range(28)] + [('Q', m) for m in range(7)]

    def target(f):
        return slot_u(*f) if f[0] != 'Q' else L_WQ + 4096 * f[1]
    prev_owner = {}
    for s in range(28):
        prev_owner[slot_u(0, s)] = (0, s)
    o = []
    vq = Q()
    issued = set()

    def issue(f):
        if f[0] == 'Q':
            m = f[1]
            o.extend([f"s_add_u32 m0, s{sT2}, {L_WQ + 4096 * m}", "s_nop 0",
                      f"buffer_load_dwordx4 v3, {srd(sQ)}, s{sRB + m} offen lds"])
        else:
            u, s = f
            o.extend([f"s_add_u32 m0, s{sM0}, {slot_u(u, s)}", f"s_add_u32 s{sSO}, s{sRA + (s >> 2)}, {(s & 3) * 16 * 3584 + u * 128}",
                      f"buffer_load_dwordx4 v2, {srd(sW)}, s{sSO} offen lds"])
        vq.issue(f)
        issued.add(f)

    def needed_before(nb):
        out = []
        for f in fills:
            keys = [f] if f[0] != 'Q' else [('Q', 4 * f[1] + x) for x in range(4)]
            if min(first_read[k] for k in keys) < nb:
                out.append(f)
        return out

    def wait_for(fs):
        for f in fs:
            assert f in issued, f
        k = vq.need(lambda t: t in fs)
        if k is not None:
            o.append(f"s_waitcnt vmcnt({k})")
    o += rot_table(sRA, 64 * 3584)
    for s in range(cfg.early_w):
        issue((0, s))
    o += code_pf(cfg)
    o += rot_table(sRB, 64 * 896, sT3) + a_init_regs() + pf_setup(cfg)
    if cfg.mid_w:
        o.append("s_barrier")
        for s in range(cfg.early_w, cfg.early_w + cfg.mid_w):
            issue((0, s))
    o.append("s_barrier")
    for s in range(cfg.early_w + cfg.mid_w, 12):
        issue((0, s))
    pts = BARRIERS + [10 ** 6 if cfg.nob8 else 223]
    o.append("s_barrier")
    o += probe(cfg, 4)
    wait_for(needed_before(pts[0]))
    o.append("s_barrier")
    done_upto = -1
    flags = set()
    for bi in range(len(pts)):
        cnt = 0
        for f in fills:
            if f in issued:
                continue
            t = target(f)
            own = prev_owner.get(t)
            if (own == f or own is None or last_use[own] <= done_upto) and cnt < cfg.caps[bi]:
                issue(f)
                cnt += 1
            else:
                break
        if cfg.ft == bi:
            o.extend([x.replace('@', 'h') for x in first_touch()])
            vq.issue('ft')
        pf = pf_w2(cfg, sum(cfg.pf_at[:bi]), cfg.pf_at[bi]) if cfg.pf_w2 else []
        o.extend(pf)
        for x in pf:
            if x.startswith("buffer_load"):
                vq.issue('pf')
        nxt = pts[bi + 1] if bi + 1 < len(pts) else 10 ** 9
        if cfg.sent_at == bi and not cfg.chain2:
            o.extend(o_sentinel(not cfg.sent_g))
        if cfg.res_at == bi and not cfg.chain2:
            o.extend(res_load())
            vq.issue('r')
        if cfg.diag4:
            o.extend(ts(cfg, 18 + 2 * bi))
        wait_for(needed_before(nxt))
        if cfg.diag4:
            o.extend(ts(cfg, 19 + 2 * bi))
        if bi == len(pts) - 1:
            break
        o.append("s_barrier")
        done_upto = pts[bi]
    assert len(issued) == len(fills)
    o += probe(cfg, 9)
    if cfg.nodma:
        k = [x for x, t in enumerate(o) if t == "s_barrier"][2 + (1 if cfg.mid_w else 0)]
        o = o[:k] + [t for t in o[k:] if not t.startswith("buffer_load")]
    if cfg.diag4:
        o += ts(cfg, 32) + ["s_waitcnt vmcnt(3)"] + ts(cfg, 33) + ["s_waitcnt vmcnt(1)"] + ts(cfg, 34) + ["s_waitcnt vmcnt(0)"] + ts(cfg, 35)
    return o


def a_setup(cfg):
    o = []
    a = o.append
    o += ids(cfg)
    if cfg.touch:
        for wv, items in enumerate((((26, 0), (26, 0x200000), (26, 0x400000)), ((26, 0x600000), (26, 0x800000), (22, 0)),
                                    ((20, 0), (12, 0), (6, 0)), ((24, 0), (16, 0), (18, 0)))):
            a(f"s_cmp_lg_u32 s{sWV}, {wv}")
            a(f"s_cbranch_scc1 L_touch{wv}")
            for k, (p, off) in enumerate(items):
                if off:
                    a(f"s_mov_b32 s{sT0}, {off}")
                    a(f"s_load_dword s{100 + (k & 1)}, s[{p}:{p + 1}], s{sT0}")
                else:
                    a(f"s_load_dword s{100 + (k & 1)}, s[{p}:{p + 1}], 0")
            a(f"L_touch{wv}:")
    a(f"s_bitcmp1_b32 s{sWV}, 0")
    a(f"s_cselect_b32 s{sW}, s18, s16")
    a(f"s_cselect_b32 s{sW + 1}, s19, s17")
    a(f"s_mov_b32 s{sW + 2}, {448 * 3584}")
    a(f"s_mov_b32 s{sW + 3}, 0x20000")
    a(f"s_mov_b32 s{sQ}, s6")
    a(f"s_mov_b32 s{sQ + 1}, s7")
    a(f"s_mov_b32 s{sQ + 2}, {448 * 896}")
    a(f"s_mov_b32 s{sQ + 3}, 0x20000")
    o += rest_srds(cfg)
    for r, lo, size in ((sW2, 20, 1792 * 896), (sWO, 12, 448 * 896)):
        o += [f"s_mov_b32 s{r}, s{lo}", f"s_mov_b32 s{r + 1}, s{lo + 1}", f"s_mov_b32 s{r + 2}, {size}",
              f"s_mov_b32 s{r + 3}, 0x20000"]
    a(f"v_lshrrev_b32 v4, 3, v{vLANE}")
    a(f"s_lshr_b32 s{sT0}, s{sWV}, 1")
    a(f"s_and_b32 s{sT1}, s{sWV}, 1")
    a(f"s_lshl_b32 s{sM0}, s{sWV}, 10")
    a("v_and_b32 v5, 2, v4")
    a(f"s_lshl_b32 s{sT1}, s{sT1}, 2")
    a(f"v_or_b32 v5, s{sT1}, v5")
    a(f"v_and_b32 v6, 7, v{vLANE}")
    a("v_xor_b32 v5, v5, v6")
    a(f"s_mul_i32 s{sT0}, s{sT0}, {8 * 3584}")
    a(f"s_lshl_b32 s{sT1}, s{sFS}, 8")
    a(f"s_add_u32 s{sT0}, s{sT0}, s{sT1}")
    a("v_mul_u32_u24 v4, 3584, v4")
    a("v_lshl_add_u32 v2, v5, 4, v4")
    a(f"v_add_u32 v2, s{sT0}, v2")
    a(f"v_lshrrev_b32 v4, 2, v{vLANE}")
    a(f"v_and_b32 v5, 3, v{vLANE}")
    a("v_lshlrev_b32 v5, 4, v5")
    a("v_mad_u32_u24 v7, v4, 56, v5")
    a("v_mul_u32_u24 v4, 896, v4")
    a(f"s_mul_i32 s{sT0}, s{sJ}, 56")
    a(f"v_add3_u32 v3, v4, v5, s{sT0}")
    a(f"s_lshl_b32 s{sT2}, s{sWV}, 10")
    a(f"s_mul_i32 s{sT3}, s{sWV}, {16 * 896}")
    return o


AS0, AS1, AP, AO, AQ, AK, AV = 16, 32, 48, 64, 128, 160, 192
NB = [2]
KVC = [0]
SIG = [False]
vA16, vKVO = 8, 9


def a_init_regs():
    o = [f"v_mov_b32 v{r}, 0" for r in list(range(AO, AO + 64)) + list(range(AP, AP + 8)) + [AS1 + 14, AS1 + 15] +
         list(range(AV + 8 * (NB[0] - 1), AV + 8 * NB[0]))]
    o.append(f"v_lshlrev_b32 v{vA16}, 4, v{vLANE}")
    o.append("v_mov_b32 v56, 0")
    return o


vOW = 224


def o_sentinel(store=True, q=240, va=None):
    o = []
    a = o.append
    a(f"s_lshl_b32 s{sT0}, s{sI}, 2")
    a(f"s_add_u32 s{sT0}, s{sT0}, s{sTT}")
    a(f"s_lshl_b32 s{sOO}, s{sT0}, 4")
    a(f"s_add_u32 s{sOO}, s{sOO}, s{sJ}")
    a(f"s_lshl_b32 s{sOO}, s{sOO}, 11")
    a(f"s_add_u32 s{sOO}, s{sOO}, {WS_O}")
    if store:
        for r in range(4):
            a(f"v_mov_b32 v{q + r}, -1")
        for u in range(2):
            a(f"buffer_store_dwordx4 {vr(q, 4)}, v{va or vA16}, {srd(sWS)}, s{sOO} offen offset:{1024 * u} sc1")
    return o


def loader_light(cfg):
    o = []
    a = o.append
    a(f"s_cmp_eq_u32 s{sP}, 0")
    a(f"s_cselect_b32 s{sW}, s8, s10")
    a(f"s_cselect_b32 s{sW + 1}, s9, s11")
    a(f"s_mov_b32 s{sW + 2}, {448 * 56}")
    a(f"s_mul_i32 s{sT1}, s{sWV}, 896")
    o += rot_table(sRA, 64 * 56, sT1)
    for m in range(7):
        a(f"s_add_u32 m0, s{sT2}, {L_R + 4096 * m}")
        a("s_nop 0")
        a(f"buffer_load_dwordx4 v7, {srd(sW)}, s{sRA + m} offen lds")
    o += code_pf(cfg)
    o += rot_table(sRB, 64 * 896, sT3) + a_init_regs() + pf_setup(cfg)
    if cfg.mid_w:
        a("s_barrier")
    a("s_barrier")
    a(f"s_cmp_lg_u32 s{sWV}, 0")
    a("s_cbranch_scc1 L_noclr")
    a(f"s_lshl_b32 s{sT0}, s{sI}, 14")
    a(f"s_lshl_b32 s{sT1}, s{sP}, 13")
    a(f"s_add_u32 s{sT0}, s{sT0}, s{sT1}")
    a(f"s_add_u32 s{sT0}, s{sT0}, {WS_FLAG}")
    a(f"v_lshlrev_b32 v4, 7, v{vLANE}")
    a(f"buffer_store_dword v{AP}, v4, {srd(sWS)}, s{sT0} offen sc1")
    a(f"v_mov_b32 v4, {L_KVC}")
    a(f"ds_write_b32 v4, v{AP}")
    a("L_noclr:")
    o += o_sentinel()
    a("s_barrier")
    a("s_waitcnt vmcnt(0) lgkmcnt(0)")
    a("s_barrier")
    wq = []
    for m in range(7):
        wq += [f"s_add_u32 m0, s{sT2}, {L_WQ + 4096 * m}", "s_nop 0", f"buffer_load_dwordx4 v3, {srd(sQ)}, s{sRB + m} offen lds"]
    if cfg.lq_early:
        o += wq
    a("s_barrier")
    if not cfg.lq_early:
        o += wq
    if cfg.ft >= 0:
        o += [x.replace('@', 'l') for x in first_touch()] + ["s_waitcnt vmcnt(0)"]
    if cfg.pf_w2:
        o += pf_w2(cfg, 0, 4)
    a(f"s_waitcnt vmcnt({1 if cfg.pf_w2 else 0})")
    if cfg.pf_w2:
        o += pf_w2(cfg, 4, 4)
    a("s_barrier")
    return o


def kv_load(kind, buf, rel):
    base = (AK if kind == 'K' else AV) + 8 * buf
    off = 0 if kind == 'K' else 2048
    return [f"buffer_load_dwordx4 {vr(base + 4 * u, 4)}, v{vA16}, {srd(sWS)}, s{rel} offen offset:{off + 1024 * u} sc1"
            for u in range(2)]


THRESH = 80.0 * 80.0 / 1.02


def a_pre_attn(cfg):
    o = []
    a = o.append
    o += ts(cfg, 1) + probe(cfg, 5)
    a("v_mov_b32 v4, 128")
    o += poll("L_pkv", 5, 4, sDBG, ["v_cmp_eq_u32 vcc, 0, v5", "s_nop 0", "s_cmp_lg_u64 vcc, 0"], sleep=cfg.sl_kv)
    o += ts(cfg, 2)
    a(f"v_lshlrev_b32 v4, 2, v{vLANE}")
    a(f"s_mov_b32 s{sT0}, {WS_KMAX}")
    a(f"buffer_load_dword v5, v4, {srd(sWS)}, s{sT0} offen sc1")
    a(f"s_lshl_b32 s{sSO}, s{sWV}, 16")
    if cfg.kvc:
        for kt in range(NB[0] - 1):
            o += kv_load('K', kt, sSO) + kv_load('V', kt, sSO) + [f"s_add_u32 s{sSO}, s{sSO}, 4096"]
        nkv = 4 * NB[0] - 4
    else:
        o += kv_load('K', 0, sSO)
        for kt in range(NB[0] - 1):
            o += kv_load('V', kt, sSO) + [f"s_add_u32 s{sSO}, s{sSO}, 4096"] + kv_load('K', kt + 1, sSO)
        nkv = 4 * NB[0] - 2
    npf = 0
    if cfg.chain2:
        a(f"s_cmp_eq_u32 s{sNT}, 7")
        a("s_cbranch_scc1 L_A_nosent")
        o += o_sentinel() + res_load()
        a("L_A_nosent:")
    if cfg.pf_kv:
        a(f"s_lshr_b32 s{sT0}, s2, 1")
        a(f"s_and_b32 s{sT0}, s{sT0}, 0x7c")
        a(f"s_add_u32 s{sT0}, s{sT0}, s{sWV}")
        a(f"s_lshl_b32 s{sT0}, s{sT0}, 11")
        a("s_mov_b64 exec, 0xffff")
        a(f"buffer_load_dword v236, v9, {srd(sWS)}, s{sT0} offen sc1")
        a("s_mov_b64 exec, -1")
        npf = 1
    for sg in range(4):
        a(f"s_add_u32 s{sT0}, s{sWV}, {1 + sg}")
        a(f"s_and_b32 s{sT0}, s{sT0}, 3")
        a(f"s_lshl_b32 s{sT0}, s{sT0}, 11")
        a(f"s_add_u32 s{sT0}, s{sT0}, {L_QX}")
        a(f"v_add_u32 v{10 + sg}, s{sT0}, v{vA16}")
    for sg in range(4):
        a(f"s_add_u32 s{sT0}, s{sWV}, {1 + sg}")
        a(f"s_and_b32 s{sT0}, s{sT0}, 3")
        a(f"s_mul_i32 s{sT0}, s{sT0}, 12288")
        a(f"v_add_u32 v{vOW + sg}, s{sT0}, v{vA16}")
    a(f"v_lshrrev_b32 v6, 5, v{vLANE}")
    a(f"v_and_b32 v7, 31, v{vLANE}")
    a("v_lshlrev_b32 v7, 2, v7")
    a("v_lshl_add_u32 v6, v6, 8, v7")
    if cfg.chain2:
        a(f"s_cmp_eq_u32 s{sNT}, 7")
        a("s_cbranch_scc1 L_A_w1")
        a(f"s_waitcnt vmcnt({nkv + npf + 3}) lgkmcnt(0)")
        a("s_branch L_A_w2")
        a("L_A_w1:")
    a(f"s_waitcnt vmcnt({nkv + npf}) lgkmcnt(0)")
    if cfg.chain2:
        a("L_A_w2:")
    o += wave_max_to_sgpr(5, sKMAX)
    if cfg.chain2:
        a("s_waitcnt vmcnt(1)")
    o += ts(cfg, 3)
    if not cfg.nob8:
        a(f"s_cmp_eq_u32 s{sNT}, 7")
        a("s_cbranch_scc1 L_A_b9")
        a("s_barrier")
        a("L_A_b9:")
    a("s_barrier")
    o += ts(cfg, 4)
    nb = NB[0]
    for sg in range(4):
        a(f"ds_read_b128 {vr(AQ + 8 * sg, 4)}, v{10 + sg}")
        a(f"ds_read_b128 {vr(AQ + 8 * sg + 4, 4)}, v{10 + sg} offset:1024")
    a(f"s_waitcnt vmcnt({(4 * nb - 8 if cfg.kvc else 4 * nb - 4) + npf}) lgkmcnt(6)")
    o += [mfma(AS0, AK, AQ, first=True), mfma(AS0, AK + 4, AQ + 4)]
    a("s_barrier")
    a(f"ds_read_b32 v4, v6 offset:{L_N2}")
    a(f"ds_read_b32 v5, v6 offset:{L_N2 + 512}")
    a(f"s_mov_b32 s{sCNT}, {16 // nb - 1}")
    a(f"v_mov_b32 v10, {L_CNT}")
    a("v_mov_b32 v11, 1")
    a("s_waitcnt lgkmcnt(0)")
    a("v_max_f32 v4, v4, v5")
    a(f"v_mul_f32 v4, s{sKMAX}, v4")
    a(f"v_cmp_nge_f32 vcc, {f2u(-1.0 if cfg.force_fallback else THRESH):#x}, v4")
    a("s_nop 1")
    a("s_cbranch_vccnz L_fallback")
    return o


def fallback(cfg):
    o = ["L_fallback:", "s_waitcnt vmcnt(0)"]
    a = o.append
    M = 228
    KB = 240
    for sg in range(4):
        a(f"v_mov_b32 v{M + sg}, 0xff800000")
    a(f"s_mov_b32 s{sT0}, 0")
    a("L_fb_loop:")
    for u in range(2):
        a(f"buffer_load_dwordx4 {vr(KB + 4 * u, 4)}, v{vA16}, {srd(sWS)}, s{sT0} offen offset:{1024 * u} sc1")
    a("s_waitcnt vmcnt(0)")
    for sg in range(4):
        a(mfma(AS0, KB, AQ + 8 * sg, first=True))
        a(mfma(AS0, KB + 4, AQ + 8 * sg + 4))
        a("s_nop 11")
        for r in range(0, 16, 2):
            a(f"v_max3_f32 v{M + sg}, v{M + sg}, v{AS0 + r}, v{AS0 + r + 1}")
    a(f"s_add_u32 s{sT0}, s{sT0}, 4096")
    a(f"s_cmp_lt_u32 s{sT0}, {64 * 4096}")
    a("s_cbranch_scc1 L_fb_loop")
    for sg in range(4):
        o += half_sum(M + sg, 4, "v_max_f32")
        a(f"v_cvt_pk_bf16_f32 v4, -v{M + sg}, -v{M + sg}")
        a("v_lshlrev_b32 v4, 16, v4")
        a(f"v_sub_f32 v4, -v{M + sg}, v4")
        a(f"v_cvt_pk_bf16_f32 v4, -v{M + sg}, v4")
        a(f"v_cndmask_b32 v{AQ + 8 * sg + 6}, v{AQ + 8 * sg + 6}, v4, s[{sUP}:{sUP + 1}]")
    a("s_nop 1")
    o += [mfma(AS0, AK, AQ, first=True), mfma(AS0, AK + 4, AQ + 4), "s_nop 11"]
    a("s_branch L_attn_loop")
    return o


def o_writes(sg):
    return [f"ds_write_b128 v{vOW + sg}, {vr(AO + 16 * sg + 4 * u, 4)} offset:{L_ORED + sg * 4096 + u * 1024}" for u in range(4)]


def attn_block(n, last=False, peel=None):
    nb = NB[0]
    end = 4 * nb - 1
    X, Y = (AS0, AS1) if n % 2 == 0 else (AS1, AS0)
    q, qn, qp = n & 3, (n + 1) & 3, (n - 1) & 3
    kb = AK + 8 * (((n + 1) >> 2) % nb)
    vb = AV + 8 * (((n - 1) >> 2) % nb)
    E = lambda i: f"v_exp_f32 v{X + i}, v{X + i}"
    C = lambda i: f"v_cvt_pk_bf16_f32 v{AP + i}, v{X + 2 * i}, v{X + 2 * i + 1}"
    Cp7 = f"v_cvt_pk_bf16_f32 v{AP + 7}, v{Y + 14}, v{Y + 15}"
    QK0, QK1 = mfma(Y, kb, AQ + 8 * qn, first=True), mfma(Y, kb + 4, AQ + 8 * qn + 4)
    PV0, PV1 = mfma(AO + 16 * qp, vb, AP), mfma(AO + 16 * qp, vb + 4, AP + 4)
    if last:
        return [Cp7, PV0, "s_nop 0", PV1]
    if peel and n == end:
        sig = ["s_mov_b64 exec, 1", "ds_add_u32 v10, v11", "s_mov_b64 exec, -1"] if SIG[0] else []
        return ([Cp7, E(0), E(1), PV0, E(2), E(3), E(4), PV1] + o_writes(1) +
                [E(5), E(6), C(0), E(7), E(8), C(1), E(9), E(10), C(2)] + o_writes(2) + sig +
                [E(11), E(12), C(3), E(13), C(4), E(14), C(5), E(15), C(6)])

    def wait(tag, steady):
        if not peel:
            return [f"s_waitcnt vmcnt({steady})"]
        k = peel.need(lambda t: t == tag)
        return [] if k is None else [f"s_waitcnt vmcnt({k})"]
    o = [Cp7]
    kvc = KVC[0]
    if q == 3 and not kvc:
        o += wait(('K', (n >> 2) + 1), 4 * nb - 6)
    s0 = [f"s_add_u32 s{sSO}, s{sSO}, 4096"] if kvc and q == 1 and not peel else []
    s1 = []
    if n == end and not peel:
        s0, s1 = [f"s_sub_u32 s{sCNT}, s{sCNT}, 1"], [f"s_cmp_lg_u32 s{sCNT}, 0"]
    o += [QK0] + s0 + [E(0), E(1), E(2), QK1] + s1
    o += [E(3), E(4), E(5)]
    if q == 1 and not kvc:
        o += wait(('V', n >> 2), 4 * nb - 4)
    o += [PV0, E(6), E(7), E(8), PV1]
    if q == 2 and kvc == 1 and not (peel and (n >> 2) + 1 >= nb):
        o += wait(('V', (n >> 2) + 1), 4 * nb - 8)
    if kvc:
        if q == 0 and kvc == 2 and (n >> 2) + 1 < nb + (0 if peel else 1):
            o += wait(('V', (n >> 2) + 1), 4 * nb - 12)
        if q == 0 and not (peel and n):
            b = ((n >> 2) - 1) % nb
            o += kv_load('K', b, sSO) + kv_load('V', b, sSO)
            if peel:
                for _ in range(4):
                    peel.issue(('V', nb - 1))
    else:
        if q == 0 and not (peel and n):
            o += kv_load('V', ((n >> 2) - 1) % nb, sSO)
            if peel:
                peel.issue(('V', nb - 1)), peel.issue(('V', nb - 1))
        if q == 3 and not peel:
            o += [f"s_add_u32 s{sSO}, s{sSO}, 4096"] + kv_load('K', (n >> 2) % nb, sSO)
    tail = [E(9), C(0), E(10), C(1), E(11), C(2), E(12), C(3), E(13), C(4), E(14), C(5), E(15), C(6)]
    if peel and n == end - 1:
        tail = o_writes(0) + tail
    return o + tail


def attention(cfg):
    nb = NB[0]
    o = []
    loop = []
    for n in range(4 * nb):
        loop += attn_block(n)
    assert cfg.kvc
    loop += ["s_cbranch_scc1 L_attn_loop"]
    pq = Q()
    for kt in range(nb - 1):
        for t in ([('V', kt)] * 4 if cfg.kvc else (('V', kt), ('V', kt), ('K', kt + 1), ('K', kt + 1))):
            pq.issue(t)
    post = []
    for n in range(4 * nb):
        post += attn_block(n, peel=pq)
    post += attn_block(4 * nb, last=True)
    return o, loop, post


def lds_wait4(label, first, sleep, d=4):
    return ([f"s_mov_b32 s{sCNT}, {1 << (23 if sleep else 25)}"] + first + [f"{label}:", "s_waitcnt lgkmcnt(0)"] + (["s_setprio 1"] if sleep else []) +
            [f"v_readfirstlane_b32 s{sT0}, v{d}", "s_setprio 0" if sleep else "s_nop 0", f"s_cmp_ge_u32 s{sT0}, 4", f"s_cbranch_scc1 {label}_ok", f"s_sub_u32 s{sCNT}, s{sCNT}, 1",
            f"s_cbranch_scc1 {label}_ok"] + ([f"s_sleep {sleep}"] if sleep else []) +
            [f"ds_read_b32 v{d}, v10", f"s_branch {label}", f"{label}_ok:"])


def a_post(cfg):
    o = []
    a = o.append
    if cfg.nob10:
        o += ts(cfg, 5)
        o += lds_wait4("L_w4", ["ds_read_b32 v4, v10"], 0)
    else:
        a("s_waitcnt lgkmcnt(0)")
        o += ts(cfg, 5)
        a("s_barrier")
    o += ts(cfg, 6) + probe(cfg, 3)
    R = 128
    for x in range(12):
        a(f"ds_read_b128 {vr(R + 4 * x, 4)}, v{vOW + 3} offset:{L_ORED + x * 1024}")
    O = AO + 48
    order = [3, 0, 1, 2]
    lq = Q()
    o = o[:len(o) - 12]
    a = o.append
    for u in order:
        for sg in range(3):
            a(f"ds_read_b128 {vr(R + 16 * sg + 4 * u, 4)}, v{vOW + 3} offset:{L_ORED + (4 * sg + u) * 1024}")
            lq.issue((sg, u))
    for u in order:
        a(f"s_waitcnt lgkmcnt({lq.need(lambda t: t == (1, u))})")
        for r in range(4):
            a(f"v_add_f32 v{R + 4 * u + r}, v{R + 4 * u + r}, v{R + 16 + 4 * u + r}")
        a(f"s_waitcnt lgkmcnt({lq.need(lambda t: t == (2, u))})")
        for r in range(4):
            a(f"v_add_f32 v{O + 4 * u + r}, v{O + 4 * u + r}, v{R + 32 + 4 * u + r}")
        for r in range(4):
            a(f"v_add_f32 v{O + 4 * u + r}, v{O + 4 * u + r}, v{R + 4 * u + r}")
        if u == 3:
            a(f"v_mov_b32 v4, v{O + 12}")
            a(f"v_mov_b32 v5, v{O + 12}")
            a("s_nop 1")
            a("v_permlane32_swap_b32 v4, v5")
            a("v_rcp_f32 v5, v5")
            a("s_nop 0")
            a(f"v_cndmask_b32 v4, v5, 0, s[{sUP}:{sUP + 1}]")
        for r in range(4):
            a(f"v_mul_f32 v{O + 4 * u + r}, v{O + 4 * u + r}, v{5 if u < 3 else 4}")
        for r in range(2):
            a(f"v_cvt_pk_bf16_f32 v{AP + 2 * u + r}, v{O + 4 * u + 2 * r}, v{O + 4 * u + 2 * r + 1}")
        if u in (1, 2):
            b = u - 1
            a(f"buffer_store_dwordx4 {vr(AP + 4 * b, 4)}, v{vA16}, {srd(sWS)}, s{sOO} offen offset:{1024 * b} sc1")
    o += ts(cfg, 7)
    a(f"s_cmp_eq_u32 s{sNT}, 7")
    a("s_cbranch_scc1 L_fin")
    if cfg.res_at == 9:
        o += res_load()
    return o


vXRES = 60


BFP = [False]


def res_load():
    o = []
    a = o.append
    a(f"v_lshrrev_b32 v57, 3, v{vLANE}")
    a(f"v_and_b32 v58, 7, v{vLANE}")
    a("v_mul_u32_u24 v56, 896, v57")
    a("v_lshl_add_u32 v56, v58, 4, v56")
    a(f"s_lshl_b32 s{sT0}, s{sI}, 7")
    a(f"s_lshl_b32 s{sT1}, s{sMT}, 6")
    a(f"s_add_u32 s{sT0}, s{sT0}, s{sT1}")
    a(f"s_lshl_b32 s{sT1}, s{sWV}, 3")
    a(f"s_add_u32 s{sT0}, s{sT0}, s{sT1}")
    a(f"s_mul_i32 s{sT0}, s{sT0}, 896")
    a(f"s_lshl_b32 s{sT2}, s{sNC}, 7")
    a(f"s_add_u32 s{sT0}, s{sT0}, s{sT2}")
    a(f"v_add_u32 v56, s{sT0}, v56")
    a(f"buffer_load_dwordx4 {vr(vXRES, 4)}, v56, {srd(sX)}, 0 offen")
    a(f"v_add_u32 v57, s{sT1}, v57")
    a(f"v_mul_u32_u24 v57, {144 if BFP[0] else 272}, v57")
    a(f"v_lshl_add_u32 v57, v58, {4 if BFP[0] else 5}, v57")
    a(f"v_add_u32 v57, {L_RING}, v57")
    a(f"v_add_u32 v58, {2 * RING}, v57")
    return o


def final(cfg):
    o = ["L_final:", "s_barrier"]
    a = o.append
    o += ts(cfg, 12)
    R = 64
    if cfg.bfp:
        for kq in range(4):
            a(f"ds_read_b128 {vr(R + 4 * kq, 4)}, v{57 + (kq >> 1)} offset:{(kq & 1) * RING}")
        a("v_mov_b32 v6, 0x00003f80")
        a("v_mov_b32 v7, 0x3f800000")
    else:
        for kq in range(4):
            for u in range(2):
                a(f"ds_read_b128 {vr(R + 8 * kq + 4 * u, 4)}, v{57 + (kq >> 1)} offset:{(kq & 1) * RING + 16 * u}")
    a("s_waitcnt vmcnt(0)")
    for r in range(4):
        a(f"v_lshlrev_b32 v{8 + 2 * r}, 16, v{vXRES + r}")
        a(f"v_and_b32 v{9 + 2 * r}, s{sHI}, v{vXRES + r}")
    for kq in range(4):
        if cfg.bfp:
            a(f"s_waitcnt lgkmcnt({3 - kq})")
            for r in range(8):
                a(f"v_dot2c_f32_bf16 v{8 + r}, v{R + 4 * kq + r // 2}, v{6 + (r & 1)}")
        else:
            a(f"s_waitcnt lgkmcnt({6 - 2 * kq})")
            for r in range(8):
                a(f"v_add_f32 v{8 + r}, v{8 + r}, v{R + 8 * kq + r}")
    for r in range(4):
        a(f"v_cvt_pk_bf16_f32 v{vXRES + r}, v{8 + 2 * r}, v{9 + 2 * r}")
    a(f"buffer_store_dwordx4 {vr(vXRES, 4)}, v56, {srd(sOUT)}, 0 offen {('', 'sc1', 'sc0 sc1', 'nt')[cfg.outsc]}")
    if cfg.amp[0] >= 0:
        o += ts(cfg, 15)
        a(f"s_cmp_{'lt' if cfg.amp[2] else 'ge'}_u32 s{sWV}, 4")
        a("s_cbranch_scc1 L_fin")
        a("s_sub_u32 s99, s100, s99")
        a(f"s_mul_i32 s99, s99, {cfg.amp[3]}")
        a(f"s_memrealtime s[{sTS}:{sTS + 1}]")
        a("s_waitcnt lgkmcnt(0)")
        a(f"s_add_u32 s99, s99, s{sTS}")
        a("L_amp:")
        a(f"s_memrealtime s[{sTS}:{sTS + 1}]")
        a("s_waitcnt lgkmcnt(0)")
        a(f"s_sub_u32 s100, s{sTS}, s99")
        a("s_cmp_lt_i32 s100, 0")
        a("s_cbranch_scc1 L_amp")
    a("L_fin:")
    if cfg.diag:
        o += ts(cfg, 15)
        o += [f"s_memrealtime s[{sTS}:{sTS + 1}]", "s_waitcnt lgkmcnt(0)", f"v_writelane_b32 v{vTS}, s{sTS}, 17"]
        a(f"s_lshl_b32 s{sT0}, s2, 3")
        a(f"s_add_u32 s{sT0}, s{sT0}, s{sWV}")
        a(f"s_lshl_b32 s{sT0}, s{sT0}, 8")
        a(f"s_add_u32 s{sT0}, s{sT0}, {WS_DIAG}")
        a(f"v_lshlrev_b32 v4, 2, v{vLANE}")
        a(f"buffer_store_dword v{vTS}, v4, {srd(sWS)}, s{sT0} offen")
        if cfg.dbgout >= 0:
            a(f"s_lshl_b32 s{sT0}, s2, 3")
            a(f"s_add_u32 s{sT0}, s{sT0}, s{sWV}")
            a(f"s_cmp_lg_u32 s{sT0}, {cfg.dbgout}")
            a("s_cbranch_scc1 L_end")
            a(f"v_readlane_b32 s{sT1}, v{vTS}, 0")
            a(f"v_readlane_b32 s{sT2}, v{vTS}, 16")
            a(f"v_readlane_b32 s{sT3}, v{vTS}, 17")
            a("s_nop 3")
            a(f"s_sub_u32 s{sT2}, s{sT3}, s{sT2}")
            a(f"v_subrev_u32 v5, s{sT1}, v{vTS}")
            a(f"v_writelane_b32 v5, s{sT2}, 14")
            a("s_mov_b64 exec, 0xfffe")
            a(f"buffer_store_dword v5, v4, {srd(sDBG)}, 0 offen")
    a("L_end:")
    a("s_endpgm")
    return o


def g_front(cfg):
    o = ["L_G:"] + ids(cfg)
    a = o.append
    if cfg.diag3:
        o += ts(cfg, 34, True)
    o += rest_srds(cfg)
    a(f"s_mov_b32 s{sH}, s26")
    a(f"s_mov_b32 s{sH + 1}, s27")
    a(f"s_cmp_eq_u32 s{sNT}, 7")
    a(f"s_cselect_b32 s{sH + 2}, 0, {WS_END}")
    a(f"s_mov_b32 s{sH + 3}, 0x20000")
    a(f"s_mul_i32 s{sHO}, s{sT0}, 112")
    a(f"s_lshl3_add_u32 s{sHO}, s{sFS}, s{sHO}")
    a(f"s_lshl_b32 s{sHO}, s{sHO}, 10")
    a(f"s_add_u32 s{sHO}, s{sHO}, {WS_H}")
    if cfg.sent_g == 2:
        o += [f"s_mov_b32 s{sT3}, s{sT0}"] + o_sentinel(False) + [f"s_mov_b32 s{sT0}, s{sT3}"]
    if cfg.s2:
        for x in range(8):
            a(f"s_add_u32 s{sHS[x]}, s{sHO}, {1024 * x}")
    a(f"v_and_b32 v8, 31, v{vLANE}")
    a(f"v_lshrrev_b32 v9, 5, v{vLANE}")
    a("v_bfe_u32 v10, v8, 1, 3")
    a("v_xor_b32 v10, v10, v9")
    a("v_lshlrev_b32 v10, 4, v10")
    a("v_lshl_add_u32 v10, v8, 7, v10")
    a(f"v_add_u32 v20, s{sM0}, v10")
    for k in range(1, 4):
        a(f"v_xor_b32 v{20 + k}, {32 * k}, v20")
    a(f"v_mov_b32 v{vONE}, 0x3f803f80")
    for r in range(4):
        a(f"v_mov_b32 v{vT + r}, 0")
    a(f"v_lshlrev_b32 v{vL16}, 4, v{vLANE}")
    a("s_waitcnt lgkmcnt(0)")

    def dots(L):
        d = []
        for r in range(16):
            x = XC + 16 * L + r
            d += [f"v_dot2c_f32_bf16 v{vT + (r & 1)}, v{x}, v{vONE}", f"v_dot2c_f32_bf16 v{vT + 2 + (r & 1)}, v{x}, v{x}"]
        return d
    if cfg.xd >= 7:
        a("s_barrier")
    for L in range(7):
        a(f"s_waitcnt vmcnt({4 * (min(L + cfg.xd, 7) - 1 - L)})")
        if cfg.diag3:
            o += ts(cfg, 26 + L, True)
        for k in range(4):
            a(f"ds_read_b128 {vr(XC + 16 * L + 4 * k, 4)}, v{20 + k} offset:{L * 4096}")
        if L == 0 and cfg.mid_w:
            a("s_barrier")
        if L + cfg.xd < 7:
            o += x_dma(L + cfg.xd)
            if L + cfg.xd == 6:
                a("s_barrier")
                o += ts(cfg, 1, True)
        if L:
            a("s_waitcnt lgkmcnt(4)")
            o += dots(L - 1)
    a(f"v_bfe_u32 v8, v{vLANE}, 4, 1")
    a(f"v_bfe_u32 v10, v{vLANE}, 2, 2")
    a(f"v_and_b32 v11, 3, v{vLANE}")
    a("v_lshlrev_b32 v11, 3, v11")
    a("v_lshl_add_u32 v12, v9, 3, v10")
    a("v_lshlrev_b32 v12, 6, v12")
    a("v_lshl_add_u32 v12, v8, 5, v12")
    a(f"v_add_u32 v{vQR}, v12, v11")
    a("v_lshrrev_b32 v12, 1, v10")
    a("v_lshl_or_b32 v12, v8, 1, v12")
    a("v_lshl_add_u32 v12, v12, 5, v11")
    a("v_lshl_add_u32 v12, v10, 7, v12")
    a("v_lshl_add_u32 v12, v8, 10, v12")
    a("v_lshl_add_u32 v12, v9, 11, v12")
    a("s_waitcnt lgkmcnt(0)")
    a("s_barrier")
    o += ts(cfg, 14, True)
    a(f"v_add_u32 v2, {L_R}, v12")
    for k in range(1, 4):
        a(f"v_xor_b32 v{2 + k}, {32 * k}, v2")
    o += dots(6)
    a("s_nop 2")
    a(f"v_add_f32 v{vMEAN}, v{vT}, v{vT + 1}")
    a(f"v_add_f32 v{vC}, v{vT + 2}, v{vT + 3}")
    a(f"v_mov_b32 v{vT}, v{vMEAN}")
    a(f"v_mov_b32 v{vT + 1}, v{vC}")
    a("s_nop 0")
    a(f"v_permlane32_swap_b32 v{vMEAN}, v{vT}")
    a(f"v_permlane32_swap_b32 v{vC}, v{vT + 1}")
    a(f"v_add_f32 v{vMEAN}, v{vMEAN}, v{vT}")
    a(f"v_add_f32 v{vC}, v{vC}, v{vT + 1}")
    a(f"v_mul_f32 v{vMEAN}, {f2u(1.0 / 448):#x}, v{vMEAN}")
    a(f"v_mul_f32 v{vC}, {f2u(1.0 / 448):#x}, v{vC}")
    a(f"v_fma_f32 v{vC}, -v{vMEAN}, v{vMEAN}, v{vC}")
    a(f"v_max_f32 v{vC}, 0, v{vC}")
    a(f"v_add_f32 v{vC}, {f2u(1e-5):#x}, v{vC}")
    a(f"v_rsq_f32 v{vRSTD}, v{vC}")
    a("s_nop 0")
    a(f"v_mul_f32 v{vK1}, {f2u(-math.log2(math.e)):#x}, v{vRSTD}")
    a(f"s_cmp_eq_u32 s{sNT}, 7")
    a("s_cbranch_scc1 L_G_light")
    a(f"v_add_u32 v{vQR}, {L_WQ}, v{vQR}")
    if cfg.sent_g == 1:
        o += o_sentinel(True, A4, vL16)
    o += center_all(cfg.pre_c)
    a("s_barrier")
    o += ts(cfg, 2, True)
    return o


def center_all(nreg=112):
    o = [f"v_mov_b32 v6, 0x00003f80", f"v_mov_b32 v7, 0x3f800000", f"v_sub_f32 v{vKQ}, 0, v{vMEAN}"]
    a = o.append
    for r in range(nreg + 2):
        if r < nreg:
            t = vT + 2 * (r % 3)
            a(f"v_dot2_f32_bf16 v{t}, v{XC + r}, v6, v{vKQ}")
            a(f"v_dot2_f32_bf16 v{t + 1}, v{XC + r}, v7, v{vKQ}")
        else:
            a("s_nop 1")
        if r >= 2:
            tp = vT + 2 * ((r - 2) % 3)
            a(f"v_cvt_pk_bf16_f32 v{XC + r - 2}, v{tp}, v{tp + 1}")
    return o


def g_light(cfg):
    o = ["L_G_light:"]
    a = o.append
    a(f"v_add_u32 v{vQR}, {L_R}, v{vQR}")
    a("s_barrier")
    o += ts(cfg, 2, True)
    for n in range(4):
        o += frag_reads(dict(kind='Q', s=n), n, None)
    for r in range(4):
        a(f"v_mov_b32 v{vHQ + r}, v{vONE}")
    lq = Q()
    for n in range(4):
        lq.issue(n), lq.issue(n)
    for n in range(28):
        k = lq.need(lambda t: t == n)
        a(f"s_waitcnt lgkmcnt({k})")
        a(mfma(A0 + 32, FR + 4 * (n & 3), XC + 4 * n, first=(n == 0)))
        a(mfma(A0 + 48, FR + 4 * (n & 3), vHQ, first=(n == 0)))
        if n + 4 < 28:
            o += frag_reads(dict(kind='Q', s=n + 4), n & 3, None)
            lq.issue(n + 4), lq.issue(n + 4)
    a("s_nop 11")
    for r in range(16):
        a(f"v_fma_f32 v{A0 + 32 + r}, -v{vMEAN}, v{A0 + 48 + r}, v{A0 + 32 + r}")
    return o


def g_restart():
    o = []
    for n in range(4):
        o += frag_reads(dict(kind='Q', s=n), n, None)
    return o + ["s_waitcnt lgkmcnt(4)", "s_branch L_qpass"]


def proj_scale(scale_reg_setup):
    AC = A0 + 32
    o = list(scale_reg_setup)
    o.append(f"v_cndmask_b32 v{vKQ2}, v{vKQ}, 0, s[{sUP}:{sUP + 1}]")
    for r in range(16):
        o.append(f"v_mul_f32 v{AC + r}, v{AC + r}, v{vKQ if r < 12 else vKQ2}")
    return o


def sumsq():
    AC = A0 + 32
    o = [f"v_mul_f32 v{vT}, v{AC}, v{AC}", f"v_mul_f32 v{vT + 1}, v{AC + 1}, v{AC + 1}"]
    for r in range(2, 16):
        o.append(f"v_fmac_f32 v{vT + (r & 1)}, v{AC + r}, v{AC + r}")
    o.append(f"v_add_f32 v{vT}, v{vT}, v{vT + 1}")
    o += half_sum(vT, vT + 1)
    return o


def pack16(dst):
    AC = A0 + 32
    return [f"v_cvt_pk_bf16_f32 v{dst + r}, v{AC + 2 * r}, v{AC + 2 * r + 1}" for r in range(8)]


def g_after_pass(cfg):
    o = []
    a = o.append
    P = A4
    o += ts(cfg, 3, True)
    cq = math.log2(math.e) / math.sqrt(28.0)
    a(f"s_lshl_b32 s{sT0}, s{sTT}, 11")
    a(f"s_add_u32 s{sT0}, s{sT0}, {L_QX}")
    a(f"v_add_u32 v6, s{sT0}, v{vL16}")
    a(f"s_lshl_b32 s{sT0}, s{sTT}, 8")
    a(f"v_lshl_add_u32 v7, v{vLANE}, 2, s{sT0}")
    a("s_nop 5")
    sc, pk = proj_scale([]), pack16(P)
    o[-1:] = [f"v_mul_f32 v{vKQ}, {f2u(cq):#x}, v{vRSTD}", sc[0], f"v_mov_b32 v{vT}, {L_CNT}", f"v_mov_b32 v{vT + 1}, 0",
              f"ds_write_b32 v{vT}, v{vT + 1}", "s_nop 1"]
    o += sc[1:9] + pk[:4] + [f"ds_write_b128 v6, {vr(P, 4)}"] + sc[9:] + pk[4:] + [f"ds_write_b128 v6, {vr(P + 4, 4)} offset:1024"]
    a("s_waitcnt lgkmcnt(0)")
    a("s_barrier")
    o += sumsq()
    a(f"ds_write_b32 v7, v{vT} offset:{L_N2}")
    a("s_waitcnt lgkmcnt(0)")
    a("s_barrier")
    o += ts(cfg, 4, True) + ts_move(cfg)
    a(f"s_cmp_eq_u32 s{sNT}, 7")
    a("s_cbranch_scc1 L_fin")
    return o


def kv_epi(cfg):
    o = ["L_kv_epi:"]
    a = o.append
    P = A4
    AC = A0 + 32
    a(f"s_lshl_b32 s{sT1}, s{sI}, 2")
    a(f"s_add_u32 s{sT1}, s{sT1}, s{sTT}")
    a(f"s_lshl_b32 s{sT2}, s{sT1}, 12")
    o += proj_scale([f"v_mov_b32 v{vKQ}, v{vRSTD}"])
    a(f"s_cmp_eq_u32 s{sP}, 1")
    a("s_cbranch_scc1 L_v_epi")
    o += pack16(P)
    a(f"v_cndmask_b32 v{P + 6}, v{P + 6}, v{vONE}, s[{sUP}:{sUP + 1}]")
    o += sumsq()
    a(f"buffer_store_dwordx4 {vr(P, 4)}, v{vL16}, {srd(sWS)}, s{sT2} offen sc1")
    a(f"buffer_store_dwordx4 {vr(P + 4, 4)}, v{vL16}, {srd(sWS)}, s{sT2} offen offset:1024 sc1")
    o += wave_max_to_sgpr(vT, sT3)
    a(f"s_lshl_b32 s{sT1}, s{sT1}, 2")
    a(f"s_add_u32 s{sT1}, s{sT1}, {WS_KMAX}")
    a("v_mov_b32 v6, 0")
    a(f"v_mov_b32 v7, s{sT3}")
    a("s_mov_b64 exec, 1")
    a(f"buffer_store_dword v7, v6, {srd(sWS)}, s{sT1} offen sc1")
    a("s_mov_b64 exec, -1")
    a("s_branch L_kv_pub")
    vpart = ["L_v_epi:"]
    a = vpart.append
    a(f"v_mov_b32 v6, 1.0")
    a(f"v_cndmask_b32 v{AC + 12}, v{AC + 12}, v6, s[{sUP}:{sUP + 1}]")
    vpart += pack16(P)
    a(f"v_and_b32 v6, 31, v{vLANE}")
    a(f"v_lshrrev_b32 v7, 5, v{vLANE}")
    a("v_lshlrev_b32 v6, 6, v6")
    a("v_lshl_add_u32 v6, v7, 3, v6")
    a(f"s_lshl_b32 s{sT0}, s{sTT}, 11")
    a(f"v_add_u32 v6, s{sT0}, v6")
    for u in range(4):
        a(f"ds_write_b64 v6, {vr(P + 2 * u, 2)} offset:{16 * u}")
    a(f"v_bfe_u32 v6, v{vLANE}, 2, 2")
    a("v_lshl_add_u32 v6, v7, 2, v6")
    a("v_lshlrev_b32 v6, 6, v6")
    a(f"v_bfe_u32 v7, v{vLANE}, 4, 1")
    a("v_lshl_add_u32 v6, v7, 5, v6")
    a(f"v_and_b32 v7, 3, v{vLANE}")
    a("v_lshl_add_u32 v6, v7, 3, v6")
    a(f"v_add_u32 v6, s{sT0}, v6")
    a("s_waitcnt lgkmcnt(0)")
    for u in range(4):
        a(f"ds_read_b64_tr_b16 {vr(P + 8 + 2 * u, 2)}, v6 offset:{512 * u}")
    a("s_waitcnt lgkmcnt(0)")
    a(f"buffer_store_dwordx4 {vr(P + 8, 4)}, v{vL16}, {srd(sWS)}, s{sT2} offen offset:2048 sc1")
    a(f"buffer_store_dwordx4 {vr(P + 12, 4)}, v{vL16}, {srd(sWS)}, s{sT2} offen offset:3072 sc1")
    pub = ["L_kv_pub:"] + probe(cfg, 1)
    a = pub.append
    pub += ts(cfg, 6, True)
    ca = center_all()
    half = 3 + 3 * 50 - 2
    if cfg.lc_split:
        pub += ca[:half]
    a(f"v_mov_b32 v24, {L_KVC}")
    a("v_mov_b32 v25, 1")
    a("s_mov_b64 exec, 1")
    a("s_waitcnt vmcnt(0)")
    a("ds_add_rtn_u32 v26, v24, v25")
    a("v_mov_b32 v24, 0")
    a("s_waitcnt lgkmcnt(0)")
    a("v_cmp_eq_u32 vcc, 3, v26")
    a("s_cbranch_vccz L_kv_notlast")
    a("v_mov_b32 v26, 1")
    a(f"buffer_atomic_add v26, v24, {srd(sDBG)}, 0 offen sc0")
    a("s_waitcnt vmcnt(0)")
    a("v_cmp_eq_u32 vcc, 31, v26")
    a("s_cbranch_vccz L_kv_notlast")
    a(f"buffer_store_dword v25, v24, {srd(sDBG)}, 0 offen offset:128 sc1")
    a("L_kv_notlast:")
    a("s_mov_b64 exec, -1")
    a("s_barrier")
    pub += ts(cfg, 5, True)
    a(f"v_add_u32 v{vQR}, {(L_WQ - L_R) & 0xffffffff:#x}, v{vQR}")
    pub += probe(cfg, 8) + (ca[half:] if cfg.lc_split else ca)
    a("s_barrier")
    pub += g_restart()
    return o, vpart, pub


GH = 128
NH = 11
WOQ = [12, 16, 20, 24, 32, 36, 40, 44, 48, 52, 216, 220, 224, 228, 232, 236]
vW2R = 2
vW2D = 4
vFL = 5


def gemm2(cfg):
    o = []
    a = o.append
    ng1 = cfg.ng1
    if cfg.gprio:
        a("s_setprio 1")
    o += LATE_H + probe(cfg, 6)
    a(f"s_lshl_b32 s{sT0}, s{sI}, 14")
    a(f"s_lshl_b32 s{sT2}, s{sTT}, 11")
    a(f"s_add_u32 s{sT1}, s{sT0}, s{sT2}")
    a(f"s_lshl_b32 s{sT2}, s{sJ}, 7")
    a(f"s_add_u32 s{sT1}, s{sT1}, s{sT2}")
    a(f"s_add_u32 s{sT1}, s{sT1}, {WS_FLAG}")
    a("v_mov_b32 v6, 0")
    a("v_mov_b32 v7, 1")
    a("s_mov_b64 exec, 1")
    a("s_waitcnt vmcnt(0)")
    a(f"buffer_store_dword v7, v6, {srd(sWS)}, s{sT1} offen sc1")
    a("s_mov_b64 exec, -1")
    o += ts(cfg, 5, True)
    for r, lo, size in ((sW2, 20, 1792 * 896), (sWO, 12, 448 * 896)):
        o += [f"s_mov_b32 s{r}, s{lo}", f"s_mov_b32 s{r + 1}, s{lo + 1}", f"s_mov_b32 s{r + 2}, {size}",
              f"s_mov_b32 s{r + 3}, 0x20000"]
    a(f"v_bfe_u32 v6, v{vLANE}, 2, 1")
    a(f"v_and_b32 v7, 3, v{vLANE}")
    a("v_lshlrev_b32 v7, 7, v7")
    a("v_lshl_add_u32 v7, v6, 11, v7")
    a(f"s_lshl_b32 s{sT1}, s{sMT}, 12")
    a(f"s_add_u32 s{sT0}, s{sT0}, s{sT1}")
    a(f"s_add_u32 s{sT0}, s{sT0}, {WS_FLAG}")
    a(f"s_mul_i32 s{sT1}, s{sTT}, 3")
    a(f"s_and_b32 s{sT2}, s{sTT}, 2")
    a(f"s_add_u32 s{sT1}, s{sT1}, s{sT2}")
    a(f"s_lshl_b32 s{sT1}, s{sT1}, 7")
    a(f"s_add_u32 s{sT1}, s{sT1}, s{sT0}")
    a(f"v_add_u32 v{vFL}, s{sT1}, v7")
    if cfg.nob10:
        a(f"s_lshl_b32 s{sT1}, s{sTT}, 9")
        a(f"s_add_u32 s{sT1}, s{sT1}, s{sT0}")
        a(f"v_add_u32 v28, s{sT1}, v7")
    a(f"v_bfe_u32 v6, v{vLANE}, 4, 1")
    a(f"v_lshrrev_b32 v8, 3, v{vLANE}")
    a("v_and_b32 v9, 2, v8")
    a("v_lshlrev_b32 v9, 1, v9")
    a(f"v_and_b32 v10, 7, v{vLANE}")
    a("v_xor_b32 v9, v9, v10")
    a("v_mul_u32_u24 v8, 896, v8")
    a("v_lshl_add_u32 v8, v9, 4, v8")
    a(f"s_lshl_b32 s{sT1}, s{sNC}, 7")
    a(f"v_add_u32 v{vW2D}, s{sT1}, v8")
    a(f"s_mul_i32 s{sM0}, s{sTT}, {RING}")
    a(f"s_add_u32 s{sM0}, s{sM0}, {L_RING}")
    a(f"v_bfe_u32 v8, v{vLANE}, 2, 2")
    a(f"v_lshrrev_b32 v9, 5, v{vLANE}")
    a("v_lshl_add_u32 v9, v9, 2, v8")
    a("v_lshlrev_b32 v9, 7, v9")
    a("v_lshrrev_b32 v8, 1, v8")
    a("v_lshl_add_u32 v9, v8, 6, v9")
    a("v_lshl_add_u32 v9, v6, 5, v9")
    a(f"v_and_b32 v8, 3, v{vLANE}")
    a("v_lshl_add_u32 v9, v8, 3, v9")
    a(f"v_add_u32 v{vW2R}, s{sM0}, v9")
    a(f"v_xor_b32 v{vW2R + 1}, 64, v{vW2R}")
    a(f"s_mul_i32 s{sT3}, s{sTT}, {28 * 16 * 896}")
    a(f"s_lshl_b32 s{sT0}, s{sI}, 2")
    a(f"s_lshl_b32 s{sT1}, s{sMT}, 1")
    a(f"s_add_u32 s{sT0}, s{sT0}, s{sT1}")
    a(f"s_mul_i32 s{sHO}, s{sT0}, 112")
    a(f"s_mul_i32 s{sT1}, s{sTT}, 28")
    a(f"s_add_u32 s{sHO}, s{sHO}, s{sT1}")
    a(f"s_lshl_b32 s{sHO}, s{sHO}, 10")
    a(f"s_add_u32 s{sHO}, s{sHO}, {WS_H}")
    a(f"s_lshl_b32 s{sKMAX}, s{sT0}, 2")
    a(f"s_add_u32 s{sKMAX}, s{sKMAX}, s{sTT}")
    a(f"s_lshl_b32 s{sKMAX}, s{sKMAX}, 13")
    a(f"s_add_u32 s{sKMAX}, s{sKMAX}, {WS_O}")
    o += rot_table(sRA, 64 * 896, sT3) + rot_table(sRB, 4096, sHO)
    vq, lq = Q(), Q()

    def w2dma(s):
        for b in range(2):
            o.extend([f"s_add_u32 m0, s{sM0}, {(s % 12) * 2048 + b * 1024}",
                      f"s_add_u32 s{sSO}, s{sRA + (s >> 2)}, {(16 * (s & 3) + 8 * b) * 896}",
                      f"buffer_load_dwordx4 v{vW2D}, {srd(sW2)}, s{sSO} offen lds"])
            vq.issue(('w', s))

    sNOT, sG, sODD = 84, 85, 87
    seen = set()
    relift = [True]

    def h_ready(c):
        L = f"L_ph{c}"
        seen.add(c)
        o.extend([f"s_add_u32 s{sT0}, s{sG}, s{sODD}", f"s_lshr_b32 s{sT0}, s{sT0}, 1", f"s_lshl_b32 s{sT0}, 0x11, s{sT0}",
                  f"s_add_u32 s{sG}, s{sG}, 1", f"s_cmp_eq_u32 s{sG}, 7", f"s_cselect_b32 s{sG}, 0, s{sG}",
                  f"s_and_b32 s{sT1}, s{sNOT}, s{sT0}", f"s_cbranch_scc0 {L}_ok", f"{L}:",
                  f"buffer_load_dword v6, v{vFL}, {srd(sWS)}, 0 offen sc1", "s_waitcnt vmcnt(0)",
                  "s_setprio 1", "v_cmp_eq_u32 vcc, 0, v6", "s_setprio 0", f"s_mov_b32 s{sNOT}, vcc_lo",
                  f"s_and_b32 s{sT1}, s{sNOT}, s{sT0}", f"s_cbranch_scc0 {L}_ok",
                  f"s_sub_u32 s{sCNT}, s{sCNT}, 1", f"s_cselect_b32 s{sCNT}, 0, s{sCNT}", f"s_cbranch_scc1 {L}_ok",
                  f"s_sleep {cfg.sl_h}", f"s_branch {L}", f"{L}_ok:"])
        if cfg.fprio and cfg.fp0 <= 4 * c < cfg.fp1 and relift[0]:
            a("s_setprio 1")

    def hload(s):
        d = GH + 8 * (s % NH)
        if cfg.hchunk and s % 4 == 0 and s // 4 not in seen:
            h_ready(s // 4)
            if s == 0:
                o.extend(ts(cfg, 6, True))
        for b in range(2):
            o.extend([f"s_add_u32 s{sSO}, s{sRB + (s >> 2)}, {(b * 112 + (s & 3)) * 1024}",
                      f"buffer_load_dwordx4 {vr(d + 4 * b, 4)}, v{vL16}, {srd(sWS)}, s{sSO} offen sc1"])
            vq.issue(('h', s))

    def wreads(s, aidx):
        d = FR + 8 * (s & 1) + 4 * aidx
        for t in range(2):
            o.append(f"ds_read_b64_tr_b16 {vr(d + 2 * t, 2)}, v{vW2R + aidx} offset:{(s % 12) * 2048 + 1024 * t}")
            lq.issue((s, aidx))

    def vwait(pred):
        k = vq.need(pred)
        if k is not None:
            o.append(f"s_waitcnt vmcnt({k})")

    def lwait(tag):
        k = lq.need(lambda t: t == tag)
        if k is not None:
            o.append(f"s_waitcnt lgkmcnt({k})")
    nissued = [0]

    def fetch_upto(lim, throttle):
        hi = cfg.fprio and throttle and cfg.fp0 <= nissued[0] < min(lim, 28) and nissued[0] < cfg.fp1
        if hi:
            a("s_setprio 1")
        fetch_(lim, throttle)
        if hi:
            a("s_setprio 0")

    def fetch_(lim, throttle):
        while nissued[0] < min(lim, 28):
            if throttle and len(vq.q) > cfg.thr - 4:
                keep = cfg.thr - 4
                o.append(f"s_waitcnt vmcnt({keep})")
                vq.q = vq.q[len(vq.q) - keep:]
            w2dma(nissued[0])
            hload(nissued[0])
            nissued[0] += 1
    if not cfg.gprio:
        o += res_load()
    a(f"s_mul_i32 s{sT2}, s{sTT}, {112 * 896}")

    def wo_dma(half, slot):
        if cfg.fprio:
            a("s_setprio 1")
        wo_dma_(half, slot)
        if cfg.fprio:
            a("s_setprio 0")

    def wo_dma_(half, slot):
        for b in range(8):
            o.extend([f"s_add_u32 m0, s{sM0}, {slot * 2048 + b * 1024}",
                      f"s_add_u32 s{sSO}, s{sT2}, {(56 * half + 8 * b) * 896}",
                      f"buffer_load_dwordx4 v{vW2D}, {srd(sWO)}, s{sSO} offen lds"])
            vq.issue(('wo', half))

    def wo_reads(half, slot):
        vwait(lambda t: t == ('wo', half))
        if cfg.fprio:
            a("s_setprio 1")
        for x in range(4):
            for aidx in range(2):
                for t in range(2):
                    a(f"ds_read_b64_tr_b16 {vr(WOQ[2 * (4 * half + x) + aidx] + 2 * t, 2)}, v{vW2R + aidx} "
                      f"offset:{slot * 2048 + (28 * (x >> 1) + 16 * (x & 1)) * 128 + 1024 * t}")
            if x & 1:
                a("s_waitcnt lgkmcnt(0)")
        if cfg.fprio:
            a("s_setprio 0")
        lq.q = []
    cond = [f"v_cmp_eq_u32 vcc, 0, v6", "s_nop 0", "s_cmp_lg_u64 vcc, 0"]
    if cfg.hchunk:
        o += [f"s_mov_b32 s{sNOT}, -1", f"s_mov_b32 s{sG}, s{sROT}", f"s_and_b32 s{sODD}, s{sTT}, 1", f"s_mov_b32 s{sCNT}, {1 << 22}"]
        if not cfg.gprio:
            vq.issue('res')
    else:
        o += poll("L_ph", 6, vFL, sWS, cond, sleep=cfg.sl_h)
        vq.q = []
        o += ts(cfg, 6, True)
    D = cfg.gd
    OREG = [GH + 8 * ((28 - NH + x) % NH) for x in range(8)]

    def oload(hh):
        r = []
        for x in (2 * hh, 2 * hh + 1):
            for b in range(2):
                r += [f"s_add_u32 s{sSO}, s{sKMAX}, {b * 16 * 2048 + x * 1024}",
                      f"buffer_load_dwordx4 {vr(OREG[x] + 4 * b, 4)}, v{vL16}, {srd(sWS)}, s{sSO} offen sc1"]
        return r

    oq = oload(0) + oload(1)
    retry = []

    def step(s):
        d = GH + 8 * (s % NH)
        vwait(lambda t: t == ('h', s))
        for aidx in range(2):
            lwait((s, aidx))
            w = FR + 8 * (s & 1) + 4 * aidx
            for b in range(2):
                a(mfma(A0 + 32 * aidx + 16 * b, w, d + 4 * b, first=(s == 0)))
                if cfg.opipe and 4 * (28 - s) - 2 * aidx - b <= cfg.o_pre:
                    o.extend(oq[:2])
                    del oq[:2]
            nxt = s + 2
            if nxt < 28:
                if aidx == 0:
                    vwait(lambda t: t == ('w', nxt))
                if cfg.rprio and s < ng1:
                    a("s_setprio 1")
                wreads(nxt, aidx)
                if cfg.rprio and s < ng1:
                    a("s_setprio 0")
        if s < ng1:
            r0 = {0: 6, 1: 2}.get(cfg.wo_early, cfg.r0)
            fetch_upto(min(s + 1 + D + 1 + cfg.ramp * max(0, s - r0), s + 1 + NH), True)
        else:
            fetch_upto(s + 1 + NH, False)
        if cfg.nob10 and s == 7:
            a(f"buffer_load_dword v11, v28, {srd(sWS)}, 0 offen sc1")
            vq.issue('m')
        if cfg.nob10 and s == 9:
            vwait(lambda t: t == 'm')
            mc = ["s_setprio 1", "v_cmp_eq_u32 vcc, 0, v11", "s_setprio 0", f"s_bitcmp1_b32 s{sTT}, 0", f"s_cselect_b32 s{sT1}, 7, 15",
                  f"s_and_b32 s{sT0}, vcc_lo, s{sT1}"]
            o.extend(mc + ["s_cbranch_scc1 L_pm_slow", "L_pm_back:"])
            retry.extend(["L_pm_slow:"] + poll("L_pm", 11, 28, sWS, mc, sleep=cfg.sl_h) + ["s_branch L_pm_back"])
        if cfg.wo_early:
            if s == 2 and cfg.wo_early == 1:
                wo_reads(1, 8)
        else:
            if s == 0:
                wo_dma(0, 8)
            if s == 2:
                wo_reads(0, 8)
            if s == 4:
                wo_dma(1, 0)
            if s == 6:
                wo_reads(1, 0)
        if cfg.diag5 and s in (0, 2, 5, 8, 11, 14):
            o.extend(ts(cfg, 31 + (0, 2, 5, 8, 11, 14).index(s), True))
        if cfg.diag5 and s in (ng1, ng1 + 3, ng1 + 7, cfg.o_at):
            o.extend(ts(cfg, {ng1: 24, ng1 + 3: 25, ng1 + 7: 26, cfg.o_at: 18}[s], True))
        if s == 27 and cfg.opipe:
            o.extend(oq)
        elif s == cfg.o_at and not cfg.opipe:
            for hh in range(4):
                o.extend(oload(hh))
    if cfg.gprio == 1:
        a("s_setprio 0")
    o += probe(cfg, 2)
    if cfg.wo_early == 2:
        wo_dma(0, 0)
        wo_dma(1, 4)
        wo_reads(0, 0)
        wo_reads(1, 4)
    elif cfg.wo_early == 3:
        wo_dma(0, 0)
        wo_reads(0, 0)
        wo_dma(1, 0)
        wo_reads(1, 0)
    elif cfg.wo_early:
        wo_dma(0, 8)
    fetch_upto(D + 1, True)
    if cfg.wo_early == 1:
        wo_reads(0, 8)
        wo_dma(1, 8)
    if cfg.gprio == 2:
        a("s_setprio 0")
    vwait(lambda t: t in (('w', 0), ('w', 1)))
    for s in range(2):
        for aidx in range(2):
            wreads(s, aidx)
    def late_setup():
        a(f"v_and_b32 v8, 31, v{vLANE}")
        a(f"v_lshrrev_b32 v9, 5, v{vLANE}")
        a(f"v_mul_u32_u24 v8, {144 if cfg.bfp else 272}, v8")
        a(f"v_lshl_add_u32 v8, v9, {3 if cfg.bfp else 4}, v8")
        a(f"v_add_u32 v8, s{sM0}, v8")
        a(f"v_add_u32 v9, {32 * 144}, v8")
        if cfg.nob10:
            a(f"v_mov_b32 v10, {L_CNT}")
        if cfg.gprio:
            o.extend(res_load())
            vq.issue('res')
    a(f"s_mov_b32 s{sMASK}, 15")
    assert 24 <= cfg.o_at < 28 and ng1 >= 10 and D <= 4 and cfg.o_pre <= 8 and not (cfg.opipe and (cfg.sel_o or cfg.dyn_o))
    for s in range(28):
        if s == ng1:
            fetch_upto(s + NH, True)
            relift[0] = False
            for c in range(7):
                if cfg.hchunk and c not in seen:
                    h_ready(c)
            if cfg.gprio:
                a("s_setprio 1")
            late_setup()
            if cfg.gprio:
                a("s_setprio 0")
            o += ts(cfg, 7, True)
            if cfg.nob10:
                o.extend(lds_wait4("L_g4", ["ds_read_b32 v11, v10"], 2, 11))
                lq.q = []
            else:
                a("s_barrier")
        step(s)
    if ng1 >= 28:
        a("s_barrier")
    a(f"s_mov_b32 s{sCNT}, {ORETRY}")
    o += ts(cfg, 8, True)

    def marker_test(hh):
        regs = [OREG[2 * hh] + r for r in range(8)] + [OREG[2 * hh + 1] + r for r in range(8)]
        t = [f"v_max3_u32 v6, v{regs[0]}, v{regs[1]}, v{regs[2]}", f"v_max3_u32 v7, v{regs[3]}, v{regs[4]}, v{regs[5]}"]
        for r in range(6, 14, 4):
            t += [f"v_max3_u32 v6, v6, v{regs[r]}, v{regs[r + 1]}", f"v_max3_u32 v7, v7, v{regs[r + 2]}, v{regs[r + 3]}"]
        return t + [f"v_max3_u32 v6, v6, v{regs[14]}, v{regs[15]}", "v_max_u32 v6, v6, v7", "v_cmp_eq_u32 vcc, -1, v6"]

    def head_mfmas(hh):
        return [mfma(A0 + 32 * aidx + 16 * b, WOQ[2 * x + aidx], OREG[x] + 4 * b)
                for x in (2 * hh, 2 * hh + 1) for aidx in range(2) for b in range(2)]
    if cfg.dyn_o:
        a("L_o:")
        a("s_waitcnt vmcnt(0)")
        for hh in range(4):
            a(f"s_bitcmp1_b32 s{sMASK}, {hh}")
            a(f"s_cbranch_scc0 L_o{hh}_done")
            o += marker_test(hh)
            a(f"s_cbranch_vccnz L_o{hh}_retry")
            a(f"L_o{hh}_go:")
            o += head_mfmas(hh)
            a(f"s_bitset0_b32 s{sMASK}, {hh}")
            a(f"L_o{hh}_done:")
            retry += [f"L_o{hh}_retry:", f"s_sub_u32 s{sCNT}, s{sCNT}, 1", f"s_cselect_b32 s{sCNT}, 0, s{sCNT}",
                      f"s_cbranch_scc1 L_o{hh}_go"]
            retry += oload(hh) + [f"s_branch L_o{hh}_done"]
        a(f"s_cmp_lg_u32 s{sMASK}, 0")
        a("s_cbranch_scc1 L_o")
    else:
        for hh in range(4):
            test = [f"s_waitcnt vmcnt({(4 if hh < 3 else 0) if cfg.opipe else 4 * (3 - hh)})"] + marker_test(hh)
            if hh == 0 or not cfg.etest:
                a(f"L_o{hh}:")
                o += test
            else:
                retry += [f"L_o{hh}:"] + test + [f"s_cbranch_vccz L_o{hh}_go", f"s_branch L_o{hh}_retry"]
            a(f"s_cbranch_vccnz L_o{hh}_retry")
            a(f"L_o{hh}_go:")
            if cfg.diag5:
                o += ts(cfg, 19 + hh, True) + [f"v_writelane_b32 v{vTSG}, s{sCNT}, {27 + hh}"]
            ld = oload(hh + 2) if cfg.opipe and hh < 2 else []
            for x, m in enumerate(head_mfmas(hh)):
                o += [m] + (ld[2 * x:2 * x + 2] if x < 4 else [])
                if cfg.etest and hh < 3 and x == 5:
                    o += [f"s_waitcnt vmcnt({(4 if hh < 2 else 0) if cfg.opipe else 4 * (2 - hh)})"] + marker_test(hh + 1)
            if cfg.sel_o:
                retry += [f"L_o{hh}_retry:", f"s_mov_b32 s{sMASK}, {(15 << hh) & 15}", f"s_mov_b32 s{sT0}, {(15 << hh) & 15}",
                          "s_branch L_osel"]
                continue
            retry += [f"L_o{hh}_retry:", "s_waitcnt vmcnt(0)", f"s_sub_u32 s{sCNT}, s{sCNT}, 1",
                      f"s_cselect_b32 s{sCNT}, 0, s{sCNT}", f"s_cbranch_scc1 L_o{hh}_go"]
            for h2 in range(hh, min(hh + 2, 4) if cfg.opipe else 4):
                retry += oload(h2)
            retry += [f"s_branch L_o{hh}"]
        if cfg.sel_o:
            retry += ["L_osel:", "s_waitcnt vmcnt(0)", f"s_sub_u32 s{sCNT}, s{sCNT}, 1", f"s_cselect_b32 s{sMASK}, 0, s{sMASK}"]
            for hh in range(4):
                retry += [f"s_bitcmp1_b32 s{sMASK}, {hh}", f"s_cbranch_scc0 L_ot{hh}"] + marker_test(hh)
                retry += [f"s_cbranch_vccnz L_or{hh}", f"s_bitset0_b32 s{sMASK}, {hh}", f"s_branch L_ot{hh}", f"L_or{hh}:"]
                retry += oload(hh) + [f"L_ot{hh}:"]
            for hh in range(3):
                retry += [f"s_bitcmp1_b32 s{sT0}, {hh}", f"s_cbranch_scc0 L_om{hh}", f"s_bitcmp1_b32 s{sMASK}, {hh}",
                          "s_cbranch_scc1 L_osel"] + head_mfmas(hh) + [f"s_bitset0_b32 s{sT0}, {hh}", f"L_om{hh}:"]
            retry += [f"s_bitcmp1_b32 s{sMASK}, 3", "s_cbranch_scc1 L_osel", "s_branch L_o3_go"]
    def pwrite(aidx, b, i4):
        return f"ds_write_b128 v8, {vr(A0 + 32 * aidx + 16 * b + 4 * i4, 4)} offset:{b * 32 * 272 + aidx * 128 + i4 * 32}"
    if cfg.dyn_o:
        o += ts(cfg, 10, True)
        a("s_nop 11")
        o += [pwrite(aidx, b, i4) for aidx in range(2) for b in range(2) for i4 in range(4)]
    else:
        del o[-8:]
        pend, n = [], 0
        for aidx in range(2):
            for b in range(2):
                for x in (6, 7):
                    a(mfma(A0 + 32 * aidx + 16 * b, WOQ[2 * x + aidx], OREG[x] + 4 * b))
                    n += 1
                    if x == 7 and cfg.bfp:
                        T = A0 + 32 * aidx + 16 * b
                        for u in range(2):
                            pend += [(n + 12, f"v_cvt_pk_bf16_f32 v{T + k}, v{T + 2 * k}, v{T + 2 * k + 1}") for k in range(4 * u, 4 * u + 4)]
                            pend += [(n + 12, f"ds_write2_b64 v{8 + b}, {vr(T + 4 * u, 2)}, {vr(T + 4 * u + 2, 2)} "
                                              f"offset0:{8 * aidx + 4 * u} offset1:{8 * aidx + 4 * u + 2}")]
                    elif x == 7:
                        pend += [(n + 12, pwrite(aidx, b, i4)) for i4 in range(4)]
                    for _ in range(5 if cfg.bfp else 2):
                        if pend and pend[0][0] <= n:
                            a(pend.pop(0)[1])
                            n += 1
                        elif (aidx, b, x) != (0, 0, 6) and _ < 2:
                            a("s_nop 1")
                            n += 2
        while pend:
            if pend[0][0] > n:
                a(f"s_nop {pend[0][0] - n - 1}")
                n = pend[0][0]
            a(pend.pop(0)[1])
            n += 1
    a("s_waitcnt lgkmcnt(0)")
    o += ts(cfg, 11, True) + ts_move(cfg)
    a("s_branch L_final")
    return o, retry


HEADER = """
out = x + MQA(LN(x)) @ wo + SwiGLU(LN(x)), one launch, 256 workgroups (one per CU) of 8 waves; written by a generator script.
kernarg: 0 x, 8 wq, 16 wk, 24 wv, 32 wo, 40 (unused), 48 w1, 56 w3, 64 w2, 72 out, 80 debug, 88 ws
Workgroup (i, j): 128 tokens i, head j.  14 of the 16 workgroups of a token block ("heavy") own 128 columns of w1/w3 and one
64x64 output tile; the other two ("light") project K or V for the block instead.
Waves 4-7 (G): x fragments stay in registers; LayerNorm (mean taken out of x, 1/std applied to the fp32 products),
  gate/up/q projections, silu(gate)*up, later h @ w2 and o @ wo with K split over the four waves.
Waves 0-3 (A): stream the weights into LDS, then attention: all 128 query rows per wave, 512 keys per wave,
  S^T = K Q^T, P = 2^S, O^T += V^T P^T with a ones column in V giving the row sums.
Softmax guard: the shift 0 is used only when max|q|^2 * max|k|^2 proves |S| <= 80 (log2 units) for the whole workgroup;
  otherwise the true row maximum over all keys is computed first and subtracted inside the QK product (spare slots 28/29).
Hand-offs between workgroups (all stores and loads sc1, any placement): K/V behind a counter and a done word in d_debug;
  h behind per-producer words in ws that the light workgroups clear before the K/V signal; o by overwriting a marker
  that its producer lays down before its own h / K/V signal.  Every spin is bounded.
"""


def build(cfg):
    BARRIERS[:] = list(cfg.bars)
    BFP[0] = cfg.bfp
    NB[0] = cfg.nb
    KVC[0] = cfg.kvc
    SIG[0] = cfg.nob10
    PFMOD[0] = ('', 'nt', 'sc1', 'sc0 sc1')[cfg.pfmod]
    pro = prologue(cfg)
    g0 = g_first(cfg)
    aset = a_setup(cfg)
    lh, ll = loader_heavy(cfg), loader_light(cfg)
    apre = a_pre_attn(cfg)
    at0, atl, atp = attention(cfg)
    apost = a_post(cfg)
    ares = res_load()
    fin = final(cfg)
    fb = fallback(cfg)
    gf = g_front(cfg)
    gs, qp = g_stream2(cfg) if cfg.s2 else g_stream(cfg)
    gap = g_after_pass(cfg)
    gl = g_light(cfg)
    ke, ve, pub = kv_epi(cfg)
    g2, g2r = gemm2(cfg)
    ne = 0
    ne += len(check(pro + aset + lh + apre + at0 + atl + atl + atp + apost + fin, 'A heavy'))
    ne += len(check(pro + aset + ll + apre + fb + atl + atp + apost, 'A light+fallback'))
    ne += len(check(pro + g0 + gf + gs + qp + gap + g2 + fin, 'G heavy'))
    skip, g2s = False, []
    for x in g2:
        if x.startswith("L_ph") and x.endswith(":"):
            skip = not x.endswith("_ok:") and x != "L_ph:"
        if not skip:
            g2s.append(x)
    ne += len(check(pro + g0 + gf + gs + qp + gap + g2s + fin, 'G heavy, no polls'))
    gfl = gf[:gf.index("s_cbranch_scc1 L_G_light") + 1]
    ne += len(check(pro + g0 + gfl + gl + ke + pub + qp + gap, 'G light K'))
    iv = ke.index("s_cbranch_scc1 L_v_epi")
    ne += len(check(pro + g0 + gfl + gl + ke[:iv + 1] + ve + pub + qp + gap, 'G light V'))
    nb = lambda l: sum(1 for x in l if x == "s_barrier")
    print("barriers A heavy", nb(lh + apre + apost + fin), "G heavy", nb(gf + gs + qp + gap + g2 + fin),
          "| A light (until B9)", nb(ll + apre) - (0 if cfg.nob8 else 1), "G light", nb(gfl + gl + ke + pub + qp + gap))
    code = (pro + g0 + ["s_branch L_G", "L_A:"] + aset + [f"s_cmp_eq_u32 s{sNT}, 7", "s_cbranch_scc1 L_A_light"] + lh + ["L_A_join:"] + apre + at0 +
            [".p2align 6", "L_attn_loop:"] + atl + atp + apost + fin)
    tail = (gf + gs + ["L_qpass:"] + qp + gap + g2 + g2r + ["L_A_light:"] + ll + ["s_branch L_A_join"] + gl + ke + ve + pub + fb)
    text = [f"; @launch grid=(256,1,1) block=(512,1,1) lds={LDS_BYTES}"] + ["; " + x for x in HEADER.strip().split("\n")] + [
            '.amdgcn_target "amdgcn-amd-amdhsa--gfx950"', ".text", f".globl {NAME}_kernel", ".p2align 8",
            f".type {NAME}_kernel,@function", f"{NAME}_kernel:"]
    text += [("    " + x if not x.endswith(':') else x) for x in code + tail]
    text += ["L_codeend:", "    s_endpgm", '.section .rodata,"a"', ".p2align 6", f".amdhsa_kernel {NAME}_kernel",
             "  .amdhsa_next_free_vgpr 256", "  .amdhsa_next_free_sgpr 102", "  .amdhsa_accum_offset 256",
             "  .amdhsa_group_segment_fixed_size 0", "  .amdhsa_kernarg_size 96", "  .amdhsa_user_sgpr_count 2",
             "  .amdhsa_user_sgpr_kernarg_segment_ptr 1", "  .amdhsa_system_sgpr_workgroup_id_x 1",
             ".end_amdhsa_kernel", ""]
    return "\n".join(text), ne


if __name__ == "__main__":
    cfg = Cfg()
    out = f"cdna_kernels/{NAME}.s"
    for arg in sys.argv[1:]:
        if arg.startswith("-o"):
            out = arg[2:]
        else:
            k, v = arg.split("=")
            setattr(cfg, k, tuple(int(x) for x in v.split(',')) if ',' in v else type(getattr(cfg, k))(int(v)))
    text, ne = build(cfg)
    open(out, "w").write(text)
    print("wrote", out, "findings:", ne)
```
